```python
import torch

def _softmax(x, axis=-1):
    return torch.softmax(x, dim=axis)
def _gelu(x):
    return torch.nn.functional.gelu(x, approximate="tanh")
def _silu(x):
    return torch.nn.functional.silu(x)
def _sigmoid(x):
    return torch.sigmoid(x)
def _layernorm(x, axis=-1, eps=1e-5):
    m = x.mean(dim=axis, keepdim=True)
    v = x.var(dim=axis, keepdim=True, unbiased=False)
    return (x - m) / torch.sqrt(v + eps)
def _scatter_add(tgt, idx, src, axis=0):
    return tgt.clone().index_add_(axis, idx, src)
def _segment_sum(src, seg, n):
    out = torch.zeros((n,) + src.shape[1:], dtype=src.dtype)
    return out.index_add_(0, seg, src)
def _pad(x, pw):
    flat = tuple(v for pair in reversed(pw) for v in pair)
    return torch.nn.functional.pad(x, flat)

kernel_name = 'gated_mix__ssm_conv_s4d__dense_activation_squared_relu__prompt'

def setup_inputs():

    _w = (lambda a: (lambda t: t.to(torch.bfloat16) if t.is_floating_point() else t)(torch.as_tensor(a)))
    def _A_setup():
        Bsz, L, D, N = 1, 2048, 448, 256
        return {
            "u": _w((lambda *s: torch.randn(*s, dtype=torch.bfloat16) * 0.05)(Bsz, L, D)),
            "log_A_real": _w((lambda *s: torch.randn(*s, dtype=torch.bfloat16) * 3.2)(D, N) * 0.5),
            "A_imag": _w((lambda *s: torch.randn(*s, dtype=torch.bfloat16) * 0.1)(D, N) * 3.14),
            "C_real": _w((lambda *s: torch.randn(*s, dtype=torch.bfloat16) * 0.8)(D, N) / N ** 0.5),
            "C_imag": _w((lambda *s: torch.randn(*s, dtype=torch.bfloat16) * 0.8)(D, N) / N ** 0.5),
            "log_dt": _w((lambda *s: torch.randn(*s, dtype=torch.bfloat16) * 0.1)(D) * 0.5 - 4.0),
            "D_skip": _w((lambda *s: torch.randn(*s, dtype=torch.bfloat16) * 0.1)(D)),
        }
    _A_in = _A_setup()

    def _B_setup():
        B, S, D, F = 1, 2048, 448, 1792
        return {
            "x": _w((lambda *s: torch.randn(*s, dtype=torch.bfloat16) * 0.05)(B, S, D)),
            "w1": _w((lambda *s: torch.randn(*s, dtype=torch.bfloat16) * 0.05)(D, F)),
            "b1": _w((lambda *s: torch.randn(*s, dtype=torch.bfloat16) * 0.05)(F)),
            "w2": _w((lambda *s: torch.randn(*s, dtype=torch.bfloat16) * 0.05)(F, D)),
            "b2": _w((lambda *s: torch.randn(*s, dtype=torch.bfloat16) * 0.05)(D)),
        }
    _B_in = _B_setup()

    return {
        "A_u": _A_in["u"],
        "A_log_A_real": _A_in["log_A_real"],
        "A_A_imag": _A_in["A_imag"],
        "A_C_real": _A_in["C_real"],
        "A_C_imag": _A_in["C_imag"],
        "A_log_dt": _A_in["log_dt"],
        "A_D_skip": _A_in["D_skip"],
        "B_x": _B_in["x"],
        "B_w1": _B_in["w1"],
        "B_b1": _B_in["b1"],
        "B_w2": _B_in["w2"],
        "B_b2": _B_in["b2"],
        "gate_w": _w((lambda *s: torch.randn(*s, dtype=torch.bfloat16) * 0.05)(448) * 16.0),
    }

def reference(A_u, A_log_A_real, A_A_imag, A_C_real, A_C_imag, A_log_dt, A_D_skip, B_x, B_w1, B_b1, B_w2, B_b2, gate_w):
    def _A_ref(u, log_A_real, A_imag, C_real, C_imag, log_dt, D_skip):
        L = u.shape[1]
        dt = torch.exp(log_dt)
        A = -torch.exp(log_A_real) + 1j * A_imag
        C = (C_real + 1j * C_imag) * dt[:, None]
        pos = (lambda x, dt: x.to(dt))(torch.arange(L), log_dt.dtype)
        P = torch.exp((A * dt[:, None])[:, :, None] * pos[None, None, :])
        K = 2.0 * torch.einsum("dn,dnl->dl", C, P).real
        L2 = 2 * L
        u_t = (lambda x, *d: x.permute(*d))(u, 0, 2, 1)
        Kf = (lambda x, *a, **k: torch.fft.rfft(x.float(), *a, **k))(K, L2)
        Uf = (lambda x, *a, **k: torch.fft.rfft(x.float(), *a, **k))(u_t, L2)
        y = (lambda x, *a, **k: torch.fft.irfft(x, *a, **k).to(torch.bfloat16))(Uf * Kf[None, :, :], L2)[:, :, :L]
        y = (lambda x, *d: x.permute(*d))(y, 0, 2, 1)
        return y + u * D_skip[None, None, :]

    def _B_ref(x, w1, b1, w2, b2):
        h = torch.einsum("bsd,df->bsf", x, w1) + b1
        zero = torch.zeros_like(h)
        r = torch.where(h > zero, h, zero)
        h = r * r
        out = torch.einsum("bsf,fd->bsd", h, w2) + b2
        return out

    x = A_u
    g = _sigmoid((x * gate_w).sum(-1, keepdims=True))
    a = _A_ref(x, A_log_A_real, A_A_imag, A_C_real, A_C_imag, A_log_dt, A_D_skip)
    b = _B_ref(x, B_w1, B_b1, B_w2, B_b2)
    return g * a + (1 - g) * b
```

```python
import re

REG = re.compile(r'(?<![\w.])([vas])(\d+)(?![\w\[])|(?<![\w.])([vas])\[(\d+):(\d+)\]|(?<![\w.])(vcc|exec|m0)(?:_lo|_hi)?(?![\w])')
TRANS = ('v_exp_f32', 'v_log_f32', 'v_rcp_f32', 'v_rsq_f32', 'v_sqrt_f32', 'v_sin_f32', 'v_cos_f32')


def regs_of(text):
    out = []
    for m in REG.finditer(text):
        if m.group(1):
            out.append([(m.group(1), int(m.group(2)))])
        elif m.group(3):
            out.append([(m.group(3), i) for i in range(int(m.group(4)), int(m.group(5)) + 1)])
        else:
            out.append([(m.group(6), 0)])
    return out


class Ins:
    def __init__(self, text, tag=None):
        self.text = text
        self.tag = tag
        self.defs = set()
        self.uses = set()
        self.kind = None
        self.passes = 0
        self.srcC = set()
        self.srcAB = set()
        self.states = 1
        t = text.split(None, 1)
        op = self.op = t[0]
        rest = t[1] if len(t) > 1 else ''
        if op.endswith(':') or op.startswith('.'):
            self.kind = 'label'; self.states = 0; return
        if op.startswith('@'):
            self.kind = 'pseudo'; self.states = 0; self.arg = rest.strip(); return
        r = regs_of(rest)
        flat = lambda l: set(x for g in l for x in g)
        if op == 's_nop':
            self.kind = 'nop'; self.states = int(rest) + 1
        elif op in ('s_waitcnt', 's_barrier', 's_endpgm', 's_sleep', 's_setprio') or op.startswith('s_cbranch') or op == 's_branch':
            self.kind = 'ctl'
        elif op.startswith('s_load') or op.startswith('s_buffer_load') or op in ('s_memrealtime', 's_memtime'):
            self.kind = 'smem'; self.defs = flat(r[:1]); self.uses = flat(r[1:])
        elif op.startswith('s_cmp') or op.startswith('s_bitcmp') or op.startswith('s_setpc'):
            self.kind = 'salu'; self.uses = flat(r)
        elif op.startswith('s_'):
            self.kind = 'salu'; self.defs = flat(r[:1]); self.uses = flat(r[1:])
            if 'saveexec' in op: self.defs.add(('exec', 0))
            if op in ('s_addk_i32', 's_mulk_i32') or op.startswith('s_cmov'): self.uses |= self.defs
        elif op.startswith('v_mfma'):
            self.kind = 'mfma'; self.defs = flat(r[:1]); self.uses = flat(r[1:])
            self.passes = 8 if '32x32' in op else 4
            self.srcAB = flat(r[1:3]); self.srcC = flat(r[3:4])
        elif op.startswith('v_'):
            self.kind = 'valu'
            nd = 1
            if op.startswith('v_add_co') or op.startswith('v_addc_co') or op.startswith('v_sub_co'): nd = 2
            if 'swap' in op:
                self.defs = flat(r); self.uses = flat(r)
            else:
                self.defs = flat(r[:nd]); self.uses = flat(r[nd:])
                if 'fmac' in op or 'dpp' in text or 'sdwa' in text or op.startswith('v_writelane') or 'row_' in text or 'quad_perm' in text:
                    self.uses |= self.defs
        elif op.startswith('ds_read'):
            self.kind = 'dsr'; self.defs = flat(r[:1]); self.uses = flat(r[1:])
            if 'addtid' in op: self.uses.add(('m0', 0))
        elif op.startswith('ds_write'):
            self.kind = 'dsw'; self.uses = flat(r)
            if 'addtid' in op: self.uses.add(('m0', 0))
        elif op.startswith('buffer_load') or op.startswith('global_load'):
            if re.search(r'\blds\b', rest) or '_lds_' in op:
                self.kind = 'dma'; self.uses = flat(r) | {('m0', 0)}
            else:
                self.kind = 'vld'; self.defs = flat(r[:1]); self.uses = flat(r[1:])
        elif op.startswith('buffer_store') or op.startswith('global_store'):
            self.kind = 'vst'; self.uses = flat(r)
            di = 0 if op.startswith('buffer') else 1
            self.wide = set(r[di]) if len(r[di]) > 2 else set()
        else:
            raise ValueError('unknown instruction: ' + text)
        self.trans = op.replace('_e32', '').replace('_e64', '') in TRANS

    def isvm(self): return self.kind in ('dma', 'vld', 'vst')
    def isds(self): return self.kind in ('dsr', 'dsw')


class Asm:
    def __init__(self):
        self.ins = []

    def __call__(self, text, tag=None):
        for line in text.split('\n'):
            line = line.split(';')[0].strip()
            if line:
                self.ins.append(Ins(line, tag))
        return self

    def add(self, other):
        self.ins += other.ins if isinstance(other, Asm) else other
        return self


def sg(x): return x[0] in ('s', 'vcc')


def hazard(p, c):
    n = 0
    if p.kind == 'valu':
        vd = p.defs
        if c.kind == 'mfma' and vd & c.uses: n = max(n, 2)
        if c.kind == 'valu':
            if p.trans and vd & c.uses: n = max(n, 1)
            sd = set(x for x in vd if sg(x))
            if sd & c.uses: n = max(n, 4 if 'lane' in c.op else 2)
            if vd & c.uses:
                if c.op.startswith('v_readlane') or c.op.startswith('v_readfirstlane'): n = max(n, 1)
                if 'permlane' in c.op or 'dpp' in c.text or 'row_' in c.text or 'quad_perm' in c.text: n = max(n, 2)
            if 'dst_sel' in p.text and vd & (c.uses | c.defs): n = max(n, 1)
        if c.isvm() and set(x for x in vd if sg(x)) & c.uses: n = max(n, 5)
    if p.kind == 'mfma':
        big = 8 if p.passes == 4 else 12
        if c.kind == 'mfma':
            if p.defs & c.srcAB: n = max(n, big)
            if p.defs & (c.srcC | c.defs):
                exact = c.op == p.op and (c.srcC == p.defs or not (c.srcC & p.defs)) and (c.defs == p.defs or not (c.defs & p.defs))
                if not exact: n = max(n, big - 2)
        elif c.kind in ('valu', 'dsr', 'dsw', 'vld', 'vst', 'dma'):
            if p.defs & (c.uses | c.defs): n = max(n, big)
            if c.kind == 'valu' and p.srcC & c.defs: n = max(n, p.passes - 1)
    if p.kind == 'salu' and ('m0', 0) in p.defs and ('m0', 0) in c.uses and c.kind != 'salu': n = max(n, 1)
    if p.kind == 'vst' and p.wide & c.defs: n = max(n, 2 if c.kind in ('valu', 'mfma') else 1)
    return n


def finalize(ins):
    out = []
    vm = []
    lg = []

    def emit(i):
        need = 0; dist = 0
        for p in reversed(out):
            if p.kind in ('label', 'pseudo'): continue
            h = hazard(p, i)
            if h - dist > need: need = h - dist
            dist += p.states
            if dist > 14: break
        while need > 0:
            k = min(need, 16)
            out.append(Ins(f's_nop {k-1}')); need -= k
        out.append(i)

    def wait(nv, nl):
        nonlocal vm, lg
        parts = []
        if nv is not None and nv < len(vm):
            assert nv <= 63, 'vmcnt overflow'
            parts.append(f'vmcnt({nv})'); vm = vm[len(vm) - nv:] if nv else []
        if nl is not None and nl < len(lg):
            if any(x.kind == 'smem' for x in lg): nl = 0
            nl = min(nl, 15)
            parts.append(f'lgkmcnt({nl})'); lg = lg[len(lg) - nl:] if nl else []
        if parts: emit(Ins('s_waitcnt ' + ' '.join(parts)))

    for i in ins:
        if i.kind == 'pseudo':
            if i.op == '@wait':
                idx = [k for k, x in enumerate(vm) if x.tag == i.arg]
                if idx: wait(len(vm) - 1 - idx[-1], None)
            elif i.op == '@drain': wait(0, 0)
            elif i.op == '@lgkm0': wait(None, 0)
            elif i.op == '@vm0': wait(0, None)
            elif i.op == '@reset': vm = []; lg = []
            else: raise ValueError(i.text)
            continue
        if i.kind == 'label':
            out.append(i); continue
        touch = i.uses | i.defs
        nv = nl = None
        for k in range(len(vm) - 1, -1, -1):
            d = vm[k].defs
            if d & i.uses or (d & i.defs and not i.isvm()):
                nv = len(vm) - 1 - k; break
        for k in range(len(lg) - 1, -1, -1):
            d = lg[k].defs
            if d & i.uses or (d & i.defs and not (i.isds() and lg[k].isds())):
                nl = len(lg) - 1 - k; break
        if i.op == 's_barrier': nl = 0
        wait(nv, nl)
        if i.op == 's_waitcnt':
            m = re.search(r'vmcnt\((\d+)\)', i.text)
            if m: n = int(m.group(1)); vm = vm[max(0, len(vm) - n):] if n else []
            m = re.search(r'lgkmcnt\((\d+)\)', i.text)
            if m and (int(m.group(1)) == 0 or not any(x.kind == 'smem' for x in lg)):
                n = int(m.group(1)); lg = lg[max(0, len(lg) - n):] if n else []
        emit(i)
        if i.isvm(): vm.append(i)
        if i.isds() or i.kind == 'smem': lg.append(i)
    return out


def text_of(ins):
    return '\n'.join((i.text if i.kind == 'label' else '  ' + i.text) for i in ins) + '\n'
```

```python
import sys
from dsl import *

NAME = "gated_mix__ssm_conv_s4d__dense_activation_squared_relu__prompt"
UT, GG, W2T, A2, HH, WS_SIZE = 0x10000, 0x1D0000, 0x200000, 0x400000, 0x600000, 0xD00000
LOG2E = 0x3fb8aa3b
KREG = 33792
UBASE = 4 * KREG
LDS_MAIN = UBASE + 2 * 8320
SC = "sc1"

X, W1, WS, OUT, W2 = 4, 8, 12, 16, 20
P_LA, P_AI, P_CR, P_CI, P_DT, P_DS, P_B1, P_W2, P_B2, P_GW = 24, 26, 28, 30, 32, 34, 36, 38, 40, 42
sW, sXCD, sJ, sJ7, sJM, sRT, sCT, sP = 3, 44, 45, 46, 47, 48, 49, 50
sX, sWo, sM, sT0, sT1, sT2, sT3, sDT, sDS, sH0, sH1 = 51, 52, 53, 54, 55, 56, 57, 58, 59, 60, 61


def R(b, n=1, f='v'): return f"{f}{b}" if n == 1 else f"{f}[{b}:{b+n-1}]"
def S(b, n): return f"s[{b}:{b+n-1}]"


def prologue(a, limit):
    a(f"""
    s_load_dwordx2 {S(X,2)}, s[0:1], 0
    s_load_dwordx2 {S(W1,2)}, s[0:1], 64
    s_load_dwordx2 {S(WS,2)}, s[0:1], 120
    s_load_dwordx8 {S(P_LA,8)}, s[0:1], 8
    s_load_dwordx4 {S(P_DT,4)}, s[0:1], 40
    s_load_dwordx8 {S(P_B1,8)}, s[0:1], 72
    s_load_dwordx2 {S(OUT,2)}, s[0:1], 104
    s_cmp_ge_u32 s2, {limit}
    s_cbranch_scc1 Lend_{a.name}
    v_lshrrev_b32 v2, 6, v0
    v_and_b32 v1, 63, v0
    s_mov_b32 s{X+2}, {2048*896}
    s_mov_b32 s{X+3}, 0x20000
    v_readfirstlane_b32 s{sW}, v2
    s_mov_b32 s{W1+2}, {448*3584}
    s_mov_b32 s{W1+3}, 0x20000
    s_mov_b32 s{WS+2}, {WS_SIZE}
    s_mov_b32 s{WS+3}, 0x20000
    s_mov_b32 s{OUT+2}, {2048*896}
    s_mov_b32 s{OUT+3}, 0x20000
    """)


def mapping(a):
    a(f"""
    s_and_b32 s{sXCD}, s2, 7
    s_lshr_b32 s{sJ}, s2, 3
    s_mul_i32 s{sJ7}, s{sJ}, 37
    s_lshr_b32 s{sJ7}, s{sJ7}, 8
    s_mul_i32 s{sJM}, s{sJ7}, 7
    s_sub_u32 s{sJM}, s{sJ}, s{sJM}
    """)


def helper(a, hh):
    vD = [2, 3, 4, 5, 6, 7, 8]
    vE, vO, vUT, vL16, vG, vGW = 10, 11, 12, 13, 14, 15
    GP = 7232
    XB = 8 * GP
    for i in range(7):
        a(f"""
        v_add_u32 v9, {64*i}, v1
        v_lshrrev_b32 v9, 3, v9
        v_mul_u32_u24 v9, 37, v9
        v_lshrrev_b32 v9, 8, v9
        v_and_b32 v9, 2, v9
        v_xor_b32 v9, v9, v1
        v_lshlrev_b32 v{vD[i]}, 4, v9
        """)
    a(f"""
    s_mul_i32 s{sT0}, s{hh}, {64*896}
    s_mul_i32 s{sT1}, s{sW}, {16*896}
    s_add_u32 s{sT0}, s{sT0}, s{sT1}
    s_mul_i32 s{sM}, s{sW}, {2*GP}
    s_mov_b32 s{W2}, s{P_W2}
    s_mov_b32 s{W2+1}, s{P_W2+1}
    s_mov_b32 s{W2+2}, {1792*896}
    s_mov_b32 s{W2+3}, 0x20000
    """)
    for task, (srd, base) in enumerate(((W2, 0), (X, XB))):
        for g in range(2):
            for i in range(7):
                if i % 4 == 0:
                    a(f"s_add_u32 m0, s{sM}, {base + g*GP + 1024*i}\ns_add_u32 s{sT1}, s{sT0}, {g*7168 + 1024*i}")
                a(f"buffer_load_dwordx4 v{vD[i]}, {S(srd,4)}, s{sT1} offen offset:{1024*(i%4)} lds", tag=f"t{task}")
    a(f"""
    v_lshrrev_b32 v2, 4, v1
    v_lshlrev_b32 v{vGW}, 4, v2
    """)
    for jj in range(14):
        a(f"global_load_dwordx4 {R(64+4*jj,4)}, v{vGW}, {S(P_GW,2)} offset:{64*jj}")
    a(f"""
    s_and_b32 s{sT1}, s{sW}, 1
    s_lshr_b32 s{sT2}, s{sW}, 1
    s_mul_i32 s{sT3}, s{sT1}, {4*GP}
    s_mul_i32 s{sX}, s{sT2}, {14*32}
    s_add_u32 s{sT3}, s{sT3}, s{sX}
    v_mul_u32_u24 v3, {GP}, v2
    v_bfe_u32 v4, v1, 2, 2
    v_mul_u32_u24 v5, 896, v4
    v_and_b32 v6, 3, v1
    v_lshlrev_b32 v6, 3, v6
    v_add3_u32 v3, v3, v5, v6
    v_add_u32 v3, s{sT3}, v3
    v_and_b32 v4, 2, v4
    v_lshlrev_b32 v4, 4, v4
    v_add_u32 v{vE}, v3, v4
    v_sub_u32 v{vO}, v3, v4
    v_lshlrev_b32 v{vL16}, 4, v1
    v_and_b32 v3, 15, v1
    v_lshlrev_b32 v4, 12, v3
    v_lshl_add_u32 v{vUT}, v2, 4, v4
    v_lshrrev_b32 v4, 3, v3
    v_mul_u32_u24 v4, {GP}, v4
    v_and_b32 v5, 7, v1
    v_mul_u32_u24 v5, 896, v5
    v_and_b32 v6, 2, v1
    v_xor_b32 v6, v6, v2
    v_lshlrev_b32 v6, 4, v6
    v_add3_u32 v4, v4, v5, v6
    v_add_u32 v4, s{sM}, v4
    v_add_u32 v{vG}, {XB}, v4
    s_mul_i32 s{sH0}, s{sT2}, {14*56}
    s_lshl_b32 s{sX}, s{hh}, 1
    s_add_u32 s{sH0}, s{sH0}, s{sX}
    s_add_u32 s{sH0}, s{sH0}, s{sT1}
    s_lshl_b32 s{sH0}, s{sH0}, 10
    s_add_u32 s{sH0}, s{sH0}, {W2T}
    s_mul_i32 s{sH1}, s{sT2}, {14*16*4096}
    s_lshl_b32 s{sX}, s{hh}, 7
    s_add_u32 s{sH1}, s{sH1}, s{sX}
    s_lshl_b32 s{sX}, s{sT1}, 6
    s_add_u32 s{sH1}, s{sH1}, s{sX}
    s_add_u32 s{sH1}, s{sH1}, {UT}
    """)

    def transpose(sreg, step, vaddr):
        for i in range(14):
            for t in range(2):
                a(f"ds_read_b64_tr_b16 {R(128+4*i+2*t,2)}, v{vO if i & 1 else vE} offset:{32*i + 3584*t}")
        for i in range(14):
            a(f"buffer_store_dwordx4 {R(128+4*i,4)}, v{vaddr}, {S(WS,4)}, s{sreg} offen {SC}")
            if i < 13: a(f"s_add_u32 s{sreg}, s{sreg}, {step}")

    a(f"""
    @wait t0
    s_barrier
    s_cmp_ge_u32 s{hh}, 28
    s_cbranch_scc1 Lskipw2_{a.name}
    """)
    transpose(sH0, 56 * 1024, vL16)
    a(f"""
    Lskipw2_{a.name}:
    v_add_u32 v{vE}, {XB}, v{vE}
    v_add_u32 v{vO}, {XB}, v{vO}
    s_waitcnt vmcnt(0)
    s_barrier
    """)
    transpose(sH1, 16 * 4096, vUT)
    for jj in range(14):
        a(f"ds_read_b128 {R(192+4*jj,4)}, v{vG} offset:{64*jj}")
    for jj in range(14):
        a(f"v_mfma_f32_16x16x32_bf16 v[16:19], {R(64+4*jj,4)}, {R(192+4*jj,4)}, {'0' if jj == 0 else 'v[16:19]'}")
    a(f"""
    s_lshl_b32 s{sT0}, s{hh}, 8
    s_lshl_b32 s{sT1}, s{sW}, 6
    s_add_u32 s{sT0}, s{sT0}, s{sT1}
    s_add_u32 s{sT0}, s{sT0}, {GG}
    v_lshlrev_b32 v3, 2, v1
    v_mul_f32 v2, {LOG2E | 0x80000000}, v16
    v_exp_f32 v2, v2
    v_add_f32 v2, 1.0, v2
    v_rcp_f32 v2, v2
    s_mov_b64 exec, 0xffff
    buffer_store_dword v2, v3, {S(WS,4)}, s{sT0} offen {SC}
    s_mov_b64 exec, -1
    """)


vXa, vWa, vA, vB, vL16 = 2, 6, 10, 12, 16
vKI = 20
ACC1, BIAS, FR = 64, 128, 160


def g1_setup(a):
    a(f"""
    s_lshr_b32 s{sRT}, s{sXCD}, 1
    s_lshl_b32 s{sRT}, s{sRT}, 2
    s_add_u32 s{sRT}, s{sRT}, s{sJ7}
    s_and_b32 s{sCT}, s{sXCD}, 1
    s_mul_i32 s{sCT}, s{sCT}, 7
    s_add_u32 s{sCT}, s{sCT}, s{sJM}
    s_lshl_b32 s{sX}, s{sRT}, 2
    s_add_u32 s{sX}, s{sX}, s{sW}
    s_mul_i32 s{sX}, s{sX}, {32*896}
    s_mul_i32 s{sWo}, s{sW}, {16*3584}
    s_lshl_b32 s{sT0}, s{sCT}, 8
    s_add_u32 s{sWo}, s{sWo}, s{sT0}
    s_lshl_b32 s{sM}, s{sW}, 12
    v_lshrrev_b32 v17, 3, v1
    v_lshrrev_b32 v18, 4, v1
    v_mul_u32_u24 v17, 896, v17
    v_and_b32 v19, 7, v1
    v_xor_b32 v19, v19, v18
    v_lshl_add_u32 v{vXa}, v19, 4, v17
    v_xor_b32 v17, 64, v{vXa}
    v_add_u32 v{vXa+1}, 6144, v17
    v_add_u32 v{vXa+2}, 12288, v{vXa}
    v_add_u32 v{vXa+3}, {6144+12288}, v17
    v_mul_u32_u24 v17, 3584, v18
    v_lshlrev_b32 v18, 2, v18
    v_xor_b32 v18, v18, v1
    v_and_b32 v18, 15, v18
    v_lshl_add_u32 v{vWa}, v18, 4, v17
    v_add_u32 v{vWa+1}, 13312, v{vWa}
    v_add_u32 v{vWa+2}, {2*13312}, v{vWa}
    v_add_u32 v{vWa+3}, {3*13312}, v{vWa}
    """)


def g1_dma(c):
    a = Asm()
    slot = c % 3
    a(f"s_add_u32 m0, s{sM}, {slot*16384}")
    if c: a(f"s_add_u32 s{sX}, s{sX}, 128")
    for i in range(4):
        a(f"buffer_load_dwordx4 v{vXa+i}, {S(X,4)}, s{sX} offen offset:{1024*i} lds", tag=f"c{c}")
    a(f"s_add_u32 m0, s{sM}, {49152 + slot*16384}")
    if c: a(f"s_add_u32 s{sWo}, s{sWo}, {64*3584}")
    for i in range(4):
        a(f"buffer_load_dwordx4 v{vWa+i}, {S(W1,4)}, s{sWo} offen offset:{1024*i} lds", tag=f"c{c}")
    return a.ins


def g1_setup2(a):
    a(f"""
    s_lshr_b32 s{sT0}, s{sW}, 1
    s_and_b32 s{sT1}, s{sW}, 1
    s_mul_i32 s{sP}, s{sXCD}, 28
    s_add_u32 s{sP}, s{sP}, s{sJ}
    v_lshrrev_b32 v17, 5, v1
    s_lshl_b32 s{sT2}, s{sCT}, 1
    s_add_u32 s{sT2}, s{sT2}, s{sT0}
    s_lshl_b32 s{sT2}, s{sT2}, 7
    v_lshl_add_u32 v18, v17, 5, s{sT2}
    global_load_dwordx4 {R(FR,4)}, v18, {S(P_B1,2)}
    global_load_dwordx4 {R(FR+4,4)}, v18, {S(P_B1,2)} offset:16
    global_load_dwordx4 {R(FR+8,4)}, v18, {S(P_B1,2)} offset:64
    global_load_dwordx4 {R(FR+12,4)}, v18, {S(P_B1,2)} offset:80
    s_lshl_b32 s{sT2}, s{sP}, 2
    s_load_dword s{sDT}, {S(P_DT,2)}, s{sT2}
    s_load_dword s{sDS}, {S(P_DS,2)}, s{sT2}
    s_add_u32 s{sT2}, s{sT2}, s{sW}
    s_lshl_b32 s{sT2}, s{sT2}, 8
    v_lshl_add_u32 v18, v1, 2, s{sT2}
    global_load_dword v{vKI}, v18, {S(P_LA,2)}
    global_load_dword v{vKI+1}, v18, {S(P_AI,2)}
    global_load_dword v{vKI+2}, v18, {S(P_CR,2)}
    global_load_dword v{vKI+3}, v18, {S(P_CI,2)}
    v_bfe_u32 v18, v1, 2, 2
    v_lshl_add_u32 v19, v17, 3, v18
    v_lshlrev_b32 v19, 8, v19
    s_lshl_b32 s{sT2}, s{sT0}, 1
    v_xor_b32 v18, s{sT2}, v18
    v_lshl_add_u32 v19, v18, 6, v19
    v_and_b32 v18, 1, v1
    v_lshl_add_u32 v19, v18, 5, v19
    v_and_b32 v18, 16, v1
    v_add_u32 v19, v18, v19
    v_and_b32 v18, 2, v1
    v_lshl_add_u32 v19, v18, 2, v19
    v_add_u32 v{vA}, 49152, v19
    v_xor_b32 v{vA+1}, 64, v{vA}
    v_and_b32 v18, 31, v1
    v_lshlrev_b32 v18, 7, v18
    v_bfe_u32 v19, v1, 1, 3
    v_xor_b32 v19, v19, v17
    v_lshl_add_u32 v18, v19, 4, v18
    s_lshl_b32 s{sT2}, s{sT1}, 13
    v_add_u32 v{vB}, s{sT2}, v18
    v_xor_b32 v{vB+1}, 32, v{vB}
    v_xor_b32 v{vB+2}, 64, v{vB}
    v_xor_b32 v{vB+3}, 96, v{vB}
    v_lshlrev_b32 v{vL16}, 4, v1
    s_lshl_b32 s{sH0}, s{sRT}, 1
    s_add_u32 s{sH0}, s{sH0}, s{sT1}
    s_mul_i32 s{sH0}, s{sH0}, 224
    s_lshl_b32 s{sT2}, s{sCT}, 1
    s_add_u32 s{sT2}, s{sT2}, s{sT0}
    s_lshl_b32 s{sT2}, s{sT2}, 2
    s_add_u32 s{sH0}, s{sH0}, s{sT2}
    s_lshl_b32 s{sH0}, s{sH0}, 10
    s_add_u32 s{sH0}, s{sH0}, {HH}
    s_add_u32 s{sH1}, s{sH0}, {112*1024}
    """)
    for k in range(16):
        a(f"v_lshlrev_b32 v{BIAS+2*k}, 16, v{FR+k}\nv_and_b32 v{BIAS+2*k+1}, 0xffff0000, v{FR+k}")


def g1_reads(t):
    c, s = divmod(t, 4)
    slot = c % 3
    b = FR + 16 * (t & 1)
    A = lambda tf: [Ins(f"ds_read_b64_tr_b16 {R(b+4*tf+2*h,2)}, v{vA+tf} offset:{slot*16384 + (16*s+4*h)*256}") for h in range(2)]
    B = lambda tl: [Ins(f"ds_read_b128 {R(b+8+4*tl,4)}, v{vB+s} offset:{slot*16384 + 4096*tl}")]
    return A(0) + B(0) + B(1) + A(1)


def gemm1(a):
    a("@wait c0\ns_barrier")
    a.add(g1_reads(0))
    for t in range(28):
        c, s = divmod(t, 4)
        b = FR + 16 * (t & 1)
        mf = []
        for tf in range(2):
            for tl in range(2):
                d = R(ACC1 + 32*tf + 16*tl, 16)
                mf.append(Ins(f"v_mfma_f32_32x32x16_bf16 {d}, {R(b+4*tf,4)}, {R(b+8+4*tl,4)}, {R(BIAS+16*tf,16) if t == 0 else d}"))
        rd = g1_reads(t + 1) if t < 27 else []
        dma = []
        if s == 3 and c < 6:
            a("@lgkm0")
            a.add(mf[:1])
            a(f"@wait c{c+1}\ns_barrier")
            if c + 3 < 7: dma = g1_dma(c + 3)
        else:
            a.add(mf[:1])
        a.add(rd[:3]); a.add(mf[1:2]); a.add(rd[3:]); a.add(mf[2:3]); a.add(dma[:6]); a.add(mf[3:4]); a.add(dma[6:])


def g1_epilogue(a):
    for tf in range(2):
        for tl in range(2):
            d = ACC1 + 32*tf + 16*tl
            o = FR + 16*tf + 8*tl
            for r in range(16): a(f"v_max_f32 v{d+r}, 0, v{d+r}")
            for r in range(0, 16, 2): a(f"v_pk_mul_f32 {R(d+r,2)}, {R(d+r,2)}, {R(d+r,2)}")
            for r in range(0, 16, 2): a(f"v_cvt_pk_bf16_f32 v{o+r//2}, v{d+r}, v{d+r+1}")
            for s in range(2):
                a(f"buffer_store_dwordx4 {R(o+4*s,4)}, v{vL16}, {S(WS,4)}, s{sH1 if tl else sH0} offen offset:{(2*tf+s)*1024} {SC}", tag="hst")


UL = 24


def u_load(a):
    a(f"""
    s_lshl_b32 s{sT2}, s{sP}, 2
    s_add_u32 s{sT2}, s{sT2}, s{sW}
    s_lshl_b32 s{sT2}, s{sT2}, 11
    s_add_u32 s{sT2}, s{sT2}, {UT}
    s_sub_u32 s{sT3}, s{sT2}, 4
    """)
    for i in range(2):
        a(f"buffer_load_dwordx4 {R(UL+4*i,4)}, v{vL16}, {S(WS,4)}, s{sT2} offen offset:{1024*i} {SC}")
        a(f"buffer_load_dword v{UL+8+i}, v{vL16}, {S(WS,4)}, s{sT3} offen offset:{1024*i} {SC}")


def u_stage(a):
    T = UL + 12
    a(f"""
    s_lshr_b32 s{sT0}, s{sW}, 1
    s_and_b32 s{sT1}, s{sW}, 1
    s_mul_i32 s{sT2}, s{sT0}, 8320
    s_lshl_b32 s{sT3}, s{sT1}, 11
    s_add_u32 s{sT3}, s{sT3}, s{sT2}
    s_add_u32 s{sT3}, s{sT3}, {UBASE + 32}
    v_add_u32 v2, s{sT3}, v{vL16}
    v_or_b32 v3, s{sT1}, v1
    v_cmp_eq_u32 vcc, 0, v3
    v_cndmask_b32 v{UL+8}, v{UL+8}, v3, vcc
    """)
    for i in range(2):
        d = UL + 4*i
        a(f"ds_write_b128 v2, {R(d,4)} offset:{1024*i}")
        a(f"v_alignbit_b32 v{T+4*i}, v{d}, v{UL+8+i}, 16")
        for k in range(1, 4): a(f"v_alignbit_b32 v{T+4*i+k}, v{d+k}, v{d+k-1}, 16")
        a(f"ds_write_b128 v2, {R(T+4*i,4)} offset:{4160 + 1024*i}")
    a(f"""
    s_mul_i32 s{sT3}, s{sW}, 4160
    s_add_u32 s{sT3}, s{sT3}, {UBASE}
    v_and_b32 v3, 7, v1
    v_lshl_add_u32 v3, v3, 2, s{sT3}
    v_mov_b32 v4, 0
    ds_write_b32 v3, v4
    """)


def kgen(a):
    E1, E2, E4, E8, E256, CC, SS, TT, TM = (64 + 4*i for i in range(9))
    WR = 104
    vK, vKA, vKB, vR = 2, 3, 4, 5
    cnt = [0]

    def cmul(d, x, y):
        for n in range(2):
            a(f"v_pk_mul_f32 {R(TM+2*n,2)}, {R(x+2*n,2)}, {R(y+2*n,2)} op_sel:[0,0] op_sel_hi:[0,1]")
        for n in range(2):
            a(f"v_pk_fma_f32 {R(d+2*n,2)}, {R(x+2*n,2)}, {R(y+2*n,2)}, {R(TM+2*n,2)} op_sel:[1,1,0] op_sel_hi:[1,0,1] neg_lo:[1,0,0]")

    def put(row, x, neg):
        w = WR + 2 * (cnt[0] & 3); cnt[0] += 1
        for n in range(2):
            a(f"v_cvt_pk_bf16_f32 v{w+n}, v{x+2*n}, {'-' if neg else ''}v{x+2*n+1}")
        a(f"ds_write_b64 v{vK}, {R(w,2)} offset:{row*528}")

    ER, ZI, DT = 112, 114, 116
    a(f"""
    s_lshr_b32 s{sT0}, s{sW}, 1
    s_lshl_b32 s{sT0}, s{sT0}, 4
    s_lshr_b32 s{sDT}, s{sDT}, s{sT0}
    s_lshl_b32 s{sDT}, s{sDT}, 16
    s_lshr_b32 s{sDS}, s{sDS}, s{sT0}
    s_lshl_b32 s{sDS}, s{sDS}, 16
    s_mul_i32 s{sT1}, s{sW}, {KREG}
    v_lshl_add_u32 v{vK}, v1, 3, s{sT1}
    v_mov_b32 v{DT}, {LOG2E}
    v_mul_f32 v{DT}, s{sDT}, v{DT}
    v_exp_f32 v{DT}, v{DT}
    v_lshlrev_b32 v{ER}, 16, v{vKI}
    v_and_b32 v{ER+1}, 0xffff0000, v{vKI}
    v_cvt_pk_bf16_f32 v{DT}, v{DT}, v{DT}
    v_mul_f32 v{ER}, {LOG2E}, v{ER}
    v_mul_f32 v{ER+1}, {LOG2E}, v{ER+1}
    v_exp_f32 v{ER}, v{ER}
    v_exp_f32 v{ER+1}, v{ER+1}
    v_lshlrev_b32 v{DT}, 16, v{DT}
    v_lshlrev_b32 v{ZI}, 16, v{vKI+1}
    v_and_b32 v{ZI+1}, 0xffff0000, v{vKI+1}
    v_cvt_pk_bf16_f32 v{ER+1}, v{ER}, v{ER+1}
    v_mul_f32 v{ZI}, v{ZI}, v{DT}
    v_mul_f32 v{ZI+1}, v{ZI+1}, v{DT}
    v_lshlrev_b32 v{ER}, 16, v{ER+1}
    v_and_b32 v{ER+1}, 0xffff0000, v{ER+1}
    v_mul_f32 v{ZI}, 0.15915494, v{ZI}
    v_mul_f32 v{ZI+1}, 0.15915494, v{ZI+1}
    v_mul_f32 v{ER}, v{ER}, v{DT}
    v_mul_f32 v{ER+1}, v{ER+1}, v{DT}
    v_mul_f32 v{ER}, {LOG2E | 0x80000000}, v{ER}
    v_mul_f32 v{ER+1}, {LOG2E | 0x80000000}, v{ER+1}
    v_add_f32 v{DT}, v{DT}, v{DT}
    v_lshlrev_b32 v{CC}, 16, v{vKI+2}
    v_lshlrev_b32 v{CC+1}, 16, v{vKI+3}
    v_and_b32 v{CC+2}, 0xffff0000, v{vKI+2}
    v_and_b32 v{CC+3}, 0xffff0000, v{vKI+3}
    v_pk_mul_f32 {R(CC,2)}, {R(CC,2)}, {R(DT,2)} op_sel_hi:[1,0]
    v_pk_mul_f32 {R(CC+2,2)}, {R(CC+2,2)}, {R(DT,2)} op_sel_hi:[1,0]
    """)
    for E, p in ((E8, 0x41000000), (E1, None), (E256, 0x43800000)):
        for n in range(2):
            if p:
                a(f"v_mul_f32 v{TM+2*n}, {p}, v{ER+n}\nv_mul_f32 v{TM+2*n+1}, {p}, v{ZI+n}")
                a(f"v_exp_f32 v{TM+2*n}, v{TM+2*n}\nv_fract_f32 v{TM+2*n+1}, v{TM+2*n+1}")
            else:
                a(f"v_exp_f32 v{TM+2*n}, v{ER+n}\nv_fract_f32 v{TM+2*n+1}, v{ZI+n}")
            a(f"v_cos_f32 v{E+2*n}, v{TM+2*n+1}\nv_sin_f32 v{E+2*n+1}, v{TM+2*n+1}")
        for n in range(2):
            a(f"v_pk_mul_f32 {R(E+2*n,2)}, {R(E+2*n,2)}, {R(TM+2*n,2)} op_sel_hi:[1,0]")
    a(f"v_mov_b32 v{WR+6}, 0x3f80\nv_mov_b32 v{WR+7}, 0x3f80\nds_write_b64 v{vK}, {R(WR+6,2)} offset:{32*528}")
    put(33, E8, False)
    cmul(SS, E8, E8); put(34, SS, False)
    for b in range(3, 32):
        cmul(SS, SS, E8); put(32 + b, SS, False)
    put(0, CC, True)
    cmul(SS, CC, E1); put(1, SS, True)
    for r in range(2, 8):
        cmul(SS, SS, E1); put(r, SS, True)
    cmul(E2, E1, E1); cmul(E4, E2, E2)
    cmul(TT, CC, E256); put(8, TT, True)
    cmul(SS, TT, E2); put(9, SS, True)
    for r in (10, 13, 14):
        cmul(SS, SS, E2); put(r, SS, True)
    for r in (16, 20):
        cmul(TT, TT, E256); put(r, TT, True)
        cmul(SS, TT, E4); put(r + 1, SS, True)
        cmul(SS, SS, E4); put(r + 2, SS, True)
    for r in (24, 26, 28, 30):
        cmul(TT, TT, E256); put(r, TT, True)
        cmul(SS, TT, E8); put(r + 1, SS, True)
    a(f"""
    v_and_b32 v6, 31, v1
    v_lshrrev_b32 v7, 5, v1
    v_mul_u32_u24 v8, 528, v6
    v_lshl_add_u32 v8, v7, 4, v8
    v_add_u32 v{vKB}, s{sT1}, v8
    v_cmp_eq_u32 vcc, 12, v6
    v_subrev_u32 v8, {2*528}, v{vKB}
    v_cndmask_b32 v{vKA}, v{vKB}, v8, vcc
    """)
    D, FA, FB = 64, 128, 192
    for s in range(16):
        a(f"ds_read_b128 {R(FA+4*s,4)}, v{vKA} offset:{32*s}")
        a(f"ds_read_b128 {R(FB+4*s,4)}, v{vKB} offset:{32*528 + 32*s}")
        if s >= 2:
            k = s - 2
            a(f"v_mfma_f32_32x32x16_bf16 {R(D,16)}, {R(FA+4*k,4)}, {R(FB+4*k,4)}, {'0' if k == 0 else R(D,16)}")
    for k in (14, 15):
        a(f"v_mfma_f32_32x32x16_bf16 {R(D,16)}, {R(FA+4*k,4)}, {R(FB+4*k,4)}, {R(D,16)}")
    a(f"""
    v_add_u32 v8, s{sT1}, v{vL16}
    s_xor_b32 s{sT2}, s{sW}, 1
    s_mul_i32 s{sT2}, s{sT2}, {KREG}
    v_add_u32 v9, s{sT2}, v{vL16}
    v_mov_b32 v100, 0
    v_mov_b32 v101, 0
    v_mov_b32 v102, 0
    v_mov_b32 v103, 0
    v_cmp_eq_u32 vcc, 0, v1
    v_mov_b32 v10, s{sDS}
    v_lshlrev_b32 v11, 4, v6
    v_cndmask_b32 v10, 0, v10, vcc
    v_sub_u32 v11, s{sT1}, v11
    v_and_b32 v6, 1, v1
    v_cmp_eq_u32 vcc, 1, v6
    """)
    for q in range(4): a(f"ds_write_b128 v8, {R(D+4*q,4)} offset:{8192 + 1024*q}")
    a(f"ds_write_b128 v8, v[100:103] offset:4096")
    a("s_barrier")
    for q in range(4): a(f"ds_read_b128 {R(80+4*q,4)}, v9 offset:{8192 + 1024*q}")
    a(f"""
    v_lshlrev_b32 v6, 3, v7
    v_sub_u32 v12, v11, v6
    v_lshlrev_b32 v6, 9, v7
    v_sub_u32 v13, v11, v6
    v_sub_u32 v14, v13, v6
    v_add_u32 v12, 3576, v12
    v_add_u32 v13, 3056, v13
    v_add_u32 v14, 1520, v14
    v_add_f32 v{D}, v{D}, v10
    """)
    for k in range(0, 16, 2): a(f"v_pk_add_f32 {R(D+k,2)}, {R(D+k,2)}, {R(80+k,2)}")
    O = 96
    cv = lambda o, x, y: a(f"v_cvt_pk_bf16_f32 v{o}, v{x}, v{y}")
    cv(O, D+3, D+2); cv(O+1, D+1, D); a(f"ds_write_b64 v12, {R(O,2)} offset:512")
    cv(O+2, D+6, D+5); cv(O+3, D+4, D+4); a(f"ds_write_b64 v12, {R(O+2,2)}")
    cv(O+4, D+10, D+10); cv(O+5, D+9, D+9); cv(O+6, D+9, D+8); cv(O+7, D+8, D+8); a(f"ds_write_b128 v13, {R(O+4,4)}")
    for t in range(2):
        e0, e1, o = D+12+2*t, D+13+2*t, O+8+4*t
        a(f"v_cndmask_b32 v6, v{e0}, v{e1}, vcc")
        cv(o, e1, e1); cv(o+1, e1, 6); cv(o+2, e0, e0); cv(o+3, e0, e0)
        a(f"ds_write_b128 v14, {R(o,4)} offset:{512*(1-t)}")


def conv(a):
    vU, vKf = 2, 6
    ACC, F = 32, 64
    a(f"""
    s_lshr_b32 s{sT0}, s{sW}, 1
    s_and_b32 s{sT2}, s{sW}, 1
    s_mul_i32 s{sT0}, s{sT0}, 8320
    s_lshl_b32 s{sT2}, s{sT2}, 8
    s_sub_u32 s{sT0}, s{sT0}, s{sT2}
    s_add_u32 s{sT0}, s{sT0}, {UBASE + 4160 + 4*65}
    v_lshrrev_b32 v7, 4, v1
    v_bfe_u32 v8, v1, 1, 3
    v_lshlrev_b32 v8, 2, v8
    v_lshl_add_u32 v8, v7, 4, v8
    v_and_b32 v9, 1, v1
    v_mul_u32_u24 v9, 4160, v9
    v_sub_u32 v8, v8, v9
    v_add_u32 v{vU}, s{sT0}, v8
    v_add_u32 v{vU+1}, 1024, v{vU}
    v_add_u32 v{vU+2}, 2048, v{vU}
    v_add_u32 v{vU+3}, 3072, v{vU}
    s_sub_u32 s{sT0}, s{sT1}, s{sT2}
    s_add_u32 s{sT0}, s{sT0}, {4512 - 3584 - 192}
    v_and_b32 v8, 15, v1
    v_lshlrev_b32 v8, 5, v8
    v_lshlrev_b32 v9, 4, v7
    v_sub_u32 v8, v9, v8
    v_add_u32 v{vKf}, s{sT0}, v8
    """)

    def reads(r):
        b = F + 64 * (r & 1)
        out = []
        for i in range(8):
            o = 128 * (i & 1) + 16 * (3 - r)
            out.append(Ins(f"ds_read_b128 {R(b+32+4*i,4)}, v{vKf} offset:{512*(7-i) + 64*(3-r)}"))
            out.append(Ins(f"ds_read2_b32 {R(b+4*i,2)}, v{vU+(i>>1)} offset0:{o} offset1:{o+1}"))
            out.append(Ins(f"ds_read2_b32 {R(b+4*i+2,2)}, v{vU+(i>>1)} offset0:{o+2} offset1:{o+3}"))
        return out

    order = sorted(((t, d) for t in range(8) for d in range(8) if t + d < 8), key=lambda x: (max(x), x[0] + x[1], x[0]))
    a.add(reads(0))
    for r in range(4):
        b = F + 64 * (r & 1)
        rd = reads(r + 1) if r < 3 else []
        seen = set()
        for k, (t, d) in enumerate(order):
            c = t + d
            acc = R(ACC + 4*c, 4)
            first = r == 0 and c not in seen
            seen.add(c)
            a(f"v_mfma_f32_16x16x32_bf16 {acc}, {R(b+4*d,4)}, {R(b+32+4*t,4)}, {'0' if first else acc}")
            if k >= 10 and rd: a.add([rd.pop(0)])
    a(f"""
    v_add_u32 v8, s{sT1}, v{vL16}
    s_lshl_b32 s{sT0}, s{sW}, 11
    v_add_u32 v9, s{sT0}, v{vL16}
    v_add_u32 v10, {2*KREG}, v9
    v_and_b32 v11, 15, v1
    v_lshlrev_b32 v11, 6, v11
    v_lshl_add_u32 v11, v7, 4, v11
    s_lshl_b32 s{sT2}, s{sP}, 13
    s_add_u32 s{sT2}, s{sT2}, s{sT0}
    s_add_u32 s{sT2}, s{sT2}, {A2}
    """)
    for c in range(8): a(f"ds_write_b128 v8, {R(ACC+4*c,4)} offset:{16384 + 1024*c}")
    a("s_barrier")
    for i in range(2):
        for w in range(4):
            a(f"ds_read_b128 {R(F+16*i+4*w,4)}, v{9 + (w>>1)} offset:{16384 + KREG*(w&1) + 1024*i}")
    for i in range(2):
        b = F + 16*i
        for k in (0, 2, 8, 10): a(f"v_pk_add_f32 {R(b+k,2)}, {R(b+k,2)}, {R(b+k+4,2)}")
        for k in range(4): a(f"v_cvt_pk_bf16_f32 v{b+4+k}, v{b+k}, v{b+8+k}")
        a(f"buffer_store_dwordx4 {R(b+4,4)}, v11, {S(WS,4)}, s{sT2} offen offset:{1024*i} {SC}", tag="ast")


def w2_load(a):
    a(f"""
    s_mul_i32 s{sT0}, s{sJM}, {4*56}
    s_mul_i32 s{sT1}, s{sW}, 14
    s_add_u32 s{sT0}, s{sT0}, s{sT1}
    s_lshl_b32 s{sT0}, s{sT0}, 10
    s_add_u32 s{sT0}, s{sT0}, {W2T}
    v_bfe_u32 v17, v1, 4, 1
    v_mul_u32_u24 v17, {56*1024}, v17
    v_lshrrev_b32 v18, 5, v1
    v_lshl_add_u32 v17, v18, 9, v17
    v_and_b32 v18, 3, v1
    v_lshl_add_u32 v17, v18, 4, v17
    v_and_b32 v18, 4, v1
    v_lshl_add_u32 v17, v18, 5, v17
    v_and_b32 v18, 8, v1
    v_lshl_add_u32 v17, v18, 3, v17
    v_add_u32 v18, {112*1024}, v17
    """)
    for fb in range(14):
        if fb and fb % 4 == 0: a(f"s_add_u32 s{sT0}, s{sT0}, 4096")
        for s in range(2):
            for td in range(2):
                a(f"buffer_load_dwordx4 {R(8*(2*fb+s)+4*td,4,'a')}, v{17+td}, {S(WS,4)}, s{sT0} offen offset:{1024*(fb%4) + 256*s} {SC}")


def gemm2(a):
    ACC, HB, NB = 32, 128, 32
    AV, GV, BV, B2, PT = 20, 28, 96, 12, 96
    vA2, vO, vX = 2, 3, 4
    a(f"""
    s_lshl_b32 s{sRT}, s{sXCD}, 2
    s_add_u32 s{sRT}, s{sRT}, s{sJ7}
    s_mul_i32 s{sH0}, s{sRT}, 224
    s_mul_i32 s{sT1}, s{sW}, 28
    s_add_u32 s{sH0}, s{sH0}, s{sT1}
    s_lshl_b32 s{sH0}, s{sH0}, 10
    s_add_u32 s{sH0}, s{sH0}, {HH}
    """)

    def hload(i):
        out = Asm()
        tl, k = divmod(i, 28)
        if i and k % 4 == 0: out(f"s_add_u32 s{sH0}, s{sH0}, {4096 if k else (112-24)*1024}")
        out(f"buffer_load_dwordx4 {R(HB+4*(i%NB),4)}, v{vL16}, {S(WS,4)}, s{sH0} offen offset:{1024*(k%4)} {SC}")
        return out.ins

    PRE = 24
    for i in range(PRE): a.add(hload(i))
    a(f"""
    v_and_b32 v5, 31, v1
    v_lshrrev_b32 v6, 5, v1
    s_lshl_b32 s{sT0}, s{sJM}, 2
    s_add_u32 s{sT0}, s{sT0}, s{sW}
    s_lshl_b32 s{sT1}, s{sT0}, 5
    v_lshl_add_u32 v7, v6, 4, s{sT1}
    global_load_dwordx4 {R(8,4)}, v7, {S(P_B2,2)}
    v_mul_u32_u24 v{vO}, 896, v5
    v_add_u32 v{vO}, v{vO}, v7
    s_mul_i32 s{sH1}, s{sRT}, {64*896}
    v_lshlrev_b32 v5, 2, v5
    v_lshl_add_u32 v{vA2}, v6, 15, v5
    s_lshl_b32 s{sT0}, s{sT0}, 16
    s_lshl_b32 s{sT1}, s{sRT}, 8
    s_add_u32 s{sT0}, s{sT0}, s{sT1}
    s_add_u32 s{sT0}, s{sT0}, {A2}
    s_add_u32 s{sT1}, s{sT1}, {GG}
    s_lshl_b32 s{sT2}, s{sW}, 13
    v_add_u32 v{vX}, s{sT2}, v{vL16}
    s_lshl_b32 s{sT2}, s{sW}, 11
    v_add_u32 v{vX+2}, s{sT2}, v{vL16}
    """)
    for tl in range(2):
        a(f"buffer_load_dword v{GV+2*tl}, v5, {S(WS,4)}, s{sT1} offen offset:{128*tl} {SC}")
    for i in range(4):
        for tl in range(2):
            a(f"buffer_load_dword v{AV+4*tl+i}, v{vA2}, {S(WS,4)}, s{sT0} offen offset:{128*tl} {SC}")
        if i < 3: a(f"s_add_u32 s{sT0}, s{sT0}, 8192")

    def finish(tl):
        o = Asm()
        for td in range(2):
            for q in range(4):
                o(f"ds_write_b128 v{vX}, {R(ACC+32*tl+16*td+4*q,4)} offset:{32768*tl + 1024*(4*td+q)}")
        o("s_barrier")
        for w in range(4):
            for q in range(2):
                o(f"ds_read_b128 {R(PT+8*w+4*q,4)}, v{vX+2} offset:{32768*tl + 8192*w + 1024*q}")
        if tl == 0:
            for k in range(4): o(f"v_lshlrev_b32 v{B2+2*k}, 16, v{8+k}\nv_and_b32 v{B2+2*k+1}, 0xffff0000, v{8+k}")
        U = ACC + 32*tl
        for k in range(4): o(f"v_lshlrev_b32 v{U+2*k}, 16, v{AV+4*tl+k}\nv_and_b32 v{U+2*k+1}, 0xffff0000, v{AV+4*tl+k}")
        for k in range(0, 8, 2): o(f"v_pk_add_f32 {R(PT+k,2)}, {R(PT+k,2)}, {R(B2+k,2)}")
        for w in range(1, 4):
            for k in range(0, 8, 2): o(f"v_pk_add_f32 {R(PT+k,2)}, {R(PT+k,2)}, {R(PT+8*w+k,2)}")
        for k in range(0, 8, 2): o(f"v_pk_add_f32 {R(U+k,2)}, {R(U+k,2)}, {R(PT+k,2)} neg_lo:[0,1] neg_hi:[0,1]")
        for k in range(0, 8, 2): o(f"v_pk_fma_f32 {R(U+k,2)}, {R(U+k,2)}, {R(GV+2*tl,2)}, {R(PT+k,2)} op_sel_hi:[1,0,1]")
        for k in range(4): o(f"v_cvt_pk_bf16_f32 v{U+8+k}, v{U+2*k}, v{U+2*k+1}")
        if tl: o(f"s_add_u32 s{sH1}, s{sH1}, {32*896}")
        o(f"buffer_store_dwordx4 {R(U+8,4)}, v{vO}, {S(OUT,4)}, s{sH1} offen")
        return o.ins

    fin = finish(0)
    for i in range(56):
        tl, k = divmod(i, 28)
        for td in range(2):
            acc = R(ACC + 32*tl + 16*td, 16)
            a(f"v_mfma_f32_32x32x16_bf16 {acc}, {R(8*k+4*td,4,'a')}, {R(HB+4*(i%NB),4)}, {'0' if k == 0 else acc}")
            if td == 0 and i + PRE < 56: a.add(hload(i + PRE))
            if tl == 1 and k >= 4:
                for _ in range(2):
                    if fin: a.add([fin.pop(0)])
    a.add(fin)
    a.add(finish(1))


def kernel(name, body, vg=512):
    t = f".globl {name}\n.p2align 8\n.type {name},@function\n{name}:\n" + text_of(finalize(body.ins)) + f"Lend_{body.name}:\n  s_endpgm\n"
    d = f""".p2align 6
.amdhsa_kernel {name}
  .amdhsa_next_free_vgpr {vg}
  .amdhsa_next_free_sgpr 102
  .amdhsa_accum_offset 256
  .amdhsa_group_segment_fixed_size 0
  .amdhsa_kernarg_size 128
  .amdhsa_user_sgpr_count 2
  .amdhsa_user_sgpr_kernarg_segment_ptr 1
  .amdhsa_system_sgpr_workgroup_id_x 1
.end_amdhsa_kernel
"""
    return t, d


def build_list():
    k0 = Asm(); k0.name = "k0"
    prologue(k0, 32); helper(k0, 2)
    k1 = Asm(); k1.name = "k1"
    prologue(k1, 224); mapping(k1); g1_setup(k1)
    for c in range(3): k1.add(g1_dma(c))
    g1_setup2(k1); gemm1(k1); u_load(k1); g1_epilogue(k1)
    k1("s_barrier")
    u_stage(k1); kgen(k1); conv(k1)
    k2 = Asm(); k2.name = "k2"
    prologue(k2, 224); mapping(k2)
    k2(f"v_lshlrev_b32 v{vL16}, 4, v1")
    w2_load(k2); k2("@vm0"); gemm2(k2)
    ks = [("pre_kernel", k0, 32, 16 * 7232), ("mid_kernel", k1, 224, LDS_MAIN), (NAME + "_kernel", k2, 224, 65536)]
    hdr = "".join(f"; @launch kernel={n} grid=({g},1,1) block=(256,1,1) lds={l}\n" for n, _, g, l in ks)
    txt = [kernel(n, b) for n, b, _, _ in ks]
    return hdr + '.amdgcn_target "amdgcn-amd-amdhsa--gfx950"\n.text\n' + "".join(t for t, _ in txt) + '.section .rodata,"a"\n' + "".join(d for _, d in txt)


if __name__ == "__main__":
    out = sys.argv[1] if len(sys.argv) > 1 else f"cdna_kernels/{NAME}.s"
    open(out, "w").write(build_list())
```

```python
import re

REG = re.compile(r'(?<![\w.])([vas])(\d+)(?![\w\[])|(?<![\w.])([vas])\[(\d+):(\d+)\]|(?<![\w.])(vcc|exec|m0)(?:_lo|_hi)?(?![\w])')
TRANS = ('v_exp_f32', 'v_log_f32', 'v_rcp_f32', 'v_rsq_f32', 'v_sqrt_f32', 'v_sin_f32', 'v_cos_f32')


def regs_of(text):
    out = []
    for m in REG.finditer(text):
        if m.group(1):
            out.append([(m.group(1), int(m.group(2)))])
        elif m.group(3):
            out.append([(m.group(3), i) for i in range(int(m.group(4)), int(m.group(5)) + 1)])
        else:
            out.append([(m.group(6), 0)])
    return out


class Ins:
    def __init__(self, text, tag=None):
        self.text = text
        self.tag = tag
        self.defs = set()
        self.uses = set()
        self.kind = None
        self.passes = 0
        self.srcC = set()
        self.srcAB = set()
        self.states = 1
        t = text.split(None, 1)
        op = self.op = t[0]
        rest = t[1] if len(t) > 1 else ''
        if op.endswith(':') or op.startswith('.'):
            self.kind = 'label'; self.states = 0; return
        if op.startswith('!'):
            self.text = text[1:]; self.kind = 'label'; self.states = 0; return
        if op.startswith('@'):
            self.kind = 'pseudo'; self.states = 0; self.arg = rest.strip(); return
        r = regs_of(rest)
        flat = lambda l: set(x for g in l for x in g)
        if op == 's_nop':
            self.kind = 'nop'; self.states = int(rest) + 1
        elif op in ('s_waitcnt', 's_barrier', 's_endpgm', 's_sleep', 's_setprio') or op.startswith('s_cbranch') or op == 's_branch':
            self.kind = 'ctl'
        elif op.startswith('s_load') or op.startswith('s_buffer_load') or op in ('s_memrealtime', 's_memtime'):
            self.kind = 'smem'; self.defs = flat(r[:1]); self.uses = flat(r[1:])
        elif op.startswith('s_cmp') or op.startswith('s_bitcmp') or op.startswith('s_setpc'):
            self.kind = 'salu'; self.uses = flat(r)
        elif op.startswith('s_'):
            self.kind = 'salu'; self.defs = flat(r[:1]); self.uses = flat(r[1:])
            if 'saveexec' in op: self.defs.add(('exec', 0))
            if op in ('s_addk_i32', 's_mulk_i32') or op.startswith('s_cmov'): self.uses |= self.defs
        elif op.startswith('v_mfma'):
            self.kind = 'mfma'; self.defs = flat(r[:1]); self.uses = flat(r[1:])
            self.passes = 8 if '32x32' in op else 4
            self.srcAB = flat(r[1:3]); self.srcC = flat(r[3:4])
        elif op.startswith('v_'):
            self.kind = 'valu'
            nd = 1
            if op.startswith('v_add_co') or op.startswith('v_addc_co') or op.startswith('v_sub_co'): nd = 2
            if 'swap' in op:
                self.defs = flat(r); self.uses = flat(r)
            else:
                self.defs = flat(r[:nd]); self.uses = flat(r[nd:])
                if 'fmac' in op or 'dpp' in text or 'sdwa' in text or op.startswith('v_writelane') or 'row_' in text or 'quad_perm' in text:
                    self.uses |= self.defs
        elif op.startswith('ds_read'):
            self.kind = 'dsr'; self.defs = flat(r[:1]); self.uses = flat(r[1:])
            if 'addtid' in op: self.uses.add(('m0', 0))
        elif op.startswith('ds_write'):
            self.kind = 'dsw'; self.uses = flat(r)
            if 'addtid' in op: self.uses.add(('m0', 0))
        elif op.startswith('buffer_load') or op.startswith('global_load'):
            if re.search(r'\blds\b', rest) or '_lds_' in op:
                self.kind = 'dma'; self.uses = flat(r) | {('m0', 0)}
            else:
                self.kind = 'vld'; self.defs = flat(r[:1]); self.uses = flat(r[1:])
        elif op.startswith('buffer_store') or op.startswith('global_store'):
            self.kind = 'vst'; self.uses = flat(r)
            di = 0 if op.startswith('buffer') else 1
            self.wide = set(r[di]) if len(r[di]) > 2 else set()
        else:
            raise ValueError('unknown instruction: ' + text)
        self.trans = op.replace('_e32', '').replace('_e64', '') in TRANS

    def isvm(self): return self.kind in ('dma', 'vld', 'vst')
    def isds(self): return self.kind in ('dsr', 'dsw')


class Asm:
    def __init__(self):
        self.ins = []

    def __call__(self, text, tag=None):
        for line in text.split('\n'):
            line = line.split(';')[0].strip()
            if line:
                self.ins.append(Ins(line, tag))
        return self

    def add(self, other):
        self.ins += other.ins if isinstance(other, Asm) else other
        return self


def sg(x): return x[0] in ('s', 'vcc')


def hazard(p, c):
    n = 0
    if p.kind == 'valu':
        vd = p.defs
        if c.kind == 'mfma' and vd & c.uses: n = max(n, 2)
        if c.kind == 'valu':
            if p.trans and vd & c.uses: n = max(n, 1)
            sd = set(x for x in vd if sg(x))
            if sd & c.uses: n = max(n, 4 if 'lane' in c.op else 2)
            if vd & c.uses:
                if c.op.startswith('v_readlane') or c.op.startswith('v_readfirstlane'): n = max(n, 1)
                if 'permlane' in c.op or 'dpp' in c.text or 'row_' in c.text or 'quad_perm' in c.text: n = max(n, 2)
            if 'dst_sel' in p.text and vd & (c.uses | c.defs): n = max(n, 1)
        if c.isvm() and set(x for x in vd if sg(x)) & c.uses: n = max(n, 5)
    if p.kind == 'mfma':
        big = 8 if p.passes == 4 else 12
        if c.kind == 'mfma':
            if p.defs & c.srcAB: n = max(n, big)
            if p.defs & (c.srcC | c.defs):
                exact = c.op == p.op and (c.srcC == p.defs or not (c.srcC & p.defs)) and (c.defs == p.defs or not (c.defs & p.defs))
                if not exact: n = max(n, big - 2)
        elif c.kind in ('valu', 'dsr', 'dsw', 'vld', 'vst', 'dma'):
            if p.defs & (c.uses | c.defs): n = max(n, big)
            if c.kind == 'valu' and p.srcC & c.defs: n = max(n, p.passes - 1)
    if p.kind == 'salu' and ('m0', 0) in p.defs and ('m0', 0) in c.uses and c.kind != 'salu': n = max(n, 1)
    if p.kind == 'vst' and p.wide & c.defs: n = max(n, 2 if c.kind in ('valu', 'mfma') else 1)
    return n


def finalize(ins):
    out = []
    vm = []
    lg = []

    def emit(i):
        need = 0; dist = 0
        for p in reversed(out):
            if p.kind in ('label', 'pseudo'): continue
            h = hazard(p, i)
            if h - dist > need: need = h - dist
            dist += p.states
            if dist > 14: break
        while need > 0:
            k = min(need, 16)
            out.append(Ins(f's_nop {k-1}')); need -= k
        out.append(i)

    def wait(nv, nl):
        nonlocal vm, lg
        parts = []
        if nv is not None and nv < len(vm):
            assert nv <= 63, 'vmcnt overflow'
            parts.append(f'vmcnt({nv})'); vm = vm[len(vm) - nv:] if nv else []
        if nl is not None and nl < len(lg):
            if any(x.kind == 'smem' for x in lg): nl = 0
            nl = min(nl, 15)
            parts.append(f'lgkmcnt({nl})'); lg = lg[len(lg) - nl:] if nl else []
        if parts: emit(Ins('s_waitcnt ' + ' '.join(parts)))

    for i in ins:
        if i.kind == 'pseudo':
            if i.op == '@wait':
                idx = [k for k, x in enumerate(vm) if x.tag == i.arg]
                if idx: wait(len(vm) - 1 - idx[-1], None)
            elif i.op == '@drain': wait(0, 0)
            elif i.op == '@lgkm0': wait(None, 0)
            elif i.op == '@vm0': wait(0, None)
            elif i.op == '@reset': vm = []; lg = []
            else: raise ValueError(i.text)
            continue
        if i.kind == 'label':
            out.append(i); continue
        touch = i.uses | i.defs
        nv = nl = None
        for k in range(len(vm) - 1, -1, -1):
            d = vm[k].defs
            if d & i.uses or (d & i.defs and not i.isvm()):
                nv = len(vm) - 1 - k; break
        for k in range(len(lg) - 1, -1, -1):
            d = lg[k].defs
            if d & i.uses or (d & i.defs and not (i.isds() and lg[k].isds())):
                nl = len(lg) - 1 - k; break
        if i.op == 's_barrier': nl = 0
        wait(nv, nl)
        if i.op == 's_waitcnt':
            m = re.search(r'vmcnt\((\d+)\)', i.text)
            if m: n = int(m.group(1)); vm = vm[max(0, len(vm) - n):] if n else []
            m = re.search(r'lgkmcnt\((\d+)\)', i.text)
            if m and (int(m.group(1)) == 0 or not any(x.kind == 'smem' for x in lg)):
                n = int(m.group(1)); lg = lg[max(0, len(lg) - n):] if n else []
        emit(i)
        if i.isvm(): vm.append(i)
        if i.isds() or i.kind == 'smem': lg.append(i)
    return out


def text_of(ins):
    return '\n'.join((i.text if i.kind == 'label' else '  ' + i.text) for i in ins) + '\n'


def weave(main, fill, start=0, every=1, per=1):
    out = []; fill = list(fill); k = 0
    for n, i in enumerate(main):
        out.append(i)
        if n >= start and i.kind not in ('label', 'pseudo') and not getattr(i, 'glue', False):
            k += 1
            if k % every == 0:
                for _ in range(per):
                    if fill: out += fill.pop(0)
    for f in fill: out += f
    return out
```

```python
import sys
from dsl import *

NAME = "gated_mix__ssm_conv_s4d__dense_activation_squared_relu__prompt"
UT, GG, W2T, A2, HH, WS_SIZE = 0x10000, 0x1D0000, 0x200000, 0x400000, 0x600000, 0xD00000
LOG2E = 0x3fb8aa3b
KREG = 33792
UBASE = 4 * KREG
LDS_MAIN = UBASE + 2 * 8320
SC = "sc1"

X, W1, WS, OUT, W2 = 4, 8, 12, 16, 20
P_LA, P_AI, P_CR, P_CI, P_DT, P_DS, P_B1, P_W2, P_B2, P_GW = 24, 26, 28, 30, 32, 34, 36, 38, 40, 42
sW, sXCD, sJ, sJ7, sJM, sRT, sCT, sP = 3, 44, 45, 46, 47, 48, 49, 50
sX, sWo, sM, sT0, sT1, sT2, sT3, sDT, sDS, sH0, sH1 = 51, 52, 53, 54, 55, 56, 57, 58, 59, 60, 61
sTAG, sF, sCNT, sW2, sHH = 62, 63, 64, 65, 66
FL_H, FL_A, FL_P = 0x1000, 0x2000, 0x3000
STAMP0 = 68
vTAG = 19
PROF = False
SPIN = 1 << 16


def stamp(a, i):
    if PROF: a(f"s_memrealtime {S(STAMP0+2*i,2)}")


def stamps_out(a, n):
    if not PROF: return
    a(f"""
    s_lshl_b32 s{sT0}, s2, 2
    s_add_u32 s{sT0}, s{sT0}, s{sW}
    s_lshl_b32 s{sT0}, s{sT0}, 6
    s_add_u32 s{sT0}, s{sT0}, 0x1E0000
    s_mov_b64 exec, 1
    """)
    for i in range(n):
        a(f"v_mov_b32 v2, s{STAMP0+2*i}\nbuffer_store_dword v2, off, {S(WS,4)}, s{sT0} offset:{4*i}")


def epoch(a):
    a(f"s_load_dword s{sTAG}, {S(WS,2)}, 0")


def epoch2(a):
    a(f"s_mul_i32 s{sTAG}, s{sTAG}, 0x9E3779B1\ns_add_u32 s{sTAG}, s{sTAG}, 0x7F4A7C15")


def flag_store(sreg):
    o = Asm()
    o("s_mov_b64 exec, 1")
    o(f"""
    buffer_store_dword v{vTAG}, off, {S(WS,4)}, s{sreg} sc1
    s_mov_b64 exec, -1
    """)
    for i in o.ins[:-1]: i.glue = True
    return o.ins


def poll_load(vf, va, soff):
    return f"buffer_load_dword v{vf}, v{va}, {S(WS,4)}, {soff} offen sc1"


def poll_check(name, vf, va, soff):
    a = Asm()
    a(f"""
    v_cmp_ne_u32 vcc, s{sTAG}, v{vf}
    s_cbranch_vccz Lok_{name}
    !  s_mov_b32 s{sCNT}, 0
    Lspin_{name}:
    !  {poll_load(vf, va, soff)}
    !  s_add_u32 s{sCNT}, s{sCNT}, 1
    !  s_cmp_lt_u32 s{sCNT}, {SPIN}
    !  s_waitcnt vmcnt(0)
    !  v_cmp_ne_u32 vcc, s{sTAG}, v{vf}
    !  s_cbranch_vccz Lok_{name}
    !  s_cbranch_scc1 Lspin_{name}
    Lok_{name}:
    """)
    for i in a.ins: i.glue = True
    return a.ins


def L(text, tag=None): return Asm()(text, tag).ins


def R(b, n=1, f='v'): return f"{f}{b}" if n == 1 else f"{f}[{b}:{b+n-1}]"
def S(b, n): return f"s[{b}:{b+n-1}]"


def prologue(a, limit):
    a(f"""
    s_load_dwordx2 {S(X,2)}, s[0:1], 0
    s_load_dwordx2 {S(W1,2)}, s[0:1], 64
    s_load_dwordx2 {S(WS,2)}, s[0:1], 120
    s_load_dwordx8 {S(P_LA,8)}, s[0:1], 8
    s_load_dwordx4 {S(P_DT,4)}, s[0:1], 40
    s_load_dwordx8 {S(P_B1,8)}, s[0:1], 72
    s_cmp_ge_u32 s2, {limit}
    s_cbranch_scc1 Lend_{a.name}
    v_lshrrev_b32 v2, 6, v0
    v_and_b32 v1, 63, v0
    s_mov_b32 s{X+2}, {2048*896}
    s_mov_b32 s{X+3}, 0x20000
    v_readfirstlane_b32 s{sW}, v2
    s_mov_b32 s{W1+2}, {448*3584}
    s_mov_b32 s{W1+3}, 0x20000
    s_mov_b32 s{WS+2}, {WS_SIZE}
    s_mov_b32 s{WS+3}, 0x20000
    s_mov_b32 s{OUT+2}, {2048*896}
    s_mov_b32 s{OUT+3}, 0x20000
    """)


def mapping(a, off=0):
    a(f"""
    s_and_b32 s{sXCD}, s2, 7
    s_lshr_b32 s{sJ}, s2, 3
    """)
    if off: a(f"s_sub_u32 s{sJ}, s{sJ}, {off}")
    a(f"""
    s_mul_i32 s{sJ7}, s{sJ}, 37
    s_lshr_b32 s{sJ7}, s{sJ7}, 8
    s_mul_i32 s{sJM}, s{sJ7}, 7
    s_sub_u32 s{sJM}, s{sJ}, s{sJM}
    """)


def helper(a, hh, merged=False):
    vD = [2, 3, 4, 5, 6, 7, 8]
    vE, vO, vUT, vL16, vG, vGW = 10, 11, 12, 13, 14, 15
    GP = 7232
    XB = 8 * GP
    for i in range(7):
        a(f"""
        v_add_u32 v9, {64*i}, v1
        v_lshrrev_b32 v9, 3, v9
        v_mul_u32_u24 v9, 37, v9
        v_lshrrev_b32 v9, 8, v9
        v_and_b32 v9, 2, v9
        v_xor_b32 v9, v9, v1
        v_lshlrev_b32 v{vD[i]}, 4, v9
        """)
    a(f"""
    s_mul_i32 s{sT0}, s{hh}, {64*896}
    s_mul_i32 s{sT1}, s{sW}, {16*896}
    s_add_u32 s{sT0}, s{sT0}, s{sT1}
    s_mul_i32 s{sM}, s{sW}, {2*GP}
    s_waitcnt lgkmcnt(0)
    s_mov_b32 s{W2}, s{P_W2}
    s_mov_b32 s{W2+1}, s{P_W2+1}
    s_mov_b32 s{W2+2}, {1792*896}
    s_mov_b32 s{W2+3}, 0x20000
    """)
    for task, (srd, base) in enumerate(((W2, 0), (X, XB))):
        for g in range(2):
            for i in range(7):
                if i % 4 == 0:
                    a(f"s_add_u32 m0, s{sM}, {base + g*GP + 1024*i}\ns_add_u32 s{sT1}, s{sT0}, {g*7168 + 1024*i}")
                a(f"buffer_load_dwordx4 v{vD[i]}, {S(srd,4)}, s{sT1} offen offset:{1024*(i%4)} lds", tag=f"t{task}")
    if merged: epoch(a)
    a(f"""
    v_lshrrev_b32 v2, 4, v1
    v_lshlrev_b32 v{vGW}, 4, v2
    """)
    for jj in range(14):
        a(f"global_load_dwordx4 {R(64+4*jj,4)}, v{vGW}, {S(P_GW,2)} offset:{64*jj}")
    a(f"""
    s_and_b32 s{sT1}, s{sW}, 1
    s_lshr_b32 s{sT2}, s{sW}, 1
    s_mul_i32 s{sT3}, s{sT1}, {4*GP}
    s_mul_i32 s{sX}, s{sT2}, {14*32}
    s_add_u32 s{sT3}, s{sT3}, s{sX}
    v_mul_u32_u24 v3, {GP}, v2
    v_bfe_u32 v4, v1, 2, 2
    v_mul_u32_u24 v5, 896, v4
    v_and_b32 v6, 3, v1
    v_lshlrev_b32 v6, 3, v6
    v_add3_u32 v3, v3, v5, v6
    v_add_u32 v3, s{sT3}, v3
    v_and_b32 v4, 2, v4
    v_lshlrev_b32 v4, 4, v4
    v_add_u32 v{vE}, v3, v4
    v_sub_u32 v{vO}, v3, v4
    v_lshlrev_b32 v{vL16}, 4, v1
    v_and_b32 v3, 15, v1
    v_lshlrev_b32 v4, 12, v3
    v_lshl_add_u32 v{vUT}, v2, 4, v4
    v_lshrrev_b32 v4, 3, v3
    v_mul_u32_u24 v4, {GP}, v4
    v_and_b32 v5, 7, v1
    v_mul_u32_u24 v5, 896, v5
    v_and_b32 v6, 2, v1
    v_xor_b32 v6, v6, v2
    v_lshlrev_b32 v6, 4, v6
    v_add3_u32 v4, v4, v5, v6
    v_add_u32 v4, s{sM}, v4
    v_add_u32 v{vG}, {XB}, v4
    s_mul_i32 s{sH0}, s{sT2}, {14*56}
    s_lshl_b32 s{sX}, s{hh}, 1
    s_add_u32 s{sH0}, s{sH0}, s{sX}
    s_add_u32 s{sH0}, s{sH0}, s{sT1}
    s_lshl_b32 s{sH0}, s{sH0}, 10
    s_add_u32 s{sH0}, s{sH0}, {W2T}
    s_mul_i32 s{sH1}, s{sT2}, {14*16*4096}
    s_lshl_b32 s{sX}, s{hh}, 7
    s_add_u32 s{sH1}, s{sH1}, s{sX}
    s_lshl_b32 s{sX}, s{sT1}, 6
    s_add_u32 s{sH1}, s{sH1}, s{sX}
    s_add_u32 s{sH1}, s{sH1}, {UT}
    """)

    def transpose(sreg, step, vaddr):
        for i in range(14):
            for t in range(2):
                a(f"ds_read_b64_tr_b16 {R(128+4*i+2*t,2)}, v{vO if i & 1 else vE} offset:{32*i + 3584*t}")
        for i in range(14):
            a(f"buffer_store_dwordx4 {R(128+4*i,4)}, v{vaddr}, {S(WS,4)}, s{sreg} offen {SC}")
            if i < 13: a(f"s_add_u32 s{sreg}, s{sreg}, {step}")

    if merged:
        epoch2(a)
        a(f"s_lshl_b32 s{sF}, s{hh}, 2\ns_add_u32 s{sF}, s{sF}, {FL_P}\nv_mov_b32 v{vTAG}, s{sTAG}")
    a(f"""
    @wait t0
    s_barrier
    """)
    stamp(a, 1)
    a(f"""
    s_cmp_ge_u32 s{hh}, 28
    s_cbranch_scc1 Lskipw2_{a.name}
    """)
    transpose(sH0, 56 * 1024, vL16)
    a(f"""
    Lskipw2_{a.name}:
    v_add_u32 v{vE}, {XB}, v{vE}
    v_add_u32 v{vO}, {XB}, v{vO}
    s_waitcnt vmcnt(0)
    s_barrier
    """)
    if merged: a.add(flag_store(sF))
    stamp(a, 2)
    transpose(sH1, 16 * 4096, vUT)
    for jj in range(14):
        a(f"ds_read_b128 {R(192+4*jj,4)}, v{vG} offset:{64*jj}")
    for jj in range(14):
        a(f"v_mfma_f32_16x16x32_bf16 v[20:23], {R(64+4*jj,4)}, {R(192+4*jj,4)}, {'0' if jj == 0 else 'v[20:23]'}")
    a(f"""
    s_lshl_b32 s{sT0}, s{hh}, 8
    s_lshl_b32 s{sT1}, s{sW}, 6
    s_add_u32 s{sT0}, s{sT0}, s{sT1}
    s_add_u32 s{sT0}, s{sT0}, {GG}
    v_lshlrev_b32 v3, 2, v1
    v_mul_f32 v2, {LOG2E | 0x80000000}, v20
    v_exp_f32 v2, v2
    v_add_f32 v2, 1.0, v2
    v_rcp_f32 v2, v2
    s_mov_b64 exec, 0xffff
    buffer_store_dword v2, v3, {S(WS,4)}, s{sT0} offen {SC}
    s_mov_b64 exec, -1
    """)
    if not merged: return
    a(f"""
    s_add_u32 s{sF}, s{sF}, 128
    s_waitcnt vmcnt(0)
    s_barrier
    """)
    a.add(flag_store(sF))
    stamp(a, 3)
    stamps_out(a, 4)
    a(f"""
    s_cmp_lg_u32 s{hh}, 31
    s_cbranch_scc1 Lend_{a.name}
    s_mov_b64 exec, -1
    v_and_b32 v2, 7, v1
    v_min_u32 v2, 6, v2
    v_lshrrev_b32 v3, 3, v1
    v_lshlrev_b32 v3, 7, v3
    v_lshl_add_u32 v2, v2, 4, v3
    v_lshlrev_b32 v3, 2, v1
    s_lshl_b32 s{sT0}, s{sW}, 10
    s_add_u32 s{sT0}, s{sT0}, {FL_H}
    s_mov_b32 s{sT1}, {FL_P}
    s_mov_b32 s{sCNT}, 0
    Lfin_{a.name}:
    !  buffer_load_dwordx4 v[4:7], v2, {S(WS,4)}, s{sT0} offen sc1
    !  buffer_load_dword v8, v3, {S(WS,4)}, s{sT1} offen sc1
    !  s_add_u32 s{sCNT}, s{sCNT}, 1
    !  s_cmp_lt_u32 s{sCNT}, {SPIN}
    !  s_waitcnt vmcnt(0)
    !  v_xor_b32 v4, v4, v{vTAG}
    !  v_xor_b32 v5, v5, v{vTAG}
    !  v_xor_b32 v6, v6, v{vTAG}
    !  v_xor_b32 v7, v7, v{vTAG}
    !  v_xor_b32 v8, v8, v{vTAG}
    !  v_or3_b32 v4, v4, v5, v6
    !  v_or3_b32 v4, v4, v7, v8
    !  v_cmp_ne_u32 vcc, 0, v4
    !  s_cbranch_vccz Lfin2_{a.name}
    !  s_cbranch_scc1 Lfin_{a.name}
    Lfin2_{a.name}:
    s_mov_b32 s{sF}, 0
    s_barrier
    """)
    a.add(flag_store(sF))


vXa, vWa, vA, vB, vL16 = 2, 6, 10, 12, 16
vKI = 20
ACC1, BIAS, FR = 64, 128, 160


def g1_setup(a):
    a(f"""
    s_lshr_b32 s{sRT}, s{sXCD}, 1
    s_lshl_b32 s{sRT}, s{sRT}, 2
    s_add_u32 s{sRT}, s{sRT}, s{sJ7}
    s_and_b32 s{sCT}, s{sXCD}, 1
    s_mul_i32 s{sCT}, s{sCT}, 7
    s_add_u32 s{sCT}, s{sCT}, s{sJM}
    s_lshl_b32 s{sX}, s{sRT}, 2
    s_add_u32 s{sX}, s{sX}, s{sW}
    s_mul_i32 s{sX}, s{sX}, {32*896}
    s_mul_i32 s{sWo}, s{sW}, {16*3584}
    s_lshl_b32 s{sT0}, s{sCT}, 8
    s_add_u32 s{sWo}, s{sWo}, s{sT0}
    s_lshl_b32 s{sM}, s{sW}, 12
    v_lshrrev_b32 v17, 3, v1
    v_lshrrev_b32 v18, 4, v1
    v_mul_u32_u24 v17, 896, v17
    v_and_b32 v19, 7, v1
    v_xor_b32 v19, v19, v18
    v_lshl_add_u32 v{vXa}, v19, 4, v17
    v_xor_b32 v17, 64, v{vXa}
    v_add_u32 v{vXa+1}, 6144, v17
    v_add_u32 v{vXa+2}, 12288, v{vXa}
    v_add_u32 v{vXa+3}, {6144+12288}, v17
    v_mul_u32_u24 v17, 3584, v18
    v_lshlrev_b32 v18, 2, v18
    v_xor_b32 v18, v18, v1
    v_and_b32 v18, 15, v18
    v_lshl_add_u32 v{vWa}, v18, 4, v17
    v_add_u32 v{vWa+1}, 13312, v{vWa}
    v_add_u32 v{vWa+2}, {2*13312}, v{vWa}
    v_add_u32 v{vWa+3}, {3*13312}, v{vWa}
    """)


def g1_dma(c):
    a = Asm()
    slot = c % 3
    a(f"s_add_u32 m0, s{sM}, {slot*16384}")
    if c: a(f"s_add_u32 s{sX}, s{sX}, 128")
    for i in range(4):
        a(f"buffer_load_dwordx4 v{vXa+i}, {S(X,4)}, s{sX} offen offset:{1024*i} lds", tag=f"c{c}")
    a(f"s_add_u32 m0, s{sM}, {49152 + slot*16384}")
    if c: a(f"s_add_u32 s{sWo}, s{sWo}, {64*3584}")
    for i in range(4):
        a(f"buffer_load_dwordx4 v{vWa+i}, {S(W1,4)}, s{sWo} offen offset:{1024*i} lds", tag=f"c{c}")
    return a.ins


def g1_setup2(a):
    a(f"""
    s_lshr_b32 s{sT0}, s{sW}, 1
    s_and_b32 s{sT1}, s{sW}, 1
    s_mul_i32 s{sP}, s{sXCD}, 28
    s_add_u32 s{sP}, s{sP}, s{sJ}
    v_lshrrev_b32 v17, 5, v1
    s_lshl_b32 s{sT2}, s{sCT}, 1
    s_add_u32 s{sT2}, s{sT2}, s{sT0}
    s_lshl_b32 s{sT2}, s{sT2}, 7
    v_lshl_add_u32 v18, v17, 5, s{sT2}
    global_load_dwordx4 {R(FR,4)}, v18, {S(P_B1,2)}
    global_load_dwordx4 {R(FR+4,4)}, v18, {S(P_B1,2)} offset:16
    global_load_dwordx4 {R(FR+8,4)}, v18, {S(P_B1,2)} offset:64
    global_load_dwordx4 {R(FR+12,4)}, v18, {S(P_B1,2)} offset:80
    s_lshl_b32 s{sT2}, s{sP}, 2
    s_load_dword s{sDT}, {S(P_DT,2)}, s{sT2}
    s_load_dword s{sDS}, {S(P_DS,2)}, s{sT2}
    s_load_dwordx2 {S(OUT,2)}, s[0:1], 104
    s_add_u32 s{sT2}, s{sT2}, s{sW}
    s_lshl_b32 s{sT2}, s{sT2}, 8
    v_lshl_add_u32 v18, v1, 2, s{sT2}
    global_load_dword v{vKI}, v18, {S(P_LA,2)}
    global_load_dword v{vKI+1}, v18, {S(P_AI,2)}
    global_load_dword v{vKI+2}, v18, {S(P_CR,2)}
    global_load_dword v{vKI+3}, v18, {S(P_CI,2)}
    """)


def g1_setup3(a):
    a(f"""
    v_bfe_u32 v18, v1, 2, 2
    v_lshl_add_u32 v19, v17, 3, v18
    v_lshlrev_b32 v19, 8, v19
    s_lshl_b32 s{sT2}, s{sT0}, 1
    v_xor_b32 v18, s{sT2}, v18
    v_lshl_add_u32 v19, v18, 6, v19
    v_and_b32 v18, 1, v1
    v_lshl_add_u32 v19, v18, 5, v19
    v_and_b32 v18, 16, v1
    v_add_u32 v19, v18, v19
    v_and_b32 v18, 2, v1
    v_lshl_add_u32 v19, v18, 2, v19
    v_add_u32 v{vA}, 49152, v19
    v_xor_b32 v{vA+1}, 64, v{vA}
    v_and_b32 v18, 31, v1
    v_lshlrev_b32 v18, 7, v18
    v_bfe_u32 v19, v1, 1, 3
    v_xor_b32 v19, v19, v17
    v_lshl_add_u32 v18, v19, 4, v18
    s_lshl_b32 s{sT2}, s{sT1}, 13
    v_add_u32 v{vB}, s{sT2}, v18
    v_xor_b32 v{vB+1}, 32, v{vB}
    v_xor_b32 v{vB+2}, 64, v{vB}
    v_xor_b32 v{vB+3}, 96, v{vB}
    v_lshlrev_b32 v{vL16}, 4, v1
    s_lshl_b32 s{sH0}, s{sRT}, 1
    s_add_u32 s{sH0}, s{sH0}, s{sT1}
    s_mul_i32 s{sH0}, s{sH0}, 224
    s_lshl_b32 s{sT2}, s{sCT}, 1
    s_add_u32 s{sT2}, s{sT2}, s{sT0}
    s_lshl_b32 s{sT2}, s{sT2}, 2
    s_add_u32 s{sH0}, s{sH0}, s{sT2}
    s_lshl_b32 s{sH0}, s{sH0}, 10
    s_add_u32 s{sH0}, s{sH0}, {HH}
    s_add_u32 s{sH1}, s{sH0}, {112*1024}
    """)
    for k in range(16):
        a(f"v_lshlrev_b32 v{BIAS+2*k}, 16, v{FR+k}\nv_and_b32 v{BIAS+2*k+1}, 0xffff0000, v{FR+k}")


def g1_reads(t):
    c, s = divmod(t, 4)
    slot = c % 3
    b = FR + 16 * (t & 1)
    A = lambda tf: [Ins(f"ds_read_b64_tr_b16 {R(b+4*tf+2*h,2)}, v{vA+tf} offset:{slot*16384 + (16*s+4*h)*256}") for h in range(2)]
    B = lambda tl: [Ins(f"ds_read_b128 {R(b+8+4*tl,4)}, v{vB+s} offset:{slot*16384 + 4096*tl}")]
    return A(0) + B(0) + B(1) + A(1)


def gemm1(a, hook={}):
    a("@wait c0\ns_barrier")
    stamp(a, 1)
    a.add(g1_reads(0))
    for t in range(28):
        c, s = divmod(t, 4)
        b = FR + 16 * (t & 1)
        mf = []
        for tf in range(2):
            for tl in range(2):
                d = R(ACC1 + 32*tf + 16*tl, 16)
                mf.append(Ins(f"v_mfma_f32_32x32x16_bf16 {d}, {R(b+4*tf,4)}, {R(b+8+4*tl,4)}, {R(BIAS+16*tf,16) if t == 0 else d}"))
        rd = g1_reads(t + 1) if t < 27 else []
        dma = []
        if s == 3 and c < 6:
            a("@lgkm0")
            a.add(mf[:1])
            a(f"@wait c{c+1}\ns_barrier")
            if c + 3 < 7: dma = g1_dma(c + 3)
        else:
            a.add(mf[:1])
        a.add(rd[:3]); a.add(mf[1:2]); a.add(rd[3:]); a.add(mf[2:3]); a.add(dma[:6]); a.add(mf[3:4]); a.add(dma[6:])
        a.add(hook.get(t, []))


def g1_epilogue(a):
    for tf in range(2):
        for tl in range(2):
            d = ACC1 + 32*tf + 16*tl
            o = FR + 16*tf + 8*tl
            for r in range(16): a(f"v_max_f32 v{d+r}, 0, v{d+r}")
            for r in range(0, 16, 2): a(f"v_pk_mul_f32 {R(d+r,2)}, {R(d+r,2)}, {R(d+r,2)}")
            for r in range(0, 16, 2): a(f"v_cvt_pk_bf16_f32 v{o+r//2}, v{d+r}, v{d+r+1}")
            for s in range(2):
                a(f"buffer_store_dwordx4 {R(o+4*s,4)}, v{vL16}, {S(WS,4)}, s{sH1 if tl else sH0} offen offset:{(2*tf+s)*1024} {SC}", tag="hst")


UL = 24


def u_load(a):
    a(f"""
    s_lshl_b32 s{sX}, s{sP}, 2
    s_add_u32 s{sX}, s{sX}, s{sW}
    s_lshl_b32 s{sX}, s{sX}, 11
    s_add_u32 s{sX}, s{sX}, {UT}
    s_sub_u32 s{sWo}, s{sX}, 4
    """)
    for i in range(2):
        a(f"buffer_load_dwordx4 {R(UL+4*i,4)}, v{vL16}, {S(WS,4)}, s{sX} offen offset:{1024*i} {SC}")
        a(f"buffer_load_dword v{UL+8+i}, v{vL16}, {S(WS,4)}, s{sWo} offen offset:{1024*i} {SC}")


def u_stage(a):
    T = UL + 12
    a(f"""
    s_lshr_b32 s{sX}, s{sW}, 1
    s_and_b32 s{sWo}, s{sW}, 1
    s_mul_i32 s{sX}, s{sX}, 8320
    s_lshl_b32 s{sM}, s{sWo}, 11
    s_add_u32 s{sM}, s{sM}, s{sX}
    s_add_u32 s{sM}, s{sM}, {UBASE + 32}
    v_add_u32 v44, s{sM}, v{vL16}
    v_or_b32 v45, s{sWo}, v1
    v_cmp_eq_u32 vcc, 0, v45
    v_cndmask_b32 v{UL+8}, v{UL+8}, v45, vcc
    """)
    for i in range(2):
        d = UL + 4*i
        a(f"ds_write_b128 v44, {R(d,4)} offset:{1024*i}")
        a(f"v_alignbit_b32 v{T+4*i}, v{d}, v{UL+8+i}, 16")
        for k in range(1, 4): a(f"v_alignbit_b32 v{T+4*i+k}, v{d+k}, v{d+k-1}, 16")
        a(f"ds_write_b128 v44, {R(T+4*i,4)} offset:{4160 + 1024*i}")
    a(f"""
    s_mul_i32 s{sM}, s{sW}, 4160
    s_add_u32 s{sM}, s{sM}, {UBASE}
    v_and_b32 v45, 7, v1
    v_lshl_add_u32 v45, v45, 2, s{sM}
    v_mov_b32 v46, 0
    ds_write_b32 v45, v46
    """)


def kgen(a):
    E1, E2, E4, E8, E256, CC, SS, TT, TM = (64 + 4*i for i in range(9))
    WR = 104
    vK, vKA, vKB, vR = 2, 3, 4, 5
    cnt = [0]

    def cmul(d, x, y):
        for n in range(2):
            a(f"v_pk_mul_f32 {R(TM+2*n,2)}, {R(x+2*n,2)}, {R(y+2*n,2)} op_sel:[0,0] op_sel_hi:[0,1]")
        for n in range(2):
            a(f"v_pk_fma_f32 {R(d+2*n,2)}, {R(x+2*n,2)}, {R(y+2*n,2)}, {R(TM+2*n,2)} op_sel:[1,1,0] op_sel_hi:[1,0,1] neg_lo:[1,0,0]")

    def put(row, x, neg):
        w = WR + 2 * (cnt[0] & 3); cnt[0] += 1
        for n in range(2):
            a(f"v_cvt_pk_bf16_f32 v{w+n}, v{x+2*n}, {'-' if neg else ''}v{x+2*n+1}")
        a(f"ds_write_b64 v{vK}, {R(w,2)} offset:{row*528}")

    ER, ZI, DT = 112, 114, 116
    a(f"""
    s_lshr_b32 s{sT0}, s{sW}, 1
    s_lshl_b32 s{sT0}, s{sT0}, 4
    s_lshr_b32 s{sDT}, s{sDT}, s{sT0}
    s_lshl_b32 s{sDT}, s{sDT}, 16
    s_lshr_b32 s{sDS}, s{sDS}, s{sT0}
    s_lshl_b32 s{sDS}, s{sDS}, 16
    s_mul_i32 s{sT1}, s{sW}, {KREG}
    v_lshl_add_u32 v{vK}, v1, 3, s{sT1}
    v_mov_b32 v{DT}, {LOG2E}
    v_mul_f32 v{DT}, s{sDT}, v{DT}
    v_exp_f32 v{DT}, v{DT}
    v_lshlrev_b32 v{ER}, 16, v{vKI}
    v_and_b32 v{ER+1}, 0xffff0000, v{vKI}
    v_cvt_pk_bf16_f32 v{DT}, v{DT}, v{DT}
    v_mul_f32 v{ER}, {LOG2E}, v{ER}
    v_mul_f32 v{ER+1}, {LOG2E}, v{ER+1}
    v_exp_f32 v{ER}, v{ER}
    v_exp_f32 v{ER+1}, v{ER+1}
    v_lshlrev_b32 v{DT}, 16, v{DT}
    v_lshlrev_b32 v{ZI}, 16, v{vKI+1}
    v_and_b32 v{ZI+1}, 0xffff0000, v{vKI+1}
    v_cvt_pk_bf16_f32 v{ER+1}, v{ER}, v{ER+1}
    v_mul_f32 v{ZI}, v{ZI}, v{DT}
    v_mul_f32 v{ZI+1}, v{ZI+1}, v{DT}
    v_lshlrev_b32 v{ER}, 16, v{ER+1}
    v_and_b32 v{ER+1}, 0xffff0000, v{ER+1}
    v_mul_f32 v{ZI}, 0.15915494, v{ZI}
    v_mul_f32 v{ZI+1}, 0.15915494, v{ZI+1}
    v_mul_f32 v{ER}, v{ER}, v{DT}
    v_mul_f32 v{ER+1}, v{ER+1}, v{DT}
    v_mul_f32 v{ER}, {LOG2E | 0x80000000}, v{ER}
    v_mul_f32 v{ER+1}, {LOG2E | 0x80000000}, v{ER+1}
    v_add_f32 v{DT}, v{DT}, v{DT}
    v_lshlrev_b32 v{CC}, 16, v{vKI+2}
    v_lshlrev_b32 v{CC+1}, 16, v{vKI+3}
    v_and_b32 v{CC+2}, 0xffff0000, v{vKI+2}
    v_and_b32 v{CC+3}, 0xffff0000, v{vKI+3}
    v_pk_mul_f32 {R(CC,2)}, {R(CC,2)}, {R(DT,2)} op_sel_hi:[1,0]
    v_pk_mul_f32 {R(CC+2,2)}, {R(CC+2,2)}, {R(DT,2)} op_sel_hi:[1,0]
    """)
    for E, p in ((E8, 0x41000000), (E1, None), (E256, 0x43800000)):
        for n in range(2):
            if p:
                a(f"v_mul_f32 v{TM+2*n}, {p}, v{ER+n}\nv_mul_f32 v{TM+2*n+1}, {p}, v{ZI+n}")
                a(f"v_exp_f32 v{TM+2*n}, v{TM+2*n}\nv_fract_f32 v{TM+2*n+1}, v{TM+2*n+1}")
            else:
                a(f"v_exp_f32 v{TM+2*n}, v{ER+n}\nv_fract_f32 v{TM+2*n+1}, v{ZI+n}")
            a(f"v_cos_f32 v{E+2*n}, v{TM+2*n+1}\nv_sin_f32 v{E+2*n+1}, v{TM+2*n+1}")
        for n in range(2):
            a(f"v_pk_mul_f32 {R(E+2*n,2)}, {R(E+2*n,2)}, {R(TM+2*n,2)} op_sel_hi:[1,0]")
    a(f"v_mov_b32 v{WR+6}, 0x3f80\nv_mov_b32 v{WR+7}, 0x3f80\nds_write_b64 v{vK}, {R(WR+6,2)} offset:{32*528}")
    put(33, E8, False)
    cmul(SS, E8, E8); put(34, SS, False)
    for b in range(3, 32):
        cmul(SS, SS, E8); put(32 + b, SS, False)
    put(0, CC, True)
    cmul(SS, CC, E1); put(1, SS, True)
    for r in range(2, 8):
        cmul(SS, SS, E1); put(r, SS, True)
    cmul(E2, E1, E1); cmul(E4, E2, E2)
    cmul(TT, CC, E256); put(8, TT, True)
    cmul(SS, TT, E2); put(9, SS, True)
    for r in (10, 13, 14):
        cmul(SS, SS, E2); put(r, SS, True)
    for r in (16, 20):
        cmul(TT, TT, E256); put(r, TT, True)
        cmul(SS, TT, E4); put(r + 1, SS, True)
        cmul(SS, SS, E4); put(r + 2, SS, True)
    for r in (24, 26, 28, 30):
        cmul(TT, TT, E256); put(r, TT, True)
        cmul(SS, TT, E8); put(r + 1, SS, True)
    a.mark = len(a.ins)
    a(f"""
    v_and_b32 v6, 31, v1
    v_lshrrev_b32 v7, 5, v1
    v_mul_u32_u24 v8, 528, v6
    v_lshl_add_u32 v8, v7, 4, v8
    v_add_u32 v{vKB}, s{sT1}, v8
    v_cmp_eq_u32 vcc, 12, v6
    v_subrev_u32 v8, {2*528}, v{vKB}
    v_cndmask_b32 v{vKA}, v{vKB}, v8, vcc
    """)
    D, FA, FB = 64, 128, 192
    for s in range(16):
        a(f"ds_read_b128 {R(FA+4*s,4)}, v{vKA} offset:{32*s}")
        a(f"ds_read_b128 {R(FB+4*s,4)}, v{vKB} offset:{32*528 + 32*s}")
        if s >= 2:
            k = s - 2
            a(f"v_mfma_f32_32x32x16_bf16 {R(D,16)}, {R(FA+4*k,4)}, {R(FB+4*k,4)}, {'0' if k == 0 else R(D,16)}")
    for k in (14, 15):
        a(f"v_mfma_f32_32x32x16_bf16 {R(D,16)}, {R(FA+4*k,4)}, {R(FB+4*k,4)}, {R(D,16)}")
    a(f"""
    v_add_u32 v8, s{sT1}, v{vL16}
    s_xor_b32 s{sT2}, s{sW}, 1
    s_mul_i32 s{sT2}, s{sT2}, {KREG}
    v_add_u32 v9, s{sT2}, v{vL16}
    v_mov_b32 v100, 0
    v_mov_b32 v101, 0
    v_mov_b32 v102, 0
    v_mov_b32 v103, 0
    v_cmp_eq_u32 vcc, 0, v1
    v_mov_b32 v10, s{sDS}
    v_lshlrev_b32 v11, 4, v6
    v_cndmask_b32 v10, 0, v10, vcc
    v_sub_u32 v11, s{sT1}, v11
    v_and_b32 v6, 1, v1
    v_cmp_eq_u32 vcc, 1, v6
    """)
    for q in range(4): a(f"ds_write_b128 v8, {R(D+4*q,4)} offset:{8192 + 1024*q}")
    a(f"ds_write_b128 v8, v[100:103] offset:4096")
    a("s_barrier")
    stamp(a, 7)
    for q in range(4): a(f"ds_read_b128 {R(80+4*q,4)}, v9 offset:{8192 + 1024*q}")
    a(f"""
    v_lshlrev_b32 v6, 3, v7
    v_sub_u32 v12, v11, v6
    v_lshlrev_b32 v6, 9, v7
    v_sub_u32 v13, v11, v6
    v_sub_u32 v14, v13, v6
    v_add_u32 v12, 3576, v12
    v_add_u32 v13, 3056, v13
    v_add_u32 v14, 1520, v14
    v_add_f32 v{D}, v{D}, v10
    """)
    for k in range(0, 16, 2): a(f"v_pk_add_f32 {R(D+k,2)}, {R(D+k,2)}, {R(80+k,2)}")
    O = 96
    cv = lambda o, x, y: a(f"v_cvt_pk_bf16_f32 v{o}, v{x}, v{y}")
    cv(O, D+3, D+2); cv(O+1, D+1, D); a(f"ds_write_b64 v12, {R(O,2)} offset:512")
    cv(O+2, D+6, D+5); cv(O+3, D+4, D+4); a(f"ds_write_b64 v12, {R(O+2,2)}")
    cv(O+4, D+10, D+10); cv(O+5, D+9, D+9); cv(O+6, D+9, D+8); cv(O+7, D+8, D+8); a(f"ds_write_b128 v13, {R(O+4,4)}")
    for t in range(2):
        e0, e1, o = D+12+2*t, D+13+2*t, O+8+4*t
        a(f"v_cndmask_b32 v6, v{e0}, v{e1}, vcc")
        cv(o, e1, e1); cv(o+1, e1, 6); cv(o+2, e0, e0); cv(o+3, e0, e0)
        a(f"ds_write_b128 v14, {R(o,4)} offset:{512*(1-t)}")


def conv(a, mid=[], pre_x=[], post_x=[]):
    vU, vKf = 2, 6
    ACC, F = 32, 64
    a(f"""
    s_lshr_b32 s{sT0}, s{sW}, 1
    s_and_b32 s{sT2}, s{sW}, 1
    s_mul_i32 s{sT0}, s{sT0}, 8320
    s_lshl_b32 s{sT2}, s{sT2}, 8
    s_sub_u32 s{sT0}, s{sT0}, s{sT2}
    s_add_u32 s{sT0}, s{sT0}, {UBASE + 4160 + 4*65}
    v_lshrrev_b32 v7, 4, v1
    v_bfe_u32 v8, v1, 1, 3
    v_lshlrev_b32 v8, 2, v8
    v_lshl_add_u32 v8, v7, 4, v8
    v_and_b32 v9, 1, v1
    v_mul_u32_u24 v9, 4160, v9
    v_sub_u32 v8, v8, v9
    v_add_u32 v{vU}, s{sT0}, v8
    v_add_u32 v{vU+1}, 1024, v{vU}
    v_add_u32 v{vU+2}, 2048, v{vU}
    v_add_u32 v{vU+3}, 3072, v{vU}
    s_sub_u32 s{sT0}, s{sT1}, s{sT2}
    s_add_u32 s{sT0}, s{sT0}, {4512 - 3584 - 192}
    v_and_b32 v8, 15, v1
    v_lshlrev_b32 v8, 5, v8
    v_lshlrev_b32 v9, 4, v7
    v_sub_u32 v8, v9, v8
    v_add_u32 v{vKf}, s{sT0}, v8
    """)

    def reads(r):
        b = F + 64 * (r & 1)
        out = []
        for i in range(8):
            o = 128 * (i & 1) + 16 * (3 - r)
            out.append(Ins(f"ds_read_b128 {R(b+32+4*i,4)}, v{vKf} offset:{512*(7-i) + 64*(3-r)}"))
            out.append(Ins(f"ds_read2_b32 {R(b+4*i,2)}, v{vU+(i>>1)} offset0:{o} offset1:{o+1}"))
            out.append(Ins(f"ds_read2_b32 {R(b+4*i+2,2)}, v{vU+(i>>1)} offset0:{o+2} offset1:{o+3}"))
        return out

    order = sorted(((t, d) for t in range(8) for d in range(8) if t + d < 8), key=lambda x: (max(x), x[0] + x[1], x[0]))
    a.add(reads(0))
    for r in range(4):
        b = F + 64 * (r & 1)
        rd = reads(r + 1) if r < 3 else []
        seen = set()
        for k, (t, d) in enumerate(order):
            c = t + d
            acc = R(ACC + 4*c, 4)
            first = r == 0 and c not in seen
            seen.add(c)
            a(f"v_mfma_f32_16x16x32_bf16 {acc}, {R(b+4*d,4)}, {R(b+32+4*t,4)}, {'0' if first else acc}")
            if k >= 10 and rd: a.add([rd.pop(0)])
            if r == 3 and k == 0: a.add(mid)
    a.add(pre_x)
    a(f"""
    v_add_u32 v8, s{sT1}, v{vL16}
    s_lshl_b32 s{sT0}, s{sW}, 11
    v_add_u32 v9, s{sT0}, v{vL16}
    v_add_u32 v10, {2*KREG}, v9
    v_and_b32 v11, 15, v1
    v_lshlrev_b32 v11, 6, v11
    v_lshl_add_u32 v11, v7, 4, v11
    s_lshl_b32 s{sT2}, s{sP}, 13
    s_add_u32 s{sT2}, s{sT2}, s{sT0}
    s_add_u32 s{sT2}, s{sT2}, {A2}
    """)
    post_x = list(post_x)
    for c in range(8):
        a(f"ds_write_b128 v8, {R(ACC+4*c,4)} offset:{16384 + 1024*c}")
        for _ in range(2):
            if post_x: a.add(post_x.pop(0))
    a("s_barrier")
    for i in range(2):
        for w in range(4):
            a(f"ds_read_b128 {R(F+16*i+4*w,4)}, v{9 + (w>>1)} offset:{16384 + KREG*(w&1) + 1024*i}")
    for i in range(2):
        b = F + 16*i
        for k in (0, 2, 8, 10): a(f"v_pk_add_f32 {R(b+k,2)}, {R(b+k,2)}, {R(b+k+4,2)}")
        for k in range(4): a(f"v_cvt_pk_bf16_f32 v{b+4+k}, v{b+k}, v{b+8+k}")
        a(f"buffer_store_dwordx4 {R(b+4,4)}, v11, {S(WS,4)}, s{sT2} offen offset:{1024*i} {SC}", tag="ast")


def w2_setup(a):
    a(f"""
    s_mul_i32 s{sW2}, s{sJM}, {4*56}
    s_mul_i32 s{sF}, s{sW}, 14
    s_add_u32 s{sW2}, s{sW2}, s{sF}
    s_lshl_b32 s{sW2}, s{sW2}, 10
    s_add_u32 s{sW2}, s{sW2}, {W2T}
    v_bfe_u32 v17, v1, 4, 1
    v_mul_u32_u24 v17, {56*1024}, v17
    v_lshrrev_b32 v18, 5, v1
    v_lshl_add_u32 v17, v18, 9, v17
    v_and_b32 v18, 3, v1
    v_lshl_add_u32 v17, v18, 4, v17
    v_and_b32 v18, 4, v1
    v_lshl_add_u32 v17, v18, 5, v17
    v_and_b32 v18, 8, v1
    v_lshl_add_u32 v17, v18, 3, v17
    v_add_u32 v18, {112*1024}, v17
    """)


def w2_groups():
    g = []
    for fb in range(14):
        for s in range(2):
            for td in range(2):
                o = Asm()
                if fb and fb % 4 == 0 and s == 0 and td == 0: o(f"s_add_u32 s{sW2}, s{sW2}, 4096")
                o(f"buffer_load_dwordx4 {R(8*(2*fb+s)+4*td,4,'a')}, v{17+td}, {S(WS,4)}, s{sW2} offen offset:{1024*(fb%4) + 256*s} {SC}")
                g.append(o.ins)
    return g


HB, NB = 128, 32
vPH, vFH, vPA, vFA = 12, 13, 14, 15


def g2_setup(a):
    a(f"""
    s_lshl_b32 s{sRT}, s{sXCD}, 2
    s_add_u32 s{sRT}, s{sRT}, s{sJ7}
    s_mul_i32 s{sH0}, s{sRT}, 224
    s_mul_i32 s{sX}, s{sW}, 28
    s_add_u32 s{sH0}, s{sH0}, s{sX}
    s_lshl_b32 s{sH0}, s{sH0}, 10
    s_add_u32 s{sH0}, s{sH0}, {HH}
    v_min_u32 v{vPH}, 6, v1
    v_lshl_add_u32 v{vPH}, v{vPH}, 2, s{sX}
    s_lshl_b32 s{sX}, s{sRT}, 7
    s_add_u32 s{sX}, s{sX}, {FL_H}
    {poll_load(vFH, vPH, f's{sX}')}
    s_lshr_b32 s{sF}, s{sP}, 5
    s_lshl_b32 s{sF}, s{sF}, 2
    s_add_u32 s{sF}, s{sF}, s{sW}
    s_lshl_b32 s{sF}, s{sF}, 5
    s_and_b32 s{sWo}, s{sP}, 31
    s_add_u32 s{sF}, s{sF}, s{sWo}
    s_lshl_b32 s{sF}, s{sF}, 2
    s_add_u32 s{sF}, s{sF}, {FL_A}
    s_lshl_b32 s{sWo}, s{sJM}, 2
    s_lshr_b32 s{sM}, s{sXCD}, 1
    s_add_u32 s{sWo}, s{sWo}, s{sM}
    s_lshl_b32 s{sWo}, s{sWo}, 2
    s_add_u32 s{sWo}, s{sWo}, s{sW}
    s_lshl_b32 s{sWo}, s{sWo}, 5
    s_add_u32 s{sWo}, s{sWo}, {FL_A}
    v_and_b32 v{vPA}, 7, v1
    v_lshlrev_b32 v{vPA}, 2, v{vPA}
    """)


def slot(i): return HB + 4 * ((i + 16) % NB)


def hload(i):
    out = Asm()
    tl, k = divmod(i, 28)
    if i and k % 4 == 0: out(f"s_add_u32 s{sH0}, s{sH0}, {4096 if k else (112-24)*1024}")
    out(f"buffer_load_dwordx4 {R(slot(i),4)}, v{vL16}, {S(WS,4)}, s{sH0} offen offset:{1024*(k%4)} {SC}")
    return out.ins


def gemm2(a, done, PRE=24, I_FLAG=16, I_POLL=34, I_CHK=44):
    ACC = 32
    AV, GV, PT = 20, 28, 96
    B2 = slot(24)
    vA2, vO, vX = 2, 3, 4
    for i in range(done, PRE): a.add(hload(i))
    a(f"""
    v_and_b32 v5, 31, v1
    v_lshrrev_b32 v6, 5, v1
    s_lshl_b32 s{sT0}, s{sJM}, 2
    s_add_u32 s{sT0}, s{sT0}, s{sW}
    s_lshl_b32 s{sT2}, s{sT0}, 5
    v_lshl_add_u32 v7, v6, 4, s{sT2}
    global_load_dwordx4 {R(8,4)}, v7, {S(P_B2,2)}
    v_mul_u32_u24 v{vO}, 896, v5
    v_add_u32 v{vO}, v{vO}, v7
    s_mul_i32 s{sH1}, s{sRT}, {64*896}
    v_lshlrev_b32 v5, 2, v5
    v_lshl_add_u32 v{vA2}, v6, 15, v5
    s_lshl_b32 s{sT0}, s{sT0}, 16
    s_lshl_b32 s{sT2}, s{sRT}, 8
    s_add_u32 s{sT0}, s{sT0}, s{sT2}
    s_add_u32 s{sT0}, s{sT0}, {A2}
    s_add_u32 s{sT2}, s{sT2}, {GG}
    v_add_u32 v{vX}, s{sT1}, v{vL16}
    s_lshl_b32 s{sT3}, s{sW}, 11
    v_add_u32 v6, s{sT3}, v{vL16}
    v_add_u32 v7, {2*KREG}, v6
    """)
    for tl in range(2):
        a(f"buffer_load_dword v{GV+2*tl}, v5, {S(WS,4)}, s{sT2} offen offset:{128*tl} {SC}")

    def aload():
        o = Asm()
        o.add(poll_check("a", vFA, vPA, f"s{sWo}"))
        stamp(o, 10)
        for i in range(4):
            for tl in range(2):
                o(f"buffer_load_dword v{AV+4*tl+i}, v{vA2}, {S(WS,4)}, s{sT0} offen offset:{128*tl} {SC}")
            if i < 3: o(f"s_add_u32 s{sT0}, s{sT0}, 8192")
        return o.ins

    def reduce(tl, P):
        o = Asm()
        for td in range(2):
            for q in range(4):
                o(f"ds_write_b128 v{vX}, {R(ACC+32*tl+16*td+4*q,4)} offset:{8192*tl + 1024*(4*td+q)}")
        o("s_barrier")
        for w in range(4):
            for q in range(2):
                o(f"ds_read_b128 {R(P+8*w+4*q,4)}, v{6+(w>>1)} offset:{8192*tl + KREG*(w&1) + 1024*q}")
        if tl == 0:
            for k in range(4): o(f"v_lshlrev_b32 v{B2+2*k}, 16, v{8+k}\nv_and_b32 v{B2+2*k+1}, 0xffff0000, v{8+k}")
        n = len(o.ins)
        for k in range(0, 8, 2): o(f"v_pk_add_f32 {R(P+k,2)}, {R(P+k,2)}, {R(B2+k,2)}")
        for w in range(1, 4):
            for k in range(0, 8, 2): o(f"v_pk_add_f32 {R(P+k,2)}, {R(P+k,2)}, {R(P+8*w+k,2)}")
        return o.ins[:n], o.ins[n:]

    def mix(tl, P, U):
        o = Asm()
        for k in range(4): o(f"v_lshlrev_b32 v{U+2*k}, 16, v{AV+4*tl+k}\nv_and_b32 v{U+2*k+1}, 0xffff0000, v{AV+4*tl+k}")
        n = len(o.ins)
        for k in range(0, 8, 2): o(f"v_pk_add_f32 {R(U+k,2)}, {R(U+k,2)}, {R(P+k,2)} neg_lo:[0,1] neg_hi:[0,1]")
        for k in range(0, 8, 2): o(f"v_pk_fma_f32 {R(U+k,2)}, {R(U+k,2)}, {R(GV+2*tl,2)}, {R(P+k,2)} op_sel_hi:[1,0,1]")
        for k in range(4): o(f"v_cvt_pk_bf16_f32 v{U+8+k}, v{U+2*k}, v{U+2*k+1}")
        if tl: o(f"s_add_u32 s{sH1}, s{sH1}, {32*896}")
        o(f"buffer_store_dwordx4 {R(U+8,4)}, v{vO}, {S(OUT,4)}, s{sH1} offen")
        return o.ins[:n], o.ins[n:]

    r0 = reduce(0, PT)
    fin = r0[0] + r0[1]
    for i in range(56):
        tl, k = divmod(i, 28)
        if i == I_FLAG: a("@wait ast"); a.add(flag_store(sF))
        if i == I_POLL: a(poll_load(vFA, vPA, f"s{sWo}"))
        if i == I_CHK: a.add(aload())
        for td in range(2):
            acc = R(ACC + 32*tl + 16*td, 16)
            a(f"v_mfma_f32_32x32x16_bf16 {acc}, {R(8*k+4*td,4,'a')}, {R(slot(i),4)}, {'0' if k == 0 else acc}")
            if td == 0 and i + PRE < 56: a.add(hload(i + PRE))
            if tl == 1 and k >= 4:
                for _ in range(2):
                    if fin: a.add([fin.pop(0)])
    a.add(fin)
    stamp(a, 11)
    P1 = slot(0)
    r1 = reduce(1, P1)
    m0 = mix(0, PT, ACC)
    m1 = mix(1, P1, ACC + 16)
    a.add(r1[0]); a.add(m0[0]); a.add(m0[1]); a.add(m1[0]); a.add(r1[1]); a.add(m1[1])


def build_merged(N_FLAG=250, N_POLL=252, N_CHK=380, EVERY=13):
    name = NAME + "_kernel"
    a = Asm(); a.name = "k"
    stamp(a, 0)
    prologue(a, 256)
    a("s_cmp_lt_u32 s2, 32\ns_cbranch_scc1 Lhelper")
    mapping(a, 4); g1_setup(a)
    a.add(g1_dma(0)); epoch(a); g1_setup2(a); a.add(g1_dma(1)); a.add(g1_dma(2)); g1_setup3(a)
    o = Asm(); w2_setup(o); epoch2(o)
    o(f"""
    v_mov_b32 v{vTAG}, s{sTAG}
    v_and_b32 v34, 31, v1
    v_lshlrev_b32 v34, 2, v34
    s_mov_b32 s{sHH}, {FL_P}
    s_lshl_b32 s{sF}, s{sRT}, 1
    s_and_b32 s{sT0}, s{sW}, 1
    s_add_u32 s{sF}, s{sF}, s{sT0}
    s_lshl_b32 s{sF}, s{sF}, 4
    s_add_u32 s{sF}, s{sF}, s{sCT}
    s_lshl_b32 s{sF}, s{sF}, 1
    s_lshr_b32 s{sT0}, s{sW}, 1
    s_add_u32 s{sF}, s{sF}, s{sT0}
    s_lshl_b32 s{sF}, s{sF}, 2
    s_add_u32 s{sF}, s{sF}, {FL_H}
    """)
    hook = {}
    for t in range(16, 24): hook[t] = o.ins[4*(t-16):4*(t-15)]
    hook[23] += o.ins[32:]
    hook[24] = L(poll_load(35, 34, f"s{sHH}"))
    gemm1(a, hook)
    stamp(a, 2)
    a.add(poll_check("w2", 35, 34, f"s{sHH}"))
    stamp(a, 3)
    m = Asm()
    g1_epilogue(m)
    m(f"s_add_u32 s{sHH}, s{sHH}, 128\ns_barrier")
    stamp(m, 4)
    k = Asm(); kgen(k)
    ul = Asm(); stamp(ul, 6); u_load(ul)
    us = Asm(); u_stage(us)
    fl = Asm(); fl("@wait hst"); fl.add(flag_store(sF)); stamp(fl, 5)
    ki = k.ins
    m.add(ki[:N_FLAG]); m.add(fl); m.add(ki[N_FLAG:N_POLL]); m(poll_load(35, 34, f"s{sHH}"))
    m.add(ki[N_POLL:N_CHK]); m.add(poll_check("ut", 35, 34, f"s{sHH}")); m.add(ul)
    m.add(ki[N_CHK:k.mark]); m.add(us); m.add(ki[k.mark:])
    g = Asm(); g2_setup(g)
    px = Asm(); stamp(px, 8); px.add(poll_check("h", vFH, vPH, f"s{sX}")); stamp(px, 9)
    conv(m, g.ins, px.ins, [hload(i) for i in range(16)])
    a.add(weave(m.ins, w2_groups(), 0, EVERY))
    gemm2(a, 16)
    stamp(a, 12)
    stamps_out(a, 13)
    h = Asm(); h.name = "k"
    helper(h, 2, True)
    t = (f".globl {name}\n.p2align 8\n.type {name},@function\n{name}:\n" + text_of(finalize(a.ins)) + "  s_endpgm\nLhelper:\n"
         + text_of(finalize(h.ins)) + "Lend_k:\n  s_endpgm\n")
    d = f""".p2align 6
.amdhsa_kernel {name}
  .amdhsa_next_free_vgpr 512
  .amdhsa_next_free_sgpr 102
  .amdhsa_accum_offset 256
  .amdhsa_group_segment_fixed_size 0
  .amdhsa_kernarg_size 128
  .amdhsa_user_sgpr_count 2
  .amdhsa_user_sgpr_kernarg_segment_ptr 1
  .amdhsa_system_sgpr_workgroup_id_x 1
.end_amdhsa_kernel
"""
    hdr = f"; @launch grid=(256,1,1) block=(256,1,1) lds={LDS_MAIN}\n"
    return hdr + '.amdgcn_target "amdgcn-amd-amdhsa--gfx950"\n.text\n' + t + '.section .rodata,"a"\n' + d


if __name__ == "__main__":
    args = [x for x in sys.argv[1:] if not x.startswith("-")]
    PROF = "-p" in sys.argv
    out = args[0] if args else f"cdna_kernels/{NAME}.s"
    open(out, "w").write(build_merged())
```

```python
import sys
from dsl import *

NAME = "gated_mix__ssm_conv_s4d__dense_activation_squared_relu__prompt"
UT, GG, W2T, A2, HH, WS_SIZE = 0x10000, 0x1D0000, 0x200000, 0x400000, 0x600000, 0xD00000
LOG2E = 0x3fb8aa3b
KREG = 33792
UBASE = 4 * KREG
LDS_MAIN = UBASE + 2 * 8320
SC = "sc1"

X, W1, WS, OUT, W2 = 4, 8, 12, 16, 20
P_LA, P_AI, P_CR, P_CI, P_DT, P_DS, P_B1, P_W2, P_B2, P_GW = 24, 26, 28, 30, 32, 34, 36, 38, 40, 42
sW, sXCD, sJ, sJ7, sJM, sRT, sCT, sP = 3, 44, 45, 46, 47, 48, 49, 50
sX, sWo, sM, sT0, sT1, sT2, sT3, sDT, sDS, sH0, sH1 = 51, 52, 53, 54, 55, 56, 57, 58, 59, 60, 61
sTAG, sF, sCNT, sW2, sHH = 62, 63, 64, 65, 66
FL_H, FL_A, FL_P = 0x1000, 0x2000, 0x3000
STAMP0 = 68
vTAG = 19
PROF = False
SPIN = 1 << 16


PROBE = None


def stamp(a, i):
    if PROF or (PROBE is not None and i in (0, PROBE[1])): a(f"s_memrealtime {S(STAMP0+2*i,2)}")


def probe_out(a, helper):
    if PROBE is None or (PROBE[0] < 32) != helper: return
    k = PROBE[1]
    a(f"""
    s_cmp_lg_u32 s2, {PROBE[0]}
    s_cbranch_scc1 Lprobe_done
    s_waitcnt lgkmcnt(0)
    s_add_u32 s{sT0}, s{STAMP0+2*k}, 5000
    Lprobe:
    !  s_memrealtime s[98:99]
    !  s_waitcnt lgkmcnt(0)
    !  s_sub_u32 s98, s98, s{sT0}
    !  s_cmp_lt_i32 s98, 0
    !  s_cbranch_scc1 Lprobe
    Lprobe_done:
    """)


def stamps_out(a, n):
    if not PROF: return
    a(f"""
    s_lshl_b32 s{sT0}, s2, 2
    s_add_u32 s{sT0}, s{sT0}, s{sW}
    s_lshl_b32 s{sT0}, s{sT0}, 6
    s_add_u32 s{sT0}, s{sT0}, 0x1E0000
    s_mov_b64 exec, 1
    """)
    for i in range(n):
        a(f"v_mov_b32 v2, s{STAMP0+2*i}\nbuffer_store_dword v2, off, {S(WS,4)}, s{sT0} offset:{4*i}")


def epoch(a):
    a(f"s_load_dword s{sTAG}, {S(WS,2)}, 0")


def epoch2(a):
    a(f"s_mul_i32 s{sTAG}, s{sTAG}, 0x9E3779B1\ns_add_u32 s{sTAG}, s{sTAG}, 0x7F4A7C15")


def flag_store(sreg):
    o = Asm()
    o("s_mov_b64 exec, 1")
    o(f"""
    buffer_store_dword v{vTAG}, off, {S(WS,4)}, s{sreg} sc1
    s_mov_b64 exec, -1
    """)
    for i in o.ins[:-1]: i.glue = True
    return o.ins


def poll_load(vf, va, soff):
    return f"buffer_load_dword v{vf}, v{va}, {S(WS,4)}, {soff} offen sc1"


def poll_check(name, vf, va, soff):
    a = Asm()
    a(f"""
    v_cmp_ne_u32 vcc, s{sTAG}, v{vf}
    s_cbranch_vccz Lok_{name}
    !  s_mov_b32 s{sCNT}, 0
    Lspin_{name}:
    !  {poll_load(vf, va, soff)}
    !  s_add_u32 s{sCNT}, s{sCNT}, 1
    !  s_cmp_lt_u32 s{sCNT}, {SPIN}
    !  s_waitcnt vmcnt(0)
    !  v_cmp_ne_u32 vcc, s{sTAG}, v{vf}
    !  s_cbranch_vccz Lok_{name}
    !  s_cbranch_scc1 Lspin_{name}
    Lok_{name}:
    """)
    for i in a.ins: i.glue = True
    return a.ins


def L(text, tag=None): return Asm()(text, tag).ins


def R(b, n=1, f='v'): return f"{f}{b}" if n == 1 else f"{f}[{b}:{b+n-1}]"
def S(b, n): return f"s[{b}:{b+n-1}]"


def prologue(a, limit):
    a(f"""
    s_load_dwordx2 {S(X,2)}, s[0:1], 0
    s_load_dwordx2 {S(W1,2)}, s[0:1], 64
    s_load_dwordx2 {S(WS,2)}, s[0:1], 120
    s_load_dwordx8 {S(P_LA,8)}, s[0:1], 8
    s_load_dwordx4 {S(P_DT,4)}, s[0:1], 40
    s_load_dwordx8 {S(P_B1,8)}, s[0:1], 72
    s_cmp_ge_u32 s2, {limit}
    s_cbranch_scc1 Lend_{a.name}
    v_lshrrev_b32 v2, 6, v0
    v_and_b32 v1, 63, v0
    s_mov_b32 s{X+2}, {2048*896}
    s_mov_b32 s{X+3}, 0x20000
    v_readfirstlane_b32 s{sW}, v2
    s_mov_b32 s{W1+2}, {448*3584}
    s_mov_b32 s{W1+3}, 0x20000
    s_mov_b32 s{WS+2}, {WS_SIZE}
    s_mov_b32 s{WS+3}, 0x20000
    s_mov_b32 s{OUT+2}, {2048*896}
    s_mov_b32 s{OUT+3}, 0x20000
    """)


def mapping(a, off=0):
    a(f"""
    s_and_b32 s{sXCD}, s2, 7
    s_lshr_b32 s{sJ}, s2, 3
    """)
    if off: a(f"s_sub_u32 s{sJ}, s{sJ}, {off}")
    a(f"""
    s_mul_i32 s{sJ7}, s{sJ}, 37
    s_lshr_b32 s{sJ7}, s{sJ7}, 8
    s_mul_i32 s{sJM}, s{sJ7}, 7
    s_sub_u32 s{sJM}, s{sJ}, s{sJM}
    """)


def helper(a, hh, merged=False):
    vD = [2, 3, 4, 5, 6, 7, 8]
    vE, vO, vUT, vL16, vG, vGW = 10, 11, 12, 13, 14, 15
    GP = 7232
    XB = 8 * GP
    for i in range(7):
        a(f"""
        v_add_u32 v9, {64*i}, v1
        v_lshrrev_b32 v9, 3, v9
        v_mul_u32_u24 v9, 37, v9
        v_lshrrev_b32 v9, 8, v9
        v_and_b32 v9, 2, v9
        v_xor_b32 v9, v9, v1
        v_lshlrev_b32 v{vD[i]}, 4, v9
        """)
    a(f"""
    s_mul_i32 s{sT0}, s{hh}, {64*896}
    s_mul_i32 s{sT1}, s{sW}, {16*896}
    s_add_u32 s{sT0}, s{sT0}, s{sT1}
    s_mul_i32 s{sM}, s{sW}, {2*GP}
    s_waitcnt lgkmcnt(0)
    s_mov_b32 s{W2}, s{P_W2}
    s_mov_b32 s{W2+1}, s{P_W2+1}
    s_mov_b32 s{W2+2}, {1792*896}
    s_mov_b32 s{W2+3}, 0x20000
    """)
    for task, (srd, base) in enumerate(((W2, 0), (X, XB))):
        for g in range(2):
            for i in range(7):
                if i % 4 == 0:
                    a(f"s_add_u32 m0, s{sM}, {base + g*GP + 1024*i}\ns_add_u32 s{sT1}, s{sT0}, {g*7168 + 1024*i}")
                a(f"buffer_load_dwordx4 v{vD[i]}, {S(srd,4)}, s{sT1} offen offset:{1024*(i%4)} lds", tag=f"t{task}")
    if merged: epoch(a)
    a(f"""
    v_lshrrev_b32 v2, 4, v1
    v_lshlrev_b32 v{vGW}, 4, v2
    """)
    for jj in range(14):
        a(f"global_load_dwordx4 {R(64+4*jj,4)}, v{vGW}, {S(P_GW,2)} offset:{64*jj}")
    a(f"""
    s_and_b32 s{sT1}, s{sW}, 1
    s_lshr_b32 s{sT2}, s{sW}, 1
    s_mul_i32 s{sT3}, s{sT1}, {4*GP}
    s_mul_i32 s{sX}, s{sT2}, {14*32}
    s_add_u32 s{sT3}, s{sT3}, s{sX}
    v_mul_u32_u24 v3, {GP}, v2
    v_bfe_u32 v4, v1, 2, 2
    v_mul_u32_u24 v5, 896, v4
    v_and_b32 v6, 3, v1
    v_lshlrev_b32 v6, 3, v6
    v_add3_u32 v3, v3, v5, v6
    v_add_u32 v3, s{sT3}, v3
    v_and_b32 v4, 2, v4
    v_lshlrev_b32 v4, 4, v4
    v_add_u32 v{vE}, v3, v4
    v_sub_u32 v{vO}, v3, v4
    v_lshlrev_b32 v{vL16}, 4, v1
    v_and_b32 v3, 15, v1
    v_lshlrev_b32 v4, 12, v3
    v_lshl_add_u32 v{vUT}, v2, 4, v4
    v_lshrrev_b32 v4, 3, v3
    v_mul_u32_u24 v4, {GP}, v4
    v_and_b32 v5, 7, v1
    v_mul_u32_u24 v5, 896, v5
    v_and_b32 v6, 2, v1
    v_xor_b32 v6, v6, v2
    v_lshlrev_b32 v6, 4, v6
    v_add3_u32 v4, v4, v5, v6
    v_add_u32 v4, s{sM}, v4
    v_add_u32 v{vG}, {XB}, v4
    s_mul_i32 s{sH0}, s{sT2}, {14*56}
    s_lshl_b32 s{sX}, s{hh}, 1
    s_add_u32 s{sH0}, s{sH0}, s{sX}
    s_add_u32 s{sH0}, s{sH0}, s{sT1}
    s_lshl_b32 s{sH0}, s{sH0}, 10
    s_add_u32 s{sH0}, s{sH0}, {W2T}
    s_mul_i32 s{sH1}, s{sT2}, {14*16*4096}
    s_lshl_b32 s{sX}, s{hh}, 7
    s_add_u32 s{sH1}, s{sH1}, s{sX}
    s_lshl_b32 s{sX}, s{sT1}, 6
    s_add_u32 s{sH1}, s{sH1}, s{sX}
    s_add_u32 s{sH1}, s{sH1}, {UT}
    """)

    def transpose(sreg, step, vaddr):
        for i in range(14):
            for t in range(2):
                a(f"ds_read_b64_tr_b16 {R(128+4*i+2*t,2)}, v{vO if i & 1 else vE} offset:{32*i + 3584*t}")
        for i in range(14):
            a(f"buffer_store_dwordx4 {R(128+4*i,4)}, v{vaddr}, {S(WS,4)}, s{sreg} offen {SC}")
            if i < 13: a(f"s_add_u32 s{sreg}, s{sreg}, {step}")

    if merged:
        epoch2(a)
        a(f"s_lshl_b32 s{sF}, s{hh}, 2\ns_add_u32 s{sF}, s{sF}, {FL_P}\nv_mov_b32 v{vTAG}, s{sTAG}")
    a(f"""
    @wait t0
    s_barrier
    """)
    stamp(a, 1)
    a(f"""
    s_cmp_ge_u32 s{hh}, 28
    s_cbranch_scc1 Lskipw2_{a.name}
    """)
    transpose(sH0, 56 * 1024, vL16)
    a(f"""
    Lskipw2_{a.name}:
    v_add_u32 v{vE}, {XB}, v{vE}
    v_add_u32 v{vO}, {XB}, v{vO}
    s_waitcnt vmcnt(0)
    s_barrier
    """)
    if merged: a.add(flag_store(sF))
    stamp(a, 2)
    transpose(sH1, 16 * 4096, vUT)
    for jj in range(14):
        a(f"ds_read_b128 {R(192+4*jj,4)}, v{vG} offset:{64*jj}")
    for jj in range(14):
        a(f"v_mfma_f32_16x16x32_bf16 v[20:23], {R(64+4*jj,4)}, {R(192+4*jj,4)}, {'0' if jj == 0 else 'v[20:23]'}")
    a(f"""
    s_lshl_b32 s{sT0}, s{hh}, 8
    s_lshl_b32 s{sT1}, s{sW}, 6
    s_add_u32 s{sT0}, s{sT0}, s{sT1}
    s_add_u32 s{sT0}, s{sT0}, {GG}
    v_lshlrev_b32 v3, 2, v1
    v_mul_f32 v2, {LOG2E | 0x80000000}, v20
    v_exp_f32 v2, v2
    v_add_f32 v2, 1.0, v2
    v_rcp_f32 v2, v2
    s_mov_b64 exec, 0xffff
    buffer_store_dword v2, v3, {S(WS,4)}, s{sT0} offen {SC}
    s_mov_b64 exec, -1
    """)
    if not merged: return
    a(f"""
    s_add_u32 s{sF}, s{sF}, 128
    s_waitcnt vmcnt(0)
    s_barrier
    """)
    a.add(flag_store(sF))
    stamp(a, 3)
    stamps_out(a, 4)
    probe_out(a, True)
    a(f"""
    s_cmp_lg_u32 s{hh}, 31
    s_cbranch_scc1 Lend_{a.name}
    s_mov_b64 exec, -1
    v_and_b32 v2, 7, v1
    v_min_u32 v2, 6, v2
    v_lshrrev_b32 v3, 3, v1
    v_lshlrev_b32 v3, 7, v3
    v_lshl_add_u32 v2, v2, 4, v3
    v_lshlrev_b32 v3, 2, v1
    s_lshl_b32 s{sT0}, s{sW}, 10
    s_add_u32 s{sT0}, s{sT0}, {FL_H}
    s_mov_b32 s{sT1}, {FL_P}
    s_mov_b32 s{sCNT}, 0
    Lfin_{a.name}:
    !  buffer_load_dwordx4 v[4:7], v2, {S(WS,4)}, s{sT0} offen sc1
    !  buffer_load_dword v8, v3, {S(WS,4)}, s{sT1} offen sc1
    !  s_add_u32 s{sCNT}, s{sCNT}, 1
    !  s_cmp_lt_u32 s{sCNT}, {SPIN}
    !  s_waitcnt vmcnt(0)
    !  v_xor_b32 v4, v4, v{vTAG}
    !  v_xor_b32 v5, v5, v{vTAG}
    !  v_xor_b32 v6, v6, v{vTAG}
    !  v_xor_b32 v7, v7, v{vTAG}
    !  v_xor_b32 v8, v8, v{vTAG}
    !  v_or3_b32 v4, v4, v5, v6
    !  v_or3_b32 v4, v4, v7, v8
    !  v_cmp_ne_u32 vcc, 0, v4
    !  s_cbranch_vccz Lfin2_{a.name}
    !  s_cbranch_scc1 Lfin_{a.name}
    Lfin2_{a.name}:
    s_mov_b32 s{sF}, 0
    s_barrier
    """)
    a.add(flag_store(sF))


vXa, vWa, vA, vB, vL16 = 2, 6, 10, 12, 16
vKI = 20
ACC1, BIAS, FR = 64, 128, 160


def g1_setup(a):
    a(f"""
    s_lshr_b32 s{sRT}, s{sXCD}, 1
    s_lshl_b32 s{sRT}, s{sRT}, 2
    s_add_u32 s{sRT}, s{sRT}, s{sJ7}
    s_and_b32 s{sCT}, s{sXCD}, 1
    s_mul_i32 s{sCT}, s{sCT}, 7
    s_add_u32 s{sCT}, s{sCT}, s{sJM}
    s_lshl_b32 s{sX}, s{sRT}, 2
    s_add_u32 s{sX}, s{sX}, s{sW}
    s_mul_i32 s{sX}, s{sX}, {32*896}
    s_mul_i32 s{sWo}, s{sW}, {16*3584}
    s_lshl_b32 s{sT0}, s{sCT}, 8
    s_add_u32 s{sWo}, s{sWo}, s{sT0}
    s_lshl_b32 s{sM}, s{sW}, 12
    v_lshrrev_b32 v17, 3, v1
    v_lshrrev_b32 v18, 4, v1
    v_mul_u32_u24 v17, 896, v17
    v_and_b32 v19, 7, v1
    v_xor_b32 v19, v19, v18
    v_lshl_add_u32 v{vXa}, v19, 4, v17
    v_xor_b32 v17, 64, v{vXa}
    v_add_u32 v{vXa+1}, 6144, v17
    v_add_u32 v{vXa+2}, 12288, v{vXa}
    v_add_u32 v{vXa+3}, {6144+12288}, v17
    v_mul_u32_u24 v17, 3584, v18
    v_lshlrev_b32 v18, 2, v18
    v_xor_b32 v18, v18, v1
    v_and_b32 v18, 15, v18
    v_lshl_add_u32 v{vWa}, v18, 4, v17
    v_add_u32 v{vWa+1}, 13312, v{vWa}
    v_add_u32 v{vWa+2}, {2*13312}, v{vWa}
    v_add_u32 v{vWa+3}, {3*13312}, v{vWa}
    """)


def g1_dma(c):
    a = Asm()
    slot = c % 3
    a(f"s_add_u32 m0, s{sM}, {slot*16384}")
    if c: a(f"s_add_u32 s{sX}, s{sX}, 128")
    for i in range(4):
        a(f"buffer_load_dwordx4 v{vXa+i}, {S(X,4)}, s{sX} offen offset:{1024*i} lds", tag=f"c{c}")
    a(f"s_add_u32 m0, s{sM}, {49152 + slot*16384}")
    if c: a(f"s_add_u32 s{sWo}, s{sWo}, {64*3584}")
    for i in range(4):
        a(f"buffer_load_dwordx4 v{vWa+i}, {S(W1,4)}, s{sWo} offen offset:{1024*i} lds", tag=f"c{c}")
    return a.ins


def g1_setup2(a):
    a(f"""
    s_lshr_b32 s{sT0}, s{sW}, 1
    s_and_b32 s{sT1}, s{sW}, 1
    s_mul_i32 s{sP}, s{sXCD}, 28
    s_add_u32 s{sP}, s{sP}, s{sJ}
    v_lshrrev_b32 v17, 5, v1
    s_lshl_b32 s{sT2}, s{sCT}, 1
    s_add_u32 s{sT2}, s{sT2}, s{sT0}
    s_lshl_b32 s{sT2}, s{sT2}, 7
    v_lshl_add_u32 v18, v17, 5, s{sT2}
    global_load_dwordx4 {R(FR,4)}, v18, {S(P_B1,2)}
    global_load_dwordx4 {R(FR+4,4)}, v18, {S(P_B1,2)} offset:16
    global_load_dwordx4 {R(FR+8,4)}, v18, {S(P_B1,2)} offset:64
    global_load_dwordx4 {R(FR+12,4)}, v18, {S(P_B1,2)} offset:80
    s_lshl_b32 s{sT2}, s{sP}, 2
    s_load_dword s{sDT}, {S(P_DT,2)}, s{sT2}
    s_load_dword s{sDS}, {S(P_DS,2)}, s{sT2}
    s_load_dwordx2 {S(OUT,2)}, s[0:1], 104
    s_add_u32 s{sT2}, s{sT2}, s{sW}
    s_lshl_b32 s{sT2}, s{sT2}, 8
    v_lshl_add_u32 v18, v1, 2, s{sT2}
    global_load_dword v{vKI}, v18, {S(P_LA,2)}
    global_load_dword v{vKI+1}, v18, {S(P_AI,2)}
    global_load_dword v{vKI+2}, v18, {S(P_CR,2)}
    global_load_dword v{vKI+3}, v18, {S(P_CI,2)}
    """)


def g1_setup3(a):
    a(f"""
    v_bfe_u32 v18, v1, 2, 2
    v_lshl_add_u32 v19, v17, 3, v18
    v_lshlrev_b32 v19, 8, v19
    s_lshl_b32 s{sT2}, s{sT0}, 1
    v_xor_b32 v18, s{sT2}, v18
    v_lshl_add_u32 v19, v18, 6, v19
    v_and_b32 v18, 1, v1
    v_lshl_add_u32 v19, v18, 5, v19
    v_and_b32 v18, 16, v1
    v_add_u32 v19, v18, v19
    v_and_b32 v18, 2, v1
    v_lshl_add_u32 v19, v18, 2, v19
    v_add_u32 v{vA}, 49152, v19
    v_xor_b32 v{vA+1}, 64, v{vA}
    v_and_b32 v18, 31, v1
    v_lshlrev_b32 v18, 7, v18
    v_bfe_u32 v19, v1, 1, 3
    v_xor_b32 v19, v19, v17
    v_lshl_add_u32 v18, v19, 4, v18
    s_lshl_b32 s{sT2}, s{sT1}, 13
    v_add_u32 v{vB}, s{sT2}, v18
    v_xor_b32 v{vB+1}, 32, v{vB}
    v_xor_b32 v{vB+2}, 64, v{vB}
    v_xor_b32 v{vB+3}, 96, v{vB}
    v_lshlrev_b32 v{vL16}, 4, v1
    s_lshl_b32 s{sH0}, s{sRT}, 1
    s_add_u32 s{sH0}, s{sH0}, s{sT1}
    s_mul_i32 s{sH0}, s{sH0}, 224
    s_lshl_b32 s{sT2}, s{sCT}, 1
    s_add_u32 s{sT2}, s{sT2}, s{sT0}
    s_lshl_b32 s{sT2}, s{sT2}, 2
    s_add_u32 s{sH0}, s{sH0}, s{sT2}
    s_lshl_b32 s{sH0}, s{sH0}, 10
    s_add_u32 s{sH0}, s{sH0}, {HH}
    s_add_u32 s{sH1}, s{sH0}, {112*1024}
    """)
    for k in range(16):
        a(f"v_lshlrev_b32 v{BIAS+2*k}, 16, v{FR+k}\nv_and_b32 v{BIAS+2*k+1}, 0xffff0000, v{FR+k}")


def g1_reads(t):
    c, s = divmod(t, 4)
    slot = c % 3
    b = FR + 16 * (t & 1)
    A = lambda tf: [Ins(f"ds_read_b64_tr_b16 {R(b+4*tf+2*h,2)}, v{vA+tf} offset:{slot*16384 + (16*s+4*h)*256}") for h in range(2)]
    B = lambda tl: [Ins(f"ds_read_b128 {R(b+8+4*tl,4)}, v{vB+s} offset:{slot*16384 + 4096*tl}")]
    return A(0) + B(0) + B(1) + A(1)


def gemm1(a, hook={}):
    a("@wait c0\ns_barrier")
    stamp(a, 1)
    a.add(g1_reads(0))
    for t in range(28):
        c, s = divmod(t, 4)
        b = FR + 16 * (t & 1)
        mf = []
        for tf in range(2):
            for tl in range(2):
                d = R(ACC1 + 32*tf + 16*tl, 16)
                mf.append(Ins(f"v_mfma_f32_32x32x16_bf16 {d}, {R(b+4*tf,4)}, {R(b+8+4*tl,4)}, {R(BIAS+16*tf,16) if t == 0 else d}"))
        rd = g1_reads(t + 1) if t < 27 else []
        dma = []
        if s == 3 and c < 6:
            a("@lgkm0")
            a.add(mf[:1])
            a(f"@wait c{c+1}\ns_barrier")
            if c + 3 < 7: dma = g1_dma(c + 3)
        else:
            a.add(mf[:1])
        a.add(rd[:3]); a.add(mf[1:2]); a.add(rd[3:]); a.add(mf[2:3]); a.add(dma[:6]); a.add(mf[3:4]); a.add(dma[6:])
        a.add(hook.get(t, []))


def g1_epilogue(a):
    for tf in range(2):
        for tl in range(2):
            d = ACC1 + 32*tf + 16*tl
            o = FR + 16*tf + 8*tl
            for r in range(16): a(f"v_max_f32 v{d+r}, 0, v{d+r}")
            for r in range(0, 16, 2): a(f"v_pk_mul_f32 {R(d+r,2)}, {R(d+r,2)}, {R(d+r,2)}")
            for r in range(0, 16, 2): a(f"v_cvt_pk_bf16_f32 v{o+r//2}, v{d+r}, v{d+r+1}")
            for s in range(2):
                a(f"buffer_store_dwordx4 {R(o+4*s,4)}, v{vL16}, {S(WS,4)}, s{sH1 if tl else sH0} offen offset:{(2*tf+s)*1024} {SC}", tag="hst")


UL = 24


def u_load(a):
    a(f"""
    s_lshl_b32 s{sX}, s{sP}, 2
    s_add_u32 s{sX}, s{sX}, s{sW}
    s_lshl_b32 s{sX}, s{sX}, 11
    s_add_u32 s{sX}, s{sX}, {UT}
    s_sub_u32 s{sWo}, s{sX}, 4
    """)
    for i in range(2):
        a(f"buffer_load_dwordx4 {R(UL+4*i,4)}, v{vL16}, {S(WS,4)}, s{sX} offen offset:{1024*i} {SC}")
        a(f"buffer_load_dword v{UL+8+i}, v{vL16}, {S(WS,4)}, s{sWo} offen offset:{1024*i} {SC}")


def u_stage(a):
    T = UL + 12
    a(f"""
    s_lshr_b32 s{sX}, s{sW}, 1
    s_and_b32 s{sWo}, s{sW}, 1
    s_mul_i32 s{sX}, s{sX}, 8320
    s_lshl_b32 s{sM}, s{sWo}, 11
    s_add_u32 s{sM}, s{sM}, s{sX}
    s_add_u32 s{sM}, s{sM}, {UBASE + 32}
    v_add_u32 v44, s{sM}, v{vL16}
    v_or_b32 v45, s{sWo}, v1
    v_cmp_eq_u32 vcc, 0, v45
    v_cndmask_b32 v{UL+8}, v{UL+8}, v45, vcc
    """)
    for i in range(2):
        d = UL + 4*i
        a(f"ds_write_b128 v44, {R(d,4)} offset:{1024*i}")
        a(f"v_alignbit_b32 v{T+4*i}, v{d}, v{UL+8+i}, 16")
        for k in range(1, 4): a(f"v_alignbit_b32 v{T+4*i+k}, v{d+k}, v{d+k-1}, 16")
        a(f"ds_write_b128 v44, {R(T+4*i,4)} offset:{4160 + 1024*i}")
    a(f"""
    s_mul_i32 s{sM}, s{sW}, 4160
    s_add_u32 s{sM}, s{sM}, {UBASE}
    v_and_b32 v45, 7, v1
    v_lshl_add_u32 v45, v45, 2, s{sM}
    v_mov_b32 v46, 0
    ds_write_b32 v45, v46
    """)


def kgen(a):
    E1, E2, E4, E8, E256, CC, SS, TT, TM = (64 + 4*i for i in range(9))
    WR = 104
    vK, vKA, vKB, vR = 2, 3, 4, 5
    cnt = [0]

    def cmul(d, x, y):
        for n in range(2):
            a(f"v_pk_mul_f32 {R(TM+2*n,2)}, {R(x+2*n,2)}, {R(y+2*n,2)} op_sel:[0,0] op_sel_hi:[0,1]")
        for n in range(2):
            a(f"v_pk_fma_f32 {R(d+2*n,2)}, {R(x+2*n,2)}, {R(y+2*n,2)}, {R(TM+2*n,2)} op_sel:[1,1,0] op_sel_hi:[1,0,1] neg_lo:[1,0,0]")

    def put(row, x, neg):
        w = WR + 2 * (cnt[0] & 3); cnt[0] += 1
        for n in range(2):
            a(f"v_cvt_pk_bf16_f32 v{w+n}, v{x+2*n}, {'-' if neg else ''}v{x+2*n+1}")
        a(f"ds_write_b64 v{vK}, {R(w,2)} offset:{row*528}")

    ER, ZI, DT = 112, 114, 116
    a(f"""
    s_lshr_b32 s{sT0}, s{sW}, 1
    s_lshl_b32 s{sT0}, s{sT0}, 4
    s_lshr_b32 s{sDT}, s{sDT}, s{sT0}
    s_lshl_b32 s{sDT}, s{sDT}, 16
    s_lshr_b32 s{sDS}, s{sDS}, s{sT0}
    s_lshl_b32 s{sDS}, s{sDS}, 16
    s_mul_i32 s{sT1}, s{sW}, {KREG}
    v_lshl_add_u32 v{vK}, v1, 3, s{sT1}
    v_mov_b32 v{DT}, {LOG2E}
    v_mul_f32 v{DT}, s{sDT}, v{DT}
    v_exp_f32 v{DT}, v{DT}
    v_lshlrev_b32 v{ER}, 16, v{vKI}
    v_and_b32 v{ER+1}, 0xffff0000, v{vKI}
    v_cvt_pk_bf16_f32 v{DT}, v{DT}, v{DT}
    v_mul_f32 v{ER}, {LOG2E}, v{ER}
    v_mul_f32 v{ER+1}, {LOG2E}, v{ER+1}
    v_exp_f32 v{ER}, v{ER}
    v_exp_f32 v{ER+1}, v{ER+1}
    v_lshlrev_b32 v{DT}, 16, v{DT}
    v_lshlrev_b32 v{ZI}, 16, v{vKI+1}
    v_and_b32 v{ZI+1}, 0xffff0000, v{vKI+1}
    v_cvt_pk_bf16_f32 v{ER+1}, v{ER}, v{ER+1}
    v_mul_f32 v{ZI}, v{ZI}, v{DT}
    v_mul_f32 v{ZI+1}, v{ZI+1}, v{DT}
    v_lshlrev_b32 v{ER}, 16, v{ER+1}
    v_and_b32 v{ER+1}, 0xffff0000, v{ER+1}
    v_mul_f32 v{ZI}, 0.15915494, v{ZI}
    v_mul_f32 v{ZI+1}, 0.15915494, v{ZI+1}
    v_mul_f32 v{ER}, v{ER}, v{DT}
    v_mul_f32 v{ER+1}, v{ER+1}, v{DT}
    v_mul_f32 v{ER}, {LOG2E | 0x80000000}, v{ER}
    v_mul_f32 v{ER+1}, {LOG2E | 0x80000000}, v{ER+1}
    v_add_f32 v{DT}, v{DT}, v{DT}
    v_lshlrev_b32 v{CC}, 16, v{vKI+2}
    v_lshlrev_b32 v{CC+1}, 16, v{vKI+3}
    v_and_b32 v{CC+2}, 0xffff0000, v{vKI+2}
    v_and_b32 v{CC+3}, 0xffff0000, v{vKI+3}
    v_pk_mul_f32 {R(CC,2)}, {R(CC,2)}, {R(DT,2)} op_sel_hi:[1,0]
    v_pk_mul_f32 {R(CC+2,2)}, {R(CC+2,2)}, {R(DT,2)} op_sel_hi:[1,0]
    """)
    for E, p in ((E8, 0x41000000), (E1, None), (E256, 0x43800000)):
        for n in range(2):
            if p:
                a(f"v_mul_f32 v{TM+2*n}, {p}, v{ER+n}\nv_mul_f32 v{TM+2*n+1}, {p}, v{ZI+n}")
                a(f"v_exp_f32 v{TM+2*n}, v{TM+2*n}\nv_fract_f32 v{TM+2*n+1}, v{TM+2*n+1}")
            else:
                a(f"v_exp_f32 v{TM+2*n}, v{ER+n}\nv_fract_f32 v{TM+2*n+1}, v{ZI+n}")
            a(f"v_cos_f32 v{E+2*n}, v{TM+2*n+1}\nv_sin_f32 v{E+2*n+1}, v{TM+2*n+1}")
        for n in range(2):
            a(f"v_pk_mul_f32 {R(E+2*n,2)}, {R(E+2*n,2)}, {R(TM+2*n,2)} op_sel_hi:[1,0]")
    a(f"v_mov_b32 v{WR+6}, 0x3f80\nv_mov_b32 v{WR+7}, 0x3f80\nds_write_b64 v{vK}, {R(WR+6,2)} offset:{32*528}")
    put(33, E8, False)
    cmul(SS, E8, E8); put(34, SS, False)
    for b in range(3, 32):
        cmul(SS, SS, E8); put(32 + b, SS, False)
    put(0, CC, True)
    cmul(SS, CC, E1); put(1, SS, True)
    for r in range(2, 8):
        cmul(SS, SS, E1); put(r, SS, True)
    cmul(E2, E1, E1); cmul(E4, E2, E2)
    cmul(TT, CC, E256); put(8, TT, True)
    cmul(SS, TT, E2); put(9, SS, True)
    for r in (10, 13, 14):
        cmul(SS, SS, E2); put(r, SS, True)
    for r in (16, 20):
        cmul(TT, TT, E256); put(r, TT, True)
        cmul(SS, TT, E4); put(r + 1, SS, True)
        cmul(SS, SS, E4); put(r + 2, SS, True)
    for r in (24, 26, 28, 30):
        cmul(TT, TT, E256); put(r, TT, True)
        cmul(SS, TT, E8); put(r + 1, SS, True)
    a.mark = len(a.ins)
    a(f"""
    v_and_b32 v6, 31, v1
    v_lshrrev_b32 v7, 5, v1
    v_mul_u32_u24 v8, 528, v6
    v_lshl_add_u32 v8, v7, 4, v8
    v_add_u32 v{vKB}, s{sT1}, v8
    v_cmp_eq_u32 vcc, 12, v6
    v_subrev_u32 v8, {2*528}, v{vKB}
    v_cndmask_b32 v{vKA}, v{vKB}, v8, vcc
    """)
    D, FA, FB = 64, 128, 192
    for s in range(16):
        a(f"ds_read_b128 {R(FA+4*s,4)}, v{vKA} offset:{32*s}")
        a(f"ds_read_b128 {R(FB+4*s,4)}, v{vKB} offset:{32*528 + 32*s}")
        if s >= 2:
            k = s - 2
            a(f"v_mfma_f32_32x32x16_bf16 {R(D,16)}, {R(FA+4*k,4)}, {R(FB+4*k,4)}, {'0' if k == 0 else R(D,16)}")
    for k in (14, 15):
        a(f"v_mfma_f32_32x32x16_bf16 {R(D,16)}, {R(FA+4*k,4)}, {R(FB+4*k,4)}, {R(D,16)}")
    a(f"""
    v_add_u32 v8, s{sT1}, v{vL16}
    s_xor_b32 s{sT2}, s{sW}, 1
    s_mul_i32 s{sT2}, s{sT2}, {KREG}
    v_add_u32 v9, s{sT2}, v{vL16}
    v_mov_b32 v100, 0
    v_mov_b32 v101, 0
    v_mov_b32 v102, 0
    v_mov_b32 v103, 0
    v_cmp_eq_u32 vcc, 0, v1
    v_mov_b32 v10, s{sDS}
    v_lshlrev_b32 v11, 4, v6
    v_cndmask_b32 v10, 0, v10, vcc
    v_sub_u32 v11, s{sT1}, v11
    v_and_b32 v6, 1, v1
    v_cmp_eq_u32 vcc, 1, v6
    """)
    for q in range(4): a(f"ds_write_b128 v8, {R(D+4*q,4)} offset:{8192 + 1024*q}")
    a(f"ds_write_b128 v8, v[100:103] offset:4096")
    a("s_barrier")
    stamp(a, 7)
    for q in range(4): a(f"ds_read_b128 {R(80+4*q,4)}, v9 offset:{8192 + 1024*q}")
    a(f"""
    v_lshlrev_b32 v6, 3, v7
    v_sub_u32 v12, v11, v6
    v_lshlrev_b32 v6, 9, v7
    v_sub_u32 v13, v11, v6
    v_sub_u32 v14, v13, v6
    v_add_u32 v12, 3576, v12
    v_add_u32 v13, 3056, v13
    v_add_u32 v14, 1520, v14
    v_add_f32 v{D}, v{D}, v10
    """)
    for k in range(0, 16, 2): a(f"v_pk_add_f32 {R(D+k,2)}, {R(D+k,2)}, {R(80+k,2)}")
    O = 96
    cv = lambda o, x, y: a(f"v_cvt_pk_bf16_f32 v{o}, v{x}, v{y}")
    cv(O, D+3, D+2); cv(O+1, D+1, D); a(f"ds_write_b64 v12, {R(O,2)} offset:512")
    cv(O+2, D+6, D+5); cv(O+3, D+4, D+4); a(f"ds_write_b64 v12, {R(O+2,2)}")
    cv(O+4, D+10, D+10); cv(O+5, D+9, D+9); cv(O+6, D+9, D+8); cv(O+7, D+8, D+8); a(f"ds_write_b128 v13, {R(O+4,4)}")
    for t in range(2):
        e0, e1, o = D+12+2*t, D+13+2*t, O+8+4*t
        a(f"v_cndmask_b32 v6, v{e0}, v{e1}, vcc")
        cv(o, e1, e1); cv(o+1, e1, 6); cv(o+2, e0, e0); cv(o+3, e0, e0)
        a(f"ds_write_b128 v14, {R(o,4)} offset:{512*(1-t)}")


def conv(a, mid=[], pre_x=[], post_x=[]):
    vU, vKf = 2, 6
    ACC, F = 32, 64
    a(f"""
    s_lshr_b32 s{sT0}, s{sW}, 1
    s_and_b32 s{sT2}, s{sW}, 1
    s_mul_i32 s{sT0}, s{sT0}, 8320
    s_lshl_b32 s{sT2}, s{sT2}, 8
    s_sub_u32 s{sT0}, s{sT0}, s{sT2}
    s_add_u32 s{sT0}, s{sT0}, {UBASE + 4160 + 4*65}
    v_lshrrev_b32 v7, 4, v1
    v_bfe_u32 v8, v1, 1, 3
    v_lshlrev_b32 v8, 2, v8
    v_lshl_add_u32 v8, v7, 4, v8
    v_and_b32 v9, 1, v1
    v_mul_u32_u24 v9, 4160, v9
    v_sub_u32 v8, v8, v9
    v_add_u32 v{vU}, s{sT0}, v8
    v_add_u32 v{vU+1}, 1024, v{vU}
    v_add_u32 v{vU+2}, 2048, v{vU}
    v_add_u32 v{vU+3}, 3072, v{vU}
    s_sub_u32 s{sT0}, s{sT1}, s{sT2}
    s_add_u32 s{sT0}, s{sT0}, {4512 - 3584 - 192}
    v_and_b32 v8, 15, v1
    v_lshlrev_b32 v8, 5, v8
    v_lshlrev_b32 v9, 4, v7
    v_sub_u32 v8, v9, v8
    v_add_u32 v{vKf}, s{sT0}, v8
    """)

    def reads(r):
        b = F + 64 * (r & 1)
        out = []
        for i in range(8):
            o = 128 * (i & 1) + 16 * (3 - r)
            out.append(Ins(f"ds_read_b128 {R(b+32+4*i,4)}, v{vKf} offset:{512*(7-i) + 64*(3-r)}"))
            out.append(Ins(f"ds_read2_b32 {R(b+4*i,2)}, v{vU+(i>>1)} offset0:{o} offset1:{o+1}"))
            out.append(Ins(f"ds_read2_b32 {R(b+4*i+2,2)}, v{vU+(i>>1)} offset0:{o+2} offset1:{o+3}"))
        return out

    order = sorted(((t, d) for t in range(8) for d in range(8) if t + d < 8), key=lambda x: (max(x), x[0] + x[1], x[0]))
    a.add(reads(0))
    for r in range(4):
        b = F + 64 * (r & 1)
        rd = reads(r + 1) if r < 3 else []
        seen = set()
        for k, (t, d) in enumerate(order):
            c = t + d
            acc = R(ACC + 4*c, 4)
            first = r == 0 and c not in seen
            seen.add(c)
            a(f"v_mfma_f32_16x16x32_bf16 {acc}, {R(b+4*d,4)}, {R(b+32+4*t,4)}, {'0' if first else acc}")
            if k >= 10 and rd: a.add([rd.pop(0)])
            if r == 3 and k == 0: a.add(mid)
    a.add(pre_x)
    a(f"""
    v_add_u32 v8, s{sT1}, v{vL16}
    s_lshl_b32 s{sT0}, s{sW}, 11
    v_add_u32 v9, s{sT0}, v{vL16}
    v_add_u32 v10, {2*KREG}, v9
    v_and_b32 v11, 15, v1
    v_lshlrev_b32 v11, 6, v11
    v_lshl_add_u32 v11, v7, 4, v11
    s_lshl_b32 s{sT2}, s{sP}, 13
    s_add_u32 s{sT2}, s{sT2}, s{sT0}
    s_add_u32 s{sT2}, s{sT2}, {A2}
    """)
    post_x = list(post_x)
    for c in range(8):
        a(f"ds_write_b128 v8, {R(ACC+4*c,4)} offset:{16384 + 1024*c}")
        for _ in range(2):
            if post_x: a.add(post_x.pop(0))
    a("s_barrier")
    for i in range(2):
        for w in range(4):
            a(f"ds_read_b128 {R(F+16*i+4*w,4)}, v{9 + (w>>1)} offset:{16384 + KREG*(w&1) + 1024*i}")
    for i in range(2):
        b = F + 16*i
        for k in (0, 2, 8, 10): a(f"v_pk_add_f32 {R(b+k,2)}, {R(b+k,2)}, {R(b+k+4,2)}")
        for k in range(4): a(f"v_cvt_pk_bf16_f32 v{b+4+k}, v{b+k}, v{b+8+k}")
        a(f"buffer_store_dwordx4 {R(b+4,4)}, v11, {S(WS,4)}, s{sT2} offen offset:{1024*i} {SC}", tag="ast")


def w2_setup(a):
    a(f"""
    s_mul_i32 s{sW2}, s{sJM}, {4*56}
    s_mul_i32 s{sF}, s{sW}, 14
    s_add_u32 s{sW2}, s{sW2}, s{sF}
    s_lshl_b32 s{sW2}, s{sW2}, 10
    s_add_u32 s{sW2}, s{sW2}, {W2T}
    v_bfe_u32 v17, v1, 4, 1
    v_mul_u32_u24 v17, {56*1024}, v17
    v_lshrrev_b32 v18, 5, v1
    v_lshl_add_u32 v17, v18, 9, v17
    v_and_b32 v18, 3, v1
    v_lshl_add_u32 v17, v18, 4, v17
    v_and_b32 v18, 4, v1
    v_lshl_add_u32 v17, v18, 5, v17
    v_and_b32 v18, 8, v1
    v_lshl_add_u32 v17, v18, 3, v17
    v_add_u32 v18, {112*1024}, v17
    """)


def w2_groups():
    g = []
    for fb in range(14):
        for s in range(2):
            for td in range(2):
                o = Asm()
                if fb and fb % 4 == 0 and s == 0 and td == 0: o(f"s_add_u32 s{sW2}, s{sW2}, 4096")
                o(f"buffer_load_dwordx4 {R(8*(2*fb+s)+4*td,4,'a')}, v{17+td}, {S(WS,4)}, s{sW2} offen offset:{1024*(fb%4) + 256*s} {SC}")
                g.append(o.ins)
    return g


HB, NB = 128, 32
vPH, vFH, vPA, vFA = 12, 13, 14, 15


def g2_setup(a):
    a(f"""
    s_lshl_b32 s{sRT}, s{sXCD}, 2
    s_add_u32 s{sRT}, s{sRT}, s{sJ7}
    s_mul_i32 s{sH0}, s{sRT}, 224
    s_mul_i32 s{sX}, s{sW}, 28
    s_add_u32 s{sH0}, s{sH0}, s{sX}
    s_lshl_b32 s{sH0}, s{sH0}, 10
    s_add_u32 s{sH0}, s{sH0}, {HH}
    v_min_u32 v{vPH}, 6, v1
    v_lshl_add_u32 v{vPH}, v{vPH}, 2, s{sX}
    s_lshl_b32 s{sX}, s{sRT}, 7
    s_add_u32 s{sX}, s{sX}, {FL_H}
    {poll_load(vFH, vPH, f's{sX}')}
    s_lshr_b32 s{sF}, s{sP}, 5
    s_lshl_b32 s{sF}, s{sF}, 2
    s_add_u32 s{sF}, s{sF}, s{sW}
    s_lshl_b32 s{sF}, s{sF}, 5
    s_and_b32 s{sWo}, s{sP}, 31
    s_add_u32 s{sF}, s{sF}, s{sWo}
    s_lshl_b32 s{sF}, s{sF}, 2
    s_add_u32 s{sF}, s{sF}, {FL_A}
    s_lshl_b32 s{sWo}, s{sJM}, 2
    s_lshr_b32 s{sM}, s{sXCD}, 1
    s_add_u32 s{sWo}, s{sWo}, s{sM}
    s_lshl_b32 s{sWo}, s{sWo}, 2
    s_add_u32 s{sWo}, s{sWo}, s{sW}
    s_lshl_b32 s{sWo}, s{sWo}, 5
    s_add_u32 s{sWo}, s{sWo}, {FL_A}
    v_and_b32 v{vPA}, 7, v1
    v_lshlrev_b32 v{vPA}, 2, v{vPA}
    """)


def slot(i): return HB + 4 * ((i + 16) % NB)


def hload(i):
    out = Asm()
    tl, k = divmod(i, 28)
    if i and k % 4 == 0: out(f"s_add_u32 s{sH0}, s{sH0}, {4096 if k else (112-24)*1024}")
    out(f"buffer_load_dwordx4 {R(slot(i),4)}, v{vL16}, {S(WS,4)}, s{sH0} offen offset:{1024*(k%4)} {SC}")
    return out.ins


def gemm2(a, done, PRE=24, I_FLAG=16, I_POLL=34, I_CHK=44):
    ACC = 32
    AV, GV, PT = 20, 28, 96
    B2 = slot(24)
    vA2, vO, vX = 2, 3, 4
    for i in range(done, PRE): a.add(hload(i))
    a(f"""
    v_and_b32 v5, 31, v1
    v_lshrrev_b32 v6, 5, v1
    s_lshl_b32 s{sT0}, s{sJM}, 2
    s_add_u32 s{sT0}, s{sT0}, s{sW}
    s_lshl_b32 s{sT2}, s{sT0}, 5
    v_lshl_add_u32 v7, v6, 4, s{sT2}
    global_load_dwordx4 {R(8,4)}, v7, {S(P_B2,2)}
    v_mul_u32_u24 v{vO}, 896, v5
    v_add_u32 v{vO}, v{vO}, v7
    s_mul_i32 s{sH1}, s{sRT}, {64*896}
    v_lshlrev_b32 v5, 2, v5
    v_lshl_add_u32 v{vA2}, v6, 15, v5
    s_lshl_b32 s{sT0}, s{sT0}, 16
    s_lshl_b32 s{sT2}, s{sRT}, 8
    s_add_u32 s{sT0}, s{sT0}, s{sT2}
    s_add_u32 s{sT0}, s{sT0}, {A2}
    s_add_u32 s{sT2}, s{sT2}, {GG}
    v_add_u32 v{vX}, s{sT1}, v{vL16}
    s_lshl_b32 s{sT3}, s{sW}, 11
    v_add_u32 v6, s{sT3}, v{vL16}
    v_add_u32 v7, {2*KREG}, v6
    """)
    for tl in range(2):
        a(f"buffer_load_dword v{GV+2*tl}, v5, {S(WS,4)}, s{sT2} offen offset:{128*tl} {SC}")

    def aload():
        o = Asm()
        o.add(poll_check("a", vFA, vPA, f"s{sWo}"))
        stamp(o, 10)
        for i in range(4):
            for tl in range(2):
                o(f"buffer_load_dword v{AV+4*tl+i}, v{vA2}, {S(WS,4)}, s{sT0} offen offset:{128*tl} {SC}")
            if i < 3: o(f"s_add_u32 s{sT0}, s{sT0}, 8192")
        return o.ins

    def reduce(tl, P):
        o = Asm()
        for td in range(2):
            for q in range(4):
                o(f"ds_write_b128 v{vX}, {R(ACC+32*tl+16*td+4*q,4)} offset:{8192*tl + 1024*(4*td+q)}")
        o("s_barrier")
        for w in range(4):
            for q in range(2):
                o(f"ds_read_b128 {R(P+8*w+4*q,4)}, v{6+(w>>1)} offset:{8192*tl + KREG*(w&1) + 1024*q}")
        if tl == 0:
            for k in range(4): o(f"v_lshlrev_b32 v{B2+2*k}, 16, v{8+k}\nv_and_b32 v{B2+2*k+1}, 0xffff0000, v{8+k}")
        n = len(o.ins)
        for k in range(0, 8, 2): o(f"v_pk_add_f32 {R(P+k,2)}, {R(P+k,2)}, {R(B2+k,2)}")
        for w in range(1, 4):
            for k in range(0, 8, 2): o(f"v_pk_add_f32 {R(P+k,2)}, {R(P+k,2)}, {R(P+8*w+k,2)}")
        return o.ins[:n], o.ins[n:]

    def mix(tl, P, U):
        o = Asm()
        for k in range(4): o(f"v_lshlrev_b32 v{U+2*k}, 16, v{AV+4*tl+k}\nv_and_b32 v{U+2*k+1}, 0xffff0000, v{AV+4*tl+k}")
        n = len(o.ins)
        for k in range(0, 8, 2): o(f"v_pk_add_f32 {R(U+k,2)}, {R(U+k,2)}, {R(P+k,2)} neg_lo:[0,1] neg_hi:[0,1]")
        for k in range(0, 8, 2): o(f"v_pk_fma_f32 {R(U+k,2)}, {R(U+k,2)}, {R(GV+2*tl,2)}, {R(P+k,2)} op_sel_hi:[1,0,1]")
        for k in range(4): o(f"v_cvt_pk_bf16_f32 v{U+8+k}, v{U+2*k}, v{U+2*k+1}")
        if tl: o(f"s_add_u32 s{sH1}, s{sH1}, {32*896}")
        o(f"buffer_store_dwordx4 {R(U+8,4)}, v{vO}, {S(OUT,4)}, s{sH1} offen")
        return o.ins[:n], o.ins[n:]

    r0 = reduce(0, PT)
    fin = r0[0] + r0[1]
    for i in range(56):
        tl, k = divmod(i, 28)
        if i == I_FLAG: a("@wait ast"); a.add(flag_store(sF))
        if i == I_POLL: a(poll_load(vFA, vPA, f"s{sWo}"))
        if i == I_CHK: a.add(aload())
        for td in range(2):
            acc = R(ACC + 32*tl + 16*td, 16)
            a(f"v_mfma_f32_32x32x16_bf16 {acc}, {R(8*k+4*td,4,'a')}, {R(slot(i),4)}, {'0' if k == 0 else acc}")
            if td == 0 and i + PRE < 56: a.add(hload(i + PRE))
            if tl == 1 and k >= 4:
                for _ in range(2):
                    if fin: a.add([fin.pop(0)])
    a.add(fin)
    stamp(a, 11)
    P1 = slot(0)
    r1 = reduce(1, P1)
    m0 = mix(0, PT, ACC)
    m1 = mix(1, P1, ACC + 16)
    a.add(r1[0]); a.add(m0[0]); a.add(m0[1]); a.add(m1[0]); a.add(r1[1]); a.add(m1[1])


def build_merged(N_FLAG=250, N_POLL=252, N_CHK=380, EVERY=13):
    name = NAME + "_kernel"
    a = Asm(); a.name = "k"
    stamp(a, 0)
    prologue(a, 256)
    a("s_cmp_lt_u32 s2, 32\ns_cbranch_scc1 Lhelper")
    mapping(a, 4); g1_setup(a)
    a.add(g1_dma(0)); epoch(a); g1_setup2(a); a.add(g1_dma(1)); a.add(g1_dma(2)); g1_setup3(a)
    o = Asm(); w2_setup(o); epoch2(o)
    o(f"""
    v_mov_b32 v{vTAG}, s{sTAG}
    v_and_b32 v34, 31, v1
    v_lshlrev_b32 v34, 2, v34
    s_mov_b32 s{sHH}, {FL_P}
    s_lshl_b32 s{sF}, s{sRT}, 1
    s_and_b32 s{sT0}, s{sW}, 1
    s_add_u32 s{sF}, s{sF}, s{sT0}
    s_lshl_b32 s{sF}, s{sF}, 4
    s_add_u32 s{sF}, s{sF}, s{sCT}
    s_lshl_b32 s{sF}, s{sF}, 1
    s_lshr_b32 s{sT0}, s{sW}, 1
    s_add_u32 s{sF}, s{sF}, s{sT0}
    s_lshl_b32 s{sF}, s{sF}, 2
    s_add_u32 s{sF}, s{sF}, {FL_H}
    """)
    hook = {}
    for t in range(16, 24): hook[t] = o.ins[4*(t-16):4*(t-15)]
    hook[23] += o.ins[32:]
    hook[24] = L(poll_load(35, 34, f"s{sHH}"))
    gemm1(a, hook)
    stamp(a, 2)
    a.add(poll_check("w2", 35, 34, f"s{sHH}"))
    stamp(a, 3)
    m = Asm()
    g1_epilogue(m)
    m(f"s_add_u32 s{sHH}, s{sHH}, 128\ns_barrier")
    stamp(m, 4)
    k = Asm(); kgen(k)
    ul = Asm(); stamp(ul, 6); u_load(ul)
    us = Asm(); u_stage(us)
    fl = Asm(); fl("@wait hst"); fl.add(flag_store(sF)); stamp(fl, 5)
    ki = k.ins
    m.add(ki[:N_FLAG]); m.add(fl); m.add(ki[N_FLAG:N_POLL]); m(poll_load(35, 34, f"s{sHH}"))
    m.add(ki[N_POLL:N_CHK]); m.add(poll_check("ut", 35, 34, f"s{sHH}")); m.add(ul)
    m.add(ki[N_CHK:k.mark]); m.add(us); m.add(ki[k.mark:])
    g = Asm(); g2_setup(g)
    px = Asm(); stamp(px, 8); px.add(poll_check("h", vFH, vPH, f"s{sX}")); stamp(px, 9)
    conv(m, g.ins, px.ins, [hload(i) for i in range(16)])
    a.add(weave(m.ins, w2_groups(), 0, EVERY))
    gemm2(a, 16)
    stamp(a, 12)
    stamps_out(a, 13)
    probe_out(a, False)
    h = Asm(); h.name = "k"
    helper(h, 2, True)
    t = (f".globl {name}\n.p2align 8\n.type {name},@function\n{name}:\n" + text_of(finalize(a.ins)) + "  s_endpgm\nLhelper:\n"
         + text_of(finalize(h.ins)) + "Lend_k:\n  s_endpgm\n")
    d = f""".p2align 6
.amdhsa_kernel {name}
  .amdhsa_next_free_vgpr 512
  .amdhsa_next_free_sgpr 102
  .amdhsa_accum_offset 256
  .amdhsa_group_segment_fixed_size 0
  .amdhsa_kernarg_size 128
  .amdhsa_user_sgpr_count 2
  .amdhsa_user_sgpr_kernarg_segment_ptr 1
  .amdhsa_system_sgpr_workgroup_id_x 1
.end_amdhsa_kernel
"""
    hdr = f"; @launch grid=(256,1,1) block=(256,1,1) lds={LDS_MAIN}\n"
    return hdr + '.amdgcn_target "amdgcn-amd-amdhsa--gfx950"\n.text\n' + t + '.section .rodata,"a"\n' + d


if __name__ == "__main__":
    args = [x for x in sys.argv[1:] if not x.startswith("-")]
    PROF = "-p" in sys.argv
    for x in sys.argv:
        if x.startswith("-q"): PROBE = tuple(int(y) for y in x[2:].split(","))
    out = args[0] if args else f"cdna_kernels/{NAME}.s"
    open(out, "w").write(build_merged())
```

```python
import sys
from dsl import *

NAME = "gated_mix__ssm_conv_s4d__dense_activation_squared_relu__prompt"
UT, GG, W2T, A2, HH, WS_SIZE = 0x10000, 0x1D0000, 0x200000, 0x400000, 0x600000, 0xD00000
LOG2E = 0x3fb8aa3b
KREG = 33792
UBASE = 4 * KREG
LDS_MAIN = UBASE + 2 * 8320
SC = "sc1"

X, W1, WS, OUT, W2 = 4, 8, 12, 16, 20
P_LA, P_AI, P_CR, P_CI, P_DT, P_DS, P_B1, P_W2, P_B2, P_GW = 24, 26, 28, 30, 32, 34, 36, 38, 40, 42
sW, sXCD, sJ, sJ7, sJM, sRT, sCT, sP = 3, 44, 45, 46, 47, 48, 49, 50
sX, sWo, sM, sT0, sT1, sT2, sT3, sDT, sDS, sH0, sH1 = 51, 52, 53, 54, 55, 56, 57, 58, 59, 60, 61
sTAG, sF, sCNT, sW2, sHH = 62, 63, 64, 65, 66
FL_H, FL_A, FL_P = 0x1000, 0x2000, 0x3000
STAMP0 = 68
vTAG = 19
PROF = False
SPIN = 1 << 16


PROBE = None
CLK = 's_memrealtime'


def stamp(a, i):
    if PROF or (PROBE is not None and i in (0, PROBE[1])): a(f"{CLK} {S(STAMP0+2*i,2)}")


def probe_out(a, helper):
    if PROBE is None or (PROBE[0] < 32) != helper: return
    k = PROBE[1]
    a(f"""
    s_cmp_lg_u32 s2, {PROBE[0]}
    s_cbranch_scc1 Lprobe_done
    s_waitcnt lgkmcnt(0)
    s_add_u32 s{sT0}, s{STAMP0+2*k}, 5000
    Lprobe:
    !  s_memrealtime s[100:101]
    !  s_waitcnt lgkmcnt(0)
    !  s_sub_u32 s100, s100, s{sT0}
    !  s_cmp_lt_i32 s100, 0
    !  s_cbranch_scc1 Lprobe
    Lprobe_done:
    """)


def stamps_out(a, n):
    if not PROF: return
    a(f"""
    s_lshl_b32 s{sT0}, s2, 2
    s_add_u32 s{sT0}, s{sT0}, s{sW}
    s_lshl_b32 s{sT0}, s{sT0}, 6
    s_add_u32 s{sT0}, s{sT0}, 0x1E0000
    s_mov_b64 exec, 1
    """)
    for i in range(n):
        a(f"v_mov_b32 v2, s{STAMP0+2*i}\nbuffer_store_dword v2, off, {S(WS,4)}, s{sT0} offset:{4*i}")


def epoch(a):
    a(f"s_load_dword s{sTAG}, {S(WS,2)}, 0")


def epoch2(a):
    a(f"s_mul_i32 s{sTAG}, s{sTAG}, 0x9E3779B1\ns_add_u32 s{sTAG}, s{sTAG}, 0x7F4A7C15")


def flag_store(sreg):
    o = Asm()
    o("s_mov_b64 exec, 1")
    o(f"""
    buffer_store_dword v{vTAG}, off, {S(WS,4)}, s{sreg} sc1
    s_mov_b64 exec, -1
    """)
    for i in o.ins[:-1]: i.glue = True
    return o.ins


def poll_load(vf, va, soff):
    return f"buffer_load_dword v{vf}, v{va}, {S(WS,4)}, {soff} offen sc1"


def poll_check(name, vf, va, soff):
    a = Asm()
    a(f"""
    v_cmp_ne_u32 vcc, s{sTAG}, v{vf}
    s_cbranch_vccz Lok_{name}
    !  s_mov_b32 s{sCNT}, 0
    Lspin_{name}:
    !  {poll_load(vf, va, soff)}
    !  s_add_u32 s{sCNT}, s{sCNT}, 1
    !  s_cmp_lt_u32 s{sCNT}, {SPIN}
    !  s_waitcnt vmcnt(0)
    !  v_cmp_ne_u32 vcc, s{sTAG}, v{vf}
    !  s_cbranch_vccz Lok_{name}
    !  s_cbranch_scc1 Lspin_{name}
    Lok_{name}:
    """)
    for i in a.ins: i.glue = True
    return a.ins


def L(text, tag=None): return Asm()(text, tag).ins


def R(b, n=1, f='v'): return f"{f}{b}" if n == 1 else f"{f}[{b}:{b+n-1}]"
def S(b, n): return f"s[{b}:{b+n-1}]"


def prologue(a, limit):
    a(f"""
    s_load_dwordx2 {S(X,2)}, s[0:1], 0
    s_load_dwordx2 {S(W1,2)}, s[0:1], 64
    s_load_dwordx2 {S(WS,2)}, s[0:1], 120
    s_load_dwordx8 {S(P_LA,8)}, s[0:1], 8
    s_load_dwordx4 {S(P_DT,4)}, s[0:1], 40
    s_load_dwordx8 {S(P_B1,8)}, s[0:1], 72
    s_cmp_ge_u32 s2, {limit}
    s_cbranch_scc1 Lend_{a.name}
    v_lshrrev_b32 v2, 6, v0
    v_and_b32 v1, 63, v0
    s_mov_b32 s{X+2}, {2048*896}
    s_mov_b32 s{X+3}, 0x20000
    v_readfirstlane_b32 s{sW}, v2
    s_mov_b32 s{W1+2}, {448*3584}
    s_mov_b32 s{W1+3}, 0x20000
    s_mov_b32 s{WS+2}, {WS_SIZE}
    s_mov_b32 s{WS+3}, 0x20000
    s_mov_b32 s{OUT+2}, {2048*896}
    s_mov_b32 s{OUT+3}, 0x20000
    """)


def mapping(a, off=0):
    a(f"""
    s_and_b32 s{sXCD}, s2, 7
    s_lshr_b32 s{sJ}, s2, 3
    """)
    if off: a(f"s_sub_u32 s{sJ}, s{sJ}, {off}")
    a(f"""
    s_mul_i32 s{sJ7}, s{sJ}, 37
    s_lshr_b32 s{sJ7}, s{sJ7}, 8
    s_mul_i32 s{sJM}, s{sJ7}, 7
    s_sub_u32 s{sJM}, s{sJ}, s{sJM}
    """)


def helper(a, hh, merged=False):
    vD = [2, 3, 4, 5, 6, 7, 8]
    vE, vO, vUT, vL16, vG, vGW = 10, 11, 12, 13, 14, 15
    GP = 7232
    XB = 8 * GP
    for i in range(7):
        a(f"""
        v_add_u32 v9, {64*i}, v1
        v_lshrrev_b32 v9, 3, v9
        v_mul_u32_u24 v9, 37, v9
        v_lshrrev_b32 v9, 8, v9
        v_and_b32 v9, 2, v9
        v_xor_b32 v9, v9, v1
        v_lshlrev_b32 v{vD[i]}, 4, v9
        """)
    a(f"""
    s_mul_i32 s{sT0}, s{hh}, {64*896}
    s_mul_i32 s{sT1}, s{sW}, {16*896}
    s_add_u32 s{sT0}, s{sT0}, s{sT1}
    s_mul_i32 s{sM}, s{sW}, {2*GP}
    s_waitcnt lgkmcnt(0)
    s_mov_b32 s{W2}, s{P_W2}
    s_mov_b32 s{W2+1}, s{P_W2+1}
    s_mov_b32 s{W2+2}, {1792*896}
    s_mov_b32 s{W2+3}, 0x20000
    """)
    for task, (srd, base) in enumerate(((W2, 0), (X, XB))):
        for g in range(2):
            for i in range(7):
                if i % 4 == 0:
                    a(f"s_add_u32 m0, s{sM}, {base + g*GP + 1024*i}\ns_add_u32 s{sT1}, s{sT0}, {g*7168 + 1024*i}")
                a(f"buffer_load_dwordx4 v{vD[i]}, {S(srd,4)}, s{sT1} offen offset:{1024*(i%4)} lds", tag=f"t{task}")
    if merged: epoch(a)
    a(f"""
    v_lshrrev_b32 v2, 4, v1
    v_lshlrev_b32 v{vGW}, 4, v2
    """)
    for jj in range(14):
        a(f"global_load_dwordx4 {R(64+4*jj,4)}, v{vGW}, {S(P_GW,2)} offset:{64*jj}")
    a(f"""
    s_and_b32 s{sT1}, s{sW}, 1
    s_lshr_b32 s{sT2}, s{sW}, 1
    s_mul_i32 s{sT3}, s{sT1}, {4*GP}
    s_mul_i32 s{sX}, s{sT2}, {14*32}
    s_add_u32 s{sT3}, s{sT3}, s{sX}
    v_mul_u32_u24 v3, {GP}, v2
    v_bfe_u32 v4, v1, 2, 2
    v_mul_u32_u24 v5, 896, v4
    v_and_b32 v6, 3, v1
    v_lshlrev_b32 v6, 3, v6
    v_add3_u32 v3, v3, v5, v6
    v_add_u32 v3, s{sT3}, v3
    v_and_b32 v4, 2, v4
    v_lshlrev_b32 v4, 4, v4
    v_add_u32 v{vE}, v3, v4
    v_sub_u32 v{vO}, v3, v4
    v_lshlrev_b32 v{vL16}, 4, v1
    v_and_b32 v3, 15, v1
    v_lshlrev_b32 v4, 12, v3
    v_lshl_add_u32 v{vUT}, v2, 4, v4
    v_lshrrev_b32 v4, 3, v3
    v_mul_u32_u24 v4, {GP}, v4
    v_and_b32 v5, 7, v1
    v_mul_u32_u24 v5, 896, v5
    v_and_b32 v6, 2, v1
    v_xor_b32 v6, v6, v2
    v_lshlrev_b32 v6, 4, v6
    v_add3_u32 v4, v4, v5, v6
    v_add_u32 v4, s{sM}, v4
    v_add_u32 v{vG}, {XB}, v4
    s_mul_i32 s{sH0}, s{sT2}, {14*56}
    s_lshl_b32 s{sX}, s{hh}, 1
    s_add_u32 s{sH0}, s{sH0}, s{sX}
    s_add_u32 s{sH0}, s{sH0}, s{sT1}
    s_lshl_b32 s{sH0}, s{sH0}, 10
    s_add_u32 s{sH0}, s{sH0}, {W2T}
    s_mul_i32 s{sH1}, s{sT2}, {14*16*4096}
    s_lshl_b32 s{sX}, s{hh}, 7
    s_add_u32 s{sH1}, s{sH1}, s{sX}
    s_lshl_b32 s{sX}, s{sT1}, 6
    s_add_u32 s{sH1}, s{sH1}, s{sX}
    s_add_u32 s{sH1}, s{sH1}, {UT}
    """)

    def transpose(sreg, step, vaddr):
        for i in range(14):
            for t in range(2):
                a(f"ds_read_b64_tr_b16 {R(128+4*i+2*t,2)}, v{vO if i & 1 else vE} offset:{32*i + 3584*t}")
        for i in range(14):
            a(f"buffer_store_dwordx4 {R(128+4*i,4)}, v{vaddr}, {S(WS,4)}, s{sreg} offen {SC}")
            if i < 13: a(f"s_add_u32 s{sreg}, s{sreg}, {step}")

    if merged:
        epoch2(a)
        a(f"s_lshl_b32 s{sF}, s{hh}, 2\ns_add_u32 s{sF}, s{sF}, {FL_P}\nv_mov_b32 v{vTAG}, s{sTAG}")
    a(f"""
    @wait t0
    s_barrier
    """)
    stamp(a, 1)
    a(f"""
    s_cmp_ge_u32 s{hh}, 28
    s_cbranch_scc1 Lskipw2_{a.name}
    """)
    transpose(sH0, 56 * 1024, vL16)
    a(f"""
    Lskipw2_{a.name}:
    v_add_u32 v{vE}, {XB}, v{vE}
    v_add_u32 v{vO}, {XB}, v{vO}
    s_waitcnt vmcnt(0)
    s_barrier
    """)
    if merged: a.add(flag_store(sF))
    stamp(a, 2)
    transpose(sH1, 16 * 4096, vUT)
    for jj in range(14):
        a(f"ds_read_b128 {R(192+4*jj,4)}, v{vG} offset:{64*jj}")
    for jj in range(14):
        a(f"v_mfma_f32_16x16x32_bf16 v[20:23], {R(64+4*jj,4)}, {R(192+4*jj,4)}, {'0' if jj == 0 else 'v[20:23]'}")
    a(f"""
    s_lshl_b32 s{sT0}, s{hh}, 8
    s_lshl_b32 s{sT1}, s{sW}, 6
    s_add_u32 s{sT0}, s{sT0}, s{sT1}
    s_add_u32 s{sT0}, s{sT0}, {GG}
    v_lshlrev_b32 v3, 2, v1
    v_mul_f32 v2, {LOG2E | 0x80000000}, v20
    v_exp_f32 v2, v2
    v_add_f32 v2, 1.0, v2
    v_rcp_f32 v2, v2
    s_mov_b64 exec, 0xffff
    buffer_store_dword v2, v3, {S(WS,4)}, s{sT0} offen {SC}
    s_mov_b64 exec, -1
    """)
    if not merged: return
    a(f"""
    s_add_u32 s{sF}, s{sF}, 128
    s_waitcnt vmcnt(0)
    s_barrier
    """)
    a.add(flag_store(sF))
    stamp(a, 3)
    stamps_out(a, 4)
    probe_out(a, True)
    a(f"""
    s_cmp_lg_u32 s{hh}, 31
    s_cbranch_scc1 Lend_{a.name}
    s_mov_b64 exec, -1
    v_and_b32 v2, 7, v1
    v_min_u32 v2, 6, v2
    v_lshrrev_b32 v3, 3, v1
    v_lshlrev_b32 v3, 7, v3
    v_lshl_add_u32 v2, v2, 4, v3
    v_lshlrev_b32 v3, 2, v1
    s_lshl_b32 s{sT0}, s{sW}, 10
    s_add_u32 s{sT0}, s{sT0}, {FL_H}
    s_mov_b32 s{sT1}, {FL_P}
    s_mov_b32 s{sCNT}, 0
    Lfin_{a.name}:
    !  buffer_load_dwordx4 v[4:7], v2, {S(WS,4)}, s{sT0} offen sc1
    !  buffer_load_dword v8, v3, {S(WS,4)}, s{sT1} offen sc1
    !  s_add_u32 s{sCNT}, s{sCNT}, 1
    !  s_cmp_lt_u32 s{sCNT}, {SPIN}
    !  s_waitcnt vmcnt(0)
    !  v_xor_b32 v4, v4, v{vTAG}
    !  v_xor_b32 v5, v5, v{vTAG}
    !  v_xor_b32 v6, v6, v{vTAG}
    !  v_xor_b32 v7, v7, v{vTAG}
    !  v_xor_b32 v8, v8, v{vTAG}
    !  v_or3_b32 v4, v4, v5, v6
    !  v_or3_b32 v4, v4, v7, v8
    !  v_cmp_ne_u32 vcc, 0, v4
    !  s_cbranch_vccz Lfin2_{a.name}
    !  s_cbranch_scc1 Lfin_{a.name}
    Lfin2_{a.name}:
    s_mov_b32 s{sF}, 0
    s_barrier
    """)
    a.add(flag_store(sF))


vXa, vWa, vA, vB, vL16 = 2, 6, 10, 12, 16
vKI = 20
ACC1, BIAS, FR = 64, 128, 160


def g1_setup(a):
    a(f"""
    s_lshr_b32 s{sRT}, s{sXCD}, 1
    s_lshl_b32 s{sRT}, s{sRT}, 2
    s_add_u32 s{sRT}, s{sRT}, s{sJ7}
    s_and_b32 s{sCT}, s{sXCD}, 1
    s_mul_i32 s{sCT}, s{sCT}, 7
    s_add_u32 s{sCT}, s{sCT}, s{sJM}
    s_lshl_b32 s{sX}, s{sRT}, 2
    s_add_u32 s{sX}, s{sX}, s{sW}
    s_mul_i32 s{sX}, s{sX}, {32*896}
    s_mul_i32 s{sWo}, s{sW}, {16*3584}
    s_lshl_b32 s{sT0}, s{sCT}, 8
    s_add_u32 s{sWo}, s{sWo}, s{sT0}
    s_lshl_b32 s{sM}, s{sW}, 12
    v_lshrrev_b32 v17, 3, v1
    v_lshrrev_b32 v18, 4, v1
    v_mul_u32_u24 v17, 896, v17
    v_and_b32 v19, 7, v1
    v_xor_b32 v19, v19, v18
    v_lshl_add_u32 v{vXa}, v19, 4, v17
    v_xor_b32 v17, 64, v{vXa}
    v_add_u32 v{vXa+1}, 6144, v17
    v_add_u32 v{vXa+2}, 12288, v{vXa}
    v_add_u32 v{vXa+3}, {6144+12288}, v17
    v_mul_u32_u24 v17, 3584, v18
    v_lshlrev_b32 v18, 2, v18
    v_xor_b32 v18, v18, v1
    v_and_b32 v18, 15, v18
    v_lshl_add_u32 v{vWa}, v18, 4, v17
    v_add_u32 v{vWa+1}, 13312, v{vWa}
    v_add_u32 v{vWa+2}, {2*13312}, v{vWa}
    v_add_u32 v{vWa+3}, {3*13312}, v{vWa}
    """)


def g1_dma(c):
    a = Asm()
    slot = c % 3
    a(f"s_add_u32 m0, s{sM}, {slot*16384}")
    if c: a(f"s_add_u32 s{sX}, s{sX}, 128")
    for i in range(4):
        a(f"buffer_load_dwordx4 v{vXa+i}, {S(X,4)}, s{sX} offen offset:{1024*i} lds", tag=f"c{c}")
    a(f"s_add_u32 m0, s{sM}, {49152 + slot*16384}")
    if c: a(f"s_add_u32 s{sWo}, s{sWo}, {64*3584}")
    for i in range(4):
        a(f"buffer_load_dwordx4 v{vWa+i}, {S(W1,4)}, s{sWo} offen offset:{1024*i} lds", tag=f"c{c}")
    return a.ins


def g1_setup2(a):
    a(f"""
    s_lshr_b32 s{sT0}, s{sW}, 1
    s_and_b32 s{sT1}, s{sW}, 1
    s_mul_i32 s{sP}, s{sXCD}, 28
    s_add_u32 s{sP}, s{sP}, s{sJ}
    v_lshrrev_b32 v17, 5, v1
    s_lshl_b32 s{sT2}, s{sCT}, 1
    s_add_u32 s{sT2}, s{sT2}, s{sT0}
    s_lshl_b32 s{sT2}, s{sT2}, 7
    v_lshl_add_u32 v18, v17, 5, s{sT2}
    global_load_dwordx4 {R(FR,4)}, v18, {S(P_B1,2)}
    global_load_dwordx4 {R(FR+4,4)}, v18, {S(P_B1,2)} offset:16
    global_load_dwordx4 {R(FR+8,4)}, v18, {S(P_B1,2)} offset:64
    global_load_dwordx4 {R(FR+12,4)}, v18, {S(P_B1,2)} offset:80
    s_lshl_b32 s{sT2}, s{sP}, 2
    s_load_dword s{sDT}, {S(P_DT,2)}, s{sT2}
    s_load_dword s{sDS}, {S(P_DS,2)}, s{sT2}
    s_load_dwordx2 {S(OUT,2)}, s[0:1], 104
    s_add_u32 s{sT2}, s{sT2}, s{sW}
    s_lshl_b32 s{sT2}, s{sT2}, 8
    v_lshl_add_u32 v18, v1, 2, s{sT2}
    global_load_dword v{vKI}, v18, {S(P_LA,2)}
    global_load_dword v{vKI+1}, v18, {S(P_AI,2)}
    global_load_dword v{vKI+2}, v18, {S(P_CR,2)}
    global_load_dword v{vKI+3}, v18, {S(P_CI,2)}
    """)


def g1_setup3(a):
    a(f"""
    v_bfe_u32 v18, v1, 2, 2
    v_lshl_add_u32 v19, v17, 3, v18
    v_lshlrev_b32 v19, 8, v19
    s_lshl_b32 s{sT2}, s{sT0}, 1
    v_xor_b32 v18, s{sT2}, v18
    v_lshl_add_u32 v19, v18, 6, v19
    v_and_b32 v18, 1, v1
    v_lshl_add_u32 v19, v18, 5, v19
    v_and_b32 v18, 16, v1
    v_add_u32 v19, v18, v19
    v_and_b32 v18, 2, v1
    v_lshl_add_u32 v19, v18, 2, v19
    v_add_u32 v{vA}, 49152, v19
    v_xor_b32 v{vA+1}, 64, v{vA}
    v_and_b32 v18, 31, v1
    v_lshlrev_b32 v18, 7, v18
    v_bfe_u32 v19, v1, 1, 3
    v_xor_b32 v19, v19, v17
    v_lshl_add_u32 v18, v19, 4, v18
    s_lshl_b32 s{sT2}, s{sT1}, 13
    v_add_u32 v{vB}, s{sT2}, v18
    v_xor_b32 v{vB+1}, 32, v{vB}
    v_xor_b32 v{vB+2}, 64, v{vB}
    v_xor_b32 v{vB+3}, 96, v{vB}
    v_lshlrev_b32 v{vL16}, 4, v1
    s_lshl_b32 s{sH0}, s{sRT}, 1
    s_add_u32 s{sH0}, s{sH0}, s{sT1}
    s_mul_i32 s{sH0}, s{sH0}, 224
    s_lshl_b32 s{sT2}, s{sCT}, 1
    s_add_u32 s{sT2}, s{sT2}, s{sT0}
    s_lshl_b32 s{sT2}, s{sT2}, 2
    s_add_u32 s{sH0}, s{sH0}, s{sT2}
    s_lshl_b32 s{sH0}, s{sH0}, 10
    s_add_u32 s{sH0}, s{sH0}, {HH}
    s_add_u32 s{sH1}, s{sH0}, {112*1024}
    """)
    for k in range(16):
        a(f"v_lshlrev_b32 v{BIAS+2*k}, 16, v{FR+k}\nv_and_b32 v{BIAS+2*k+1}, 0xffff0000, v{FR+k}")


def g1_reads(t):
    c, s = divmod(t, 4)
    slot = c % 3
    b = FR + 16 * (t & 1)
    A = lambda tf: [Ins(f"ds_read_b64_tr_b16 {R(b+4*tf+2*h,2)}, v{vA+tf} offset:{slot*16384 + (16*s+4*h)*256}") for h in range(2)]
    B = lambda tl: [Ins(f"ds_read_b128 {R(b+8+4*tl,4)}, v{vB+s} offset:{slot*16384 + 4096*tl}")]
    return A(0) + B(0) + B(1) + A(1)


def gemm1(a, hook={}):
    a("@wait c0\ns_barrier")
    stamp(a, 1)
    a.add(g1_reads(0))
    for t in range(28):
        c, s = divmod(t, 4)
        b = FR + 16 * (t & 1)
        mf = []
        for tf in range(2):
            for tl in range(2):
                d = R(ACC1 + 32*tf + 16*tl, 16)
                mf.append(Ins(f"v_mfma_f32_32x32x16_bf16 {d}, {R(b+4*tf,4)}, {R(b+8+4*tl,4)}, {R(BIAS+16*tf,16) if t == 0 else d}"))
        rd = g1_reads(t + 1) if t < 27 else []
        dma = []
        if s == 3 and c < 6:
            a("@lgkm0")
            a.add(mf[:1])
            a(f"@wait c{c+1}\ns_barrier")
            if c + 3 < 7: dma = g1_dma(c + 3)
        else:
            a.add(mf[:1])
        a.add(rd[:3]); a.add(mf[1:2]); a.add(rd[3:]); a.add(mf[2:3]); a.add(dma[:6]); a.add(mf[3:4]); a.add(dma[6:])
        a.add(hook.get(t, []))


def g1_epilogue(a):
    for tf in range(2):
        for tl in range(2):
            d = ACC1 + 32*tf + 16*tl
            o = FR + 16*tf + 8*tl
            for r in range(16): a(f"v_max_f32 v{d+r}, 0, v{d+r}")
            for r in range(0, 16, 2): a(f"v_pk_mul_f32 {R(d+r,2)}, {R(d+r,2)}, {R(d+r,2)}")
            for r in range(0, 16, 2): a(f"v_cvt_pk_bf16_f32 v{o+r//2}, v{d+r}, v{d+r+1}")
            for s in range(2):
                a(f"buffer_store_dwordx4 {R(o+4*s,4)}, v{vL16}, {S(WS,4)}, s{sH1 if tl else sH0} offen offset:{(2*tf+s)*1024} {SC}", tag="hst")


UL = 24


def u_load(a):
    a(f"""
    s_lshl_b32 s{sX}, s{sP}, 2
    s_add_u32 s{sX}, s{sX}, s{sW}
    s_lshl_b32 s{sX}, s{sX}, 11
    s_add_u32 s{sX}, s{sX}, {UT}
    s_sub_u32 s{sWo}, s{sX}, 4
    """)
    for i in range(2):
        a(f"buffer_load_dwordx4 {R(UL+4*i,4)}, v{vL16}, {S(WS,4)}, s{sX} offen offset:{1024*i} {SC}")
        a(f"buffer_load_dword v{UL+8+i}, v{vL16}, {S(WS,4)}, s{sWo} offen offset:{1024*i} {SC}")


def u_stage(a):
    T = UL + 12
    a(f"""
    s_lshr_b32 s{sX}, s{sW}, 1
    s_and_b32 s{sWo}, s{sW}, 1
    s_mul_i32 s{sX}, s{sX}, 8320
    s_lshl_b32 s{sM}, s{sWo}, 11
    s_add_u32 s{sM}, s{sM}, s{sX}
    s_add_u32 s{sM}, s{sM}, {UBASE + 32}
    v_add_u32 v44, s{sM}, v{vL16}
    v_or_b32 v45, s{sWo}, v1
    v_cmp_eq_u32 vcc, 0, v45
    v_cndmask_b32 v{UL+8}, v{UL+8}, v45, vcc
    """)
    for i in range(2):
        d = UL + 4*i
        a(f"ds_write_b128 v44, {R(d,4)} offset:{1024*i}")
        a(f"v_alignbit_b32 v{T+4*i}, v{d}, v{UL+8+i}, 16")
        for k in range(1, 4): a(f"v_alignbit_b32 v{T+4*i+k}, v{d+k}, v{d+k-1}, 16")
        a(f"ds_write_b128 v44, {R(T+4*i,4)} offset:{4160 + 1024*i}")
    a(f"""
    s_mul_i32 s{sM}, s{sW}, 4160
    s_add_u32 s{sM}, s{sM}, {UBASE}
    v_and_b32 v45, 7, v1
    v_lshl_add_u32 v45, v45, 2, s{sM}
    v_mov_b32 v46, 0
    ds_write_b32 v45, v46
    """)


def kgen(a):
    E1, E2, E4, E8, E256, CC, SS, TT, TM = (64 + 4*i for i in range(9))
    WR = 104
    vK, vKA, vKB, vR = 2, 3, 4, 5
    cnt = [0]

    def cmul(d, x, y):
        for n in range(2):
            a(f"v_pk_mul_f32 {R(TM+2*n,2)}, {R(x+2*n,2)}, {R(y+2*n,2)} op_sel:[0,0] op_sel_hi:[0,1]")
        for n in range(2):
            a(f"v_pk_fma_f32 {R(d+2*n,2)}, {R(x+2*n,2)}, {R(y+2*n,2)}, {R(TM+2*n,2)} op_sel:[1,1,0] op_sel_hi:[1,0,1] neg_lo:[1,0,0]")

    def put(row, x, neg):
        w = WR + 2 * (cnt[0] & 3); cnt[0] += 1
        for n in range(2):
            a(f"v_cvt_pk_bf16_f32 v{w+n}, v{x+2*n}, {'-' if neg else ''}v{x+2*n+1}")
        a(f"ds_write_b64 v{vK}, {R(w,2)} offset:{row*528}")

    ER, ZI, DT = 112, 114, 116
    a(f"""
    s_lshr_b32 s{sT0}, s{sW}, 1
    s_lshl_b32 s{sT0}, s{sT0}, 4
    s_lshr_b32 s{sDT}, s{sDT}, s{sT0}
    s_lshl_b32 s{sDT}, s{sDT}, 16
    s_lshr_b32 s{sDS}, s{sDS}, s{sT0}
    s_lshl_b32 s{sDS}, s{sDS}, 16
    s_mul_i32 s{sT1}, s{sW}, {KREG}
    v_lshl_add_u32 v{vK}, v1, 3, s{sT1}
    v_mov_b32 v{DT}, {LOG2E}
    v_mul_f32 v{DT}, s{sDT}, v{DT}
    v_exp_f32 v{DT}, v{DT}
    v_lshlrev_b32 v{ER}, 16, v{vKI}
    v_and_b32 v{ER+1}, 0xffff0000, v{vKI}
    v_cvt_pk_bf16_f32 v{DT}, v{DT}, v{DT}
    v_mul_f32 v{ER}, {LOG2E}, v{ER}
    v_mul_f32 v{ER+1}, {LOG2E}, v{ER+1}
    v_exp_f32 v{ER}, v{ER}
    v_exp_f32 v{ER+1}, v{ER+1}
    v_lshlrev_b32 v{DT}, 16, v{DT}
    v_lshlrev_b32 v{ZI}, 16, v{vKI+1}
    v_and_b32 v{ZI+1}, 0xffff0000, v{vKI+1}
    v_cvt_pk_bf16_f32 v{ER+1}, v{ER}, v{ER+1}
    v_mul_f32 v{ZI}, v{ZI}, v{DT}
    v_mul_f32 v{ZI+1}, v{ZI+1}, v{DT}
    v_lshlrev_b32 v{ER}, 16, v{ER+1}
    v_and_b32 v{ER+1}, 0xffff0000, v{ER+1}
    v_mul_f32 v{ZI}, 0.15915494, v{ZI}
    v_mul_f32 v{ZI+1}, 0.15915494, v{ZI+1}
    v_mul_f32 v{ER}, v{ER}, v{DT}
    v_mul_f32 v{ER+1}, v{ER+1}, v{DT}
    v_mul_f32 v{ER}, {LOG2E | 0x80000000}, v{ER}
    v_mul_f32 v{ER+1}, {LOG2E | 0x80000000}, v{ER+1}
    v_add_f32 v{DT}, v{DT}, v{DT}
    v_lshlrev_b32 v{CC}, 16, v{vKI+2}
    v_lshlrev_b32 v{CC+1}, 16, v{vKI+3}
    v_and_b32 v{CC+2}, 0xffff0000, v{vKI+2}
    v_and_b32 v{CC+3}, 0xffff0000, v{vKI+3}
    v_pk_mul_f32 {R(CC,2)}, {R(CC,2)}, {R(DT,2)} op_sel_hi:[1,0]
    v_pk_mul_f32 {R(CC+2,2)}, {R(CC+2,2)}, {R(DT,2)} op_sel_hi:[1,0]
    """)
    for E, p in ((E8, 0x41000000), (E1, None), (E256, 0x43800000)):
        for n in range(2):
            if p:
                a(f"v_mul_f32 v{TM+2*n}, {p}, v{ER+n}\nv_mul_f32 v{TM+2*n+1}, {p}, v{ZI+n}")
                a(f"v_exp_f32 v{TM+2*n}, v{TM+2*n}\nv_fract_f32 v{TM+2*n+1}, v{TM+2*n+1}")
            else:
                a(f"v_exp_f32 v{TM+2*n}, v{ER+n}\nv_fract_f32 v{TM+2*n+1}, v{ZI+n}")
            a(f"v_cos_f32 v{E+2*n}, v{TM+2*n+1}\nv_sin_f32 v{E+2*n+1}, v{TM+2*n+1}")
        for n in range(2):
            a(f"v_pk_mul_f32 {R(E+2*n,2)}, {R(E+2*n,2)}, {R(TM+2*n,2)} op_sel_hi:[1,0]")
    a(f"v_mov_b32 v{WR+6}, 0x3f80\nv_mov_b32 v{WR+7}, 0x3f80\nds_write_b64 v{vK}, {R(WR+6,2)} offset:{32*528}")
    put(33, E8, False)
    cmul(SS, E8, E8); put(34, SS, False)
    for b in range(3, 32):
        cmul(SS, SS, E8); put(32 + b, SS, False)
    put(0, CC, True)
    cmul(SS, CC, E1); put(1, SS, True)
    for r in range(2, 8):
        cmul(SS, SS, E1); put(r, SS, True)
    cmul(E2, E1, E1); cmul(E4, E2, E2)
    cmul(TT, CC, E256); put(8, TT, True)
    cmul(SS, TT, E2); put(9, SS, True)
    for r in (10, 13, 14):
        cmul(SS, SS, E2); put(r, SS, True)
    for r in (16, 20):
        cmul(TT, TT, E256); put(r, TT, True)
        cmul(SS, TT, E4); put(r + 1, SS, True)
        cmul(SS, SS, E4); put(r + 2, SS, True)
    for r in (24, 26, 28, 30):
        cmul(TT, TT, E256); put(r, TT, True)
        cmul(SS, TT, E8); put(r + 1, SS, True)
    a.mark = len(a.ins)
    a(f"""
    v_and_b32 v6, 31, v1
    v_lshrrev_b32 v7, 5, v1
    v_mul_u32_u24 v8, 528, v6
    v_lshl_add_u32 v8, v7, 4, v8
    v_add_u32 v{vKB}, s{sT1}, v8
    v_cmp_eq_u32 vcc, 12, v6
    v_subrev_u32 v8, {2*528}, v{vKB}
    v_cndmask_b32 v{vKA}, v{vKB}, v8, vcc
    """)
    D, FA, FB = 64, 128, 192
    for s in range(16):
        a(f"ds_read_b128 {R(FA+4*s,4)}, v{vKA} offset:{32*s}")
        a(f"ds_read_b128 {R(FB+4*s,4)}, v{vKB} offset:{32*528 + 32*s}")
        if s >= 2:
            k = s - 2
            a(f"v_mfma_f32_32x32x16_bf16 {R(D,16)}, {R(FA+4*k,4)}, {R(FB+4*k,4)}, {'0' if k == 0 else R(D,16)}")
    for k in (14, 15):
        a(f"v_mfma_f32_32x32x16_bf16 {R(D,16)}, {R(FA+4*k,4)}, {R(FB+4*k,4)}, {R(D,16)}")
    a(f"""
    v_add_u32 v8, s{sT1}, v{vL16}
    s_xor_b32 s{sT2}, s{sW}, 1
    s_mul_i32 s{sT2}, s{sT2}, {KREG}
    v_add_u32 v9, s{sT2}, v{vL16}
    v_mov_b32 v100, 0
    v_mov_b32 v101, 0
    v_mov_b32 v102, 0
    v_mov_b32 v103, 0
    v_cmp_eq_u32 vcc, 0, v1
    v_mov_b32 v10, s{sDS}
    v_lshlrev_b32 v11, 4, v6
    v_cndmask_b32 v10, 0, v10, vcc
    v_sub_u32 v11, s{sT1}, v11
    v_and_b32 v6, 1, v1
    v_cmp_eq_u32 vcc, 1, v6
    """)
    for q in range(4): a(f"ds_write_b128 v8, {R(D+4*q,4)} offset:{8192 + 1024*q}")
    a(f"ds_write_b128 v8, v[100:103] offset:4096")
    a("s_barrier")
    stamp(a, 7)
    for q in range(4): a(f"ds_read_b128 {R(80+4*q,4)}, v9 offset:{8192 + 1024*q}")
    a(f"""
    v_lshlrev_b32 v6, 3, v7
    v_sub_u32 v12, v11, v6
    v_lshlrev_b32 v6, 9, v7
    v_sub_u32 v13, v11, v6
    v_sub_u32 v14, v13, v6
    v_add_u32 v12, 3576, v12
    v_add_u32 v13, 3056, v13
    v_add_u32 v14, 1520, v14
    v_add_f32 v{D}, v{D}, v10
    """)
    for k in range(0, 16, 2): a(f"v_pk_add_f32 {R(D+k,2)}, {R(D+k,2)}, {R(80+k,2)}")
    O = 96
    cv = lambda o, x, y: a(f"v_cvt_pk_bf16_f32 v{o}, v{x}, v{y}")
    cv(O, D+3, D+2); cv(O+1, D+1, D); a(f"ds_write_b64 v12, {R(O,2)} offset:512")
    cv(O+2, D+6, D+5); cv(O+3, D+4, D+4); a(f"ds_write_b64 v12, {R(O+2,2)}")
    cv(O+4, D+10, D+10); cv(O+5, D+9, D+9); cv(O+6, D+9, D+8); cv(O+7, D+8, D+8); a(f"ds_write_b128 v13, {R(O+4,4)}")
    for t in range(2):
        e0, e1, o = D+12+2*t, D+13+2*t, O+8+4*t
        a(f"v_cndmask_b32 v6, v{e0}, v{e1}, vcc")
        cv(o, e1, e1); cv(o+1, e1, 6); cv(o+2, e0, e0); cv(o+3, e0, e0)
        a(f"ds_write_b128 v14, {R(o,4)} offset:{512*(1-t)}")


def conv(a, mid=[], pre_x=[], post_x=[]):
    vU, vKf = 2, 6
    ACC, F = 32, 64
    a(f"""
    s_lshr_b32 s{sT0}, s{sW}, 1
    s_and_b32 s{sT2}, s{sW}, 1
    s_mul_i32 s{sT0}, s{sT0}, 8320
    s_lshl_b32 s{sT2}, s{sT2}, 8
    s_sub_u32 s{sT0}, s{sT0}, s{sT2}
    s_add_u32 s{sT0}, s{sT0}, {UBASE + 4160 + 4*65}
    v_lshrrev_b32 v7, 4, v1
    v_bfe_u32 v8, v1, 1, 3
    v_lshlrev_b32 v8, 2, v8
    v_lshl_add_u32 v8, v7, 4, v8
    v_and_b32 v9, 1, v1
    v_mul_u32_u24 v9, 4160, v9
    v_sub_u32 v8, v8, v9
    v_add_u32 v{vU}, s{sT0}, v8
    v_add_u32 v{vU+1}, 1024, v{vU}
    v_add_u32 v{vU+2}, 2048, v{vU}
    v_add_u32 v{vU+3}, 3072, v{vU}
    s_sub_u32 s{sT0}, s{sT1}, s{sT2}
    s_add_u32 s{sT0}, s{sT0}, {4512 - 3584 - 192}
    v_and_b32 v8, 15, v1
    v_lshlrev_b32 v8, 5, v8
    v_lshlrev_b32 v9, 4, v7
    v_sub_u32 v8, v9, v8
    v_add_u32 v{vKf}, s{sT0}, v8
    """)

    def reads(r):
        b = F + 64 * (r & 1)
        out = []
        for i in range(8):
            o = 128 * (i & 1) + 16 * (3 - r)
            out.append(Ins(f"ds_read_b128 {R(b+32+4*i,4)}, v{vKf} offset:{512*(7-i) + 64*(3-r)}"))
            out.append(Ins(f"ds_read2_b32 {R(b+4*i,2)}, v{vU+(i>>1)} offset0:{o} offset1:{o+1}"))
            out.append(Ins(f"ds_read2_b32 {R(b+4*i+2,2)}, v{vU+(i>>1)} offset0:{o+2} offset1:{o+3}"))
        return out

    order = sorted(((t, d) for t in range(8) for d in range(8) if t + d < 8), key=lambda x: (max(x), x[0] + x[1], x[0]))
    a.add(reads(0))
    for r in range(4):
        b = F + 64 * (r & 1)
        rd = reads(r + 1) if r < 3 else []
        seen = set()
        for k, (t, d) in enumerate(order):
            c = t + d
            acc = R(ACC + 4*c, 4)
            first = r == 0 and c not in seen
            seen.add(c)
            a(f"v_mfma_f32_16x16x32_bf16 {acc}, {R(b+4*d,4)}, {R(b+32+4*t,4)}, {'0' if first else acc}")
            if k >= 10 and rd: a.add([rd.pop(0)])
            if r == 3 and k == 0: a.add(mid)
    a.add(pre_x)
    a(f"""
    v_add_u32 v8, s{sT1}, v{vL16}
    s_lshl_b32 s{sT0}, s{sW}, 11
    v_add_u32 v9, s{sT0}, v{vL16}
    v_add_u32 v10, {2*KREG}, v9
    v_and_b32 v11, 15, v1
    v_lshlrev_b32 v11, 6, v11
    v_lshl_add_u32 v11, v7, 4, v11
    s_lshl_b32 s{sT2}, s{sP}, 13
    s_add_u32 s{sT2}, s{sT2}, s{sT0}
    s_add_u32 s{sT2}, s{sT2}, {A2}
    """)
    post_x = list(post_x)
    for c in range(8):
        a(f"ds_write_b128 v8, {R(ACC+4*c,4)} offset:{16384 + 1024*c}")
        for _ in range(2):
            if post_x: a.add(post_x.pop(0))
    a("s_barrier")
    for i in range(2):
        for w in range(4):
            a(f"ds_read_b128 {R(F+16*i+4*w,4)}, v{9 + (w>>1)} offset:{16384 + KREG*(w&1) + 1024*i}")
    for i in range(2):
        b = F + 16*i
        for k in (0, 2, 8, 10): a(f"v_pk_add_f32 {R(b+k,2)}, {R(b+k,2)}, {R(b+k+4,2)}")
        for k in range(4): a(f"v_cvt_pk_bf16_f32 v{b+4+k}, v{b+k}, v{b+8+k}")
        a(f"buffer_store_dwordx4 {R(b+4,4)}, v11, {S(WS,4)}, s{sT2} offen offset:{1024*i} {SC}", tag="ast")


def w2_setup(a):
    a(f"""
    s_mul_i32 s{sW2}, s{sJM}, {4*56}
    s_mul_i32 s{sF}, s{sW}, 14
    s_add_u32 s{sW2}, s{sW2}, s{sF}
    s_lshl_b32 s{sW2}, s{sW2}, 10
    s_add_u32 s{sW2}, s{sW2}, {W2T}
    v_bfe_u32 v17, v1, 4, 1
    v_mul_u32_u24 v17, {56*1024}, v17
    v_lshrrev_b32 v18, 5, v1
    v_lshl_add_u32 v17, v18, 9, v17
    v_and_b32 v18, 3, v1
    v_lshl_add_u32 v17, v18, 4, v17
    v_and_b32 v18, 4, v1
    v_lshl_add_u32 v17, v18, 5, v17
    v_and_b32 v18, 8, v1
    v_lshl_add_u32 v17, v18, 3, v17
    v_add_u32 v18, {112*1024}, v17
    """)


def w2_groups():
    g = []
    for fb in range(14):
        for s in range(2):
            for td in range(2):
                o = Asm()
                if fb and fb % 4 == 0 and s == 0 and td == 0: o(f"s_add_u32 s{sW2}, s{sW2}, 4096")
                o(f"buffer_load_dwordx4 {R(8*(2*fb+s)+4*td,4,'a')}, v{17+td}, {S(WS,4)}, s{sW2} offen offset:{1024*(fb%4) + 256*s} {SC}")
                g.append(o.ins)
    return g


HB, NB = 128, 32
vPH, vFH, vPA, vFA = 12, 13, 14, 15


def g2_setup(a):
    a(f"""
    s_lshl_b32 s{sRT}, s{sXCD}, 2
    s_add_u32 s{sRT}, s{sRT}, s{sJ7}
    s_mul_i32 s{sH0}, s{sRT}, 224
    s_mul_i32 s{sX}, s{sW}, 28
    s_add_u32 s{sH0}, s{sH0}, s{sX}
    s_lshl_b32 s{sH0}, s{sH0}, 10
    s_add_u32 s{sH0}, s{sH0}, {HH}
    v_min_u32 v{vPH}, 6, v1
    v_lshl_add_u32 v{vPH}, v{vPH}, 2, s{sX}
    s_lshl_b32 s{sX}, s{sRT}, 7
    s_add_u32 s{sX}, s{sX}, {FL_H}
    {poll_load(vFH, vPH, f's{sX}')}
    s_lshr_b32 s{sF}, s{sP}, 5
    s_lshl_b32 s{sF}, s{sF}, 2
    s_add_u32 s{sF}, s{sF}, s{sW}
    s_lshl_b32 s{sF}, s{sF}, 5
    s_and_b32 s{sWo}, s{sP}, 31
    s_add_u32 s{sF}, s{sF}, s{sWo}
    s_lshl_b32 s{sF}, s{sF}, 2
    s_add_u32 s{sF}, s{sF}, {FL_A}
    s_lshl_b32 s{sWo}, s{sJM}, 2
    s_lshr_b32 s{sM}, s{sXCD}, 1
    s_add_u32 s{sWo}, s{sWo}, s{sM}
    s_lshl_b32 s{sWo}, s{sWo}, 2
    s_add_u32 s{sWo}, s{sWo}, s{sW}
    s_lshl_b32 s{sWo}, s{sWo}, 5
    s_add_u32 s{sWo}, s{sWo}, {FL_A}
    v_and_b32 v{vPA}, 7, v1
    v_lshlrev_b32 v{vPA}, 2, v{vPA}
    """)


def slot(i): return HB + 4 * ((i + 16) % NB)


def hload(i):
    out = Asm()
    tl, k = divmod(i, 28)
    if i and k % 4 == 0: out(f"s_add_u32 s{sH0}, s{sH0}, {4096 if k else (112-24)*1024}")
    out(f"buffer_load_dwordx4 {R(slot(i),4)}, v{vL16}, {S(WS,4)}, s{sH0} offen offset:{1024*(k%4)} {SC}")
    return out.ins


def gemm2(a, done, PRE=24, I_FLAG=16, I_POLL=34, I_CHK=44):
    ACC = 32
    AV, GV, PT = 20, 28, 96
    B2 = slot(24)
    vA2, vO, vX = 2, 3, 4
    for i in range(done, PRE): a.add(hload(i))
    a(f"""
    v_and_b32 v5, 31, v1
    v_lshrrev_b32 v6, 5, v1
    s_lshl_b32 s{sT0}, s{sJM}, 2
    s_add_u32 s{sT0}, s{sT0}, s{sW}
    s_lshl_b32 s{sT2}, s{sT0}, 5
    v_lshl_add_u32 v7, v6, 4, s{sT2}
    global_load_dwordx4 {R(8,4)}, v7, {S(P_B2,2)}
    v_mul_u32_u24 v{vO}, 896, v5
    v_add_u32 v{vO}, v{vO}, v7
    s_mul_i32 s{sH1}, s{sRT}, {64*896}
    v_lshlrev_b32 v5, 2, v5
    v_lshl_add_u32 v{vA2}, v6, 15, v5
    s_lshl_b32 s{sT0}, s{sT0}, 16
    s_lshl_b32 s{sT2}, s{sRT}, 8
    s_add_u32 s{sT0}, s{sT0}, s{sT2}
    s_add_u32 s{sT0}, s{sT0}, {A2}
    s_add_u32 s{sT2}, s{sT2}, {GG}
    v_add_u32 v{vX}, s{sT1}, v{vL16}
    s_lshl_b32 s{sT3}, s{sW}, 11
    v_add_u32 v6, s{sT3}, v{vL16}
    v_add_u32 v7, {2*KREG}, v6
    """)
    for tl in range(2):
        a(f"buffer_load_dword v{GV+2*tl}, v5, {S(WS,4)}, s{sT2} offen offset:{128*tl} {SC}")

    def aload():
        o = Asm()
        o.add(poll_check("a", vFA, vPA, f"s{sWo}"))
        stamp(o, 10)
        for i in range(4):
            for tl in range(2):
                o(f"buffer_load_dword v{AV+4*tl+i}, v{vA2}, {S(WS,4)}, s{sT0} offen offset:{128*tl} {SC}")
            if i < 3: o(f"s_add_u32 s{sT0}, s{sT0}, 8192")
        return o.ins

    def reduce(tl, P):
        o = Asm()
        for td in range(2):
            for q in range(4):
                o(f"ds_write_b128 v{vX}, {R(ACC+32*tl+16*td+4*q,4)} offset:{8192*tl + 1024*(4*td+q)}")
        o("s_barrier")
        for w in range(4):
            for q in range(2):
                o(f"ds_read_b128 {R(P+8*w+4*q,4)}, v{6+(w>>1)} offset:{8192*tl + KREG*(w&1) + 1024*q}")
        if tl == 0:
            for k in range(4): o(f"v_lshlrev_b32 v{B2+2*k}, 16, v{8+k}\nv_and_b32 v{B2+2*k+1}, 0xffff0000, v{8+k}")
        n = len(o.ins)
        for k in range(0, 8, 2): o(f"v_pk_add_f32 {R(P+k,2)}, {R(P+k,2)}, {R(B2+k,2)}")
        for w in range(1, 4):
            for k in range(0, 8, 2): o(f"v_pk_add_f32 {R(P+k,2)}, {R(P+k,2)}, {R(P+8*w+k,2)}")
        return o.ins[:n], o.ins[n:]

    def mix(tl, P, U):
        o = Asm()
        for k in range(4): o(f"v_lshlrev_b32 v{U+2*k}, 16, v{AV+4*tl+k}\nv_and_b32 v{U+2*k+1}, 0xffff0000, v{AV+4*tl+k}")
        n = len(o.ins)
        for k in range(0, 8, 2): o(f"v_pk_add_f32 {R(U+k,2)}, {R(U+k,2)}, {R(P+k,2)} neg_lo:[0,1] neg_hi:[0,1]")
        for k in range(0, 8, 2): o(f"v_pk_fma_f32 {R(U+k,2)}, {R(U+k,2)}, {R(GV+2*tl,2)}, {R(P+k,2)} op_sel_hi:[1,0,1]")
        for k in range(4): o(f"v_cvt_pk_bf16_f32 v{U+8+k}, v{U+2*k}, v{U+2*k+1}")
        if tl: o(f"s_add_u32 s{sH1}, s{sH1}, {32*896}")
        o(f"buffer_store_dwordx4 {R(U+8,4)}, v{vO}, {S(OUT,4)}, s{sH1} offen")
        return o.ins[:n], o.ins[n:]

    r0 = reduce(0, PT)
    fin = r0[0] + r0[1]
    for i in range(56):
        tl, k = divmod(i, 28)
        if i == I_FLAG: a("@wait ast"); a.add(flag_store(sF))
        if i == I_POLL: a(poll_load(vFA, vPA, f"s{sWo}"))
        if i == I_CHK: a.add(aload())
        for td in range(2):
            acc = R(ACC + 32*tl + 16*td, 16)
            a(f"v_mfma_f32_32x32x16_bf16 {acc}, {R(8*k+4*td,4,'a')}, {R(slot(i),4)}, {'0' if k == 0 else acc}")
            if td == 0 and i + PRE < 56: a.add(hload(i + PRE))
            if tl == 1 and k >= 4:
                for _ in range(2):
                    if fin: a.add([fin.pop(0)])
    a.add(fin)
    stamp(a, 11)
    P1 = slot(0)
    r1 = reduce(1, P1)
    m0 = mix(0, PT, ACC)
    m1 = mix(1, P1, ACC + 16)
    a.add(r1[0]); a.add(m0[0]); a.add(m0[1]); a.add(m1[0]); a.add(r1[1]); a.add(m1[1])


def build_merged(N_FLAG=250, N_POLL=252, N_CHK=380, EVERY=13):
    name = NAME + "_kernel"
    a = Asm(); a.name = "k"
    stamp(a, 0)
    prologue(a, 256)
    a("s_cmp_lt_u32 s2, 32\ns_cbranch_scc1 Lhelper")
    mapping(a, 4); g1_setup(a)
    if PROF or PROBE: a("@lgkm0")
    stamp(a, 13)
    a.add(g1_dma(0)); epoch(a); g1_setup2(a); a.add(g1_dma(1)); a.add(g1_dma(2)); stamp(a, 14); g1_setup3(a); stamp(a, 15)
    o = Asm(); w2_setup(o); epoch2(o)
    o(f"""
    v_mov_b32 v{vTAG}, s{sTAG}
    v_and_b32 v34, 31, v1
    v_lshlrev_b32 v34, 2, v34
    s_mov_b32 s{sHH}, {FL_P}
    s_lshl_b32 s{sF}, s{sRT}, 1
    s_and_b32 s{sT0}, s{sW}, 1
    s_add_u32 s{sF}, s{sF}, s{sT0}
    s_lshl_b32 s{sF}, s{sF}, 4
    s_add_u32 s{sF}, s{sF}, s{sCT}
    s_lshl_b32 s{sF}, s{sF}, 1
    s_lshr_b32 s{sT0}, s{sW}, 1
    s_add_u32 s{sF}, s{sF}, s{sT0}
    s_lshl_b32 s{sF}, s{sF}, 2
    s_add_u32 s{sF}, s{sF}, {FL_H}
    """)
    hook = {}
    for t in range(16, 24): hook[t] = o.ins[4*(t-16):4*(t-15)]
    hook[23] += o.ins[32:]
    hook[24] = L(poll_load(35, 34, f"s{sHH}"))
    gemm1(a, hook)
    stamp(a, 2)
    a.add(poll_check("w2", 35, 34, f"s{sHH}"))
    stamp(a, 3)
    m = Asm()
    g1_epilogue(m)
    m(f"s_add_u32 s{sHH}, s{sHH}, 128\ns_barrier")
    stamp(m, 4)
    k = Asm(); kgen(k)
    ul = Asm(); stamp(ul, 6); u_load(ul)
    us = Asm(); u_stage(us)
    fl = Asm(); fl("@wait hst"); fl.add(flag_store(sF)); stamp(fl, 5)
    ki = k.ins
    m.add(ki[:N_FLAG]); m.add(fl); m.add(ki[N_FLAG:N_POLL]); m(poll_load(35, 34, f"s{sHH}"))
    m.add(ki[N_POLL:N_CHK]); m.add(poll_check("ut", 35, 34, f"s{sHH}")); m.add(ul)
    m.add(ki[N_CHK:k.mark]); m.add(us); m.add(ki[k.mark:])
    g = Asm(); g2_setup(g)
    px = Asm(); stamp(px, 8); px.add(poll_check("h", vFH, vPH, f"s{sX}")); stamp(px, 9)
    conv(m, g.ins, px.ins, [hload(i) for i in range(16)])
    a.add(weave(m.ins, w2_groups(), 0, EVERY))
    gemm2(a, 16)
    stamp(a, 12)
    stamps_out(a, 16)
    probe_out(a, False)
    h = Asm(); h.name = "k"
    helper(h, 2, True)
    t = (f".globl {name}\n.p2align 8\n.type {name},@function\n{name}:\n" + text_of(finalize(a.ins)) + "  s_endpgm\nLhelper:\n"
         + text_of(finalize(h.ins)) + "Lend_k:\n  s_endpgm\n")
    d = f""".p2align 6
.amdhsa_kernel {name}
  .amdhsa_next_free_vgpr 512
  .amdhsa_next_free_sgpr 102
  .amdhsa_accum_offset 256
  .amdhsa_group_segment_fixed_size 0
  .amdhsa_kernarg_size 128
  .amdhsa_user_sgpr_count 2
  .amdhsa_user_sgpr_kernarg_segment_ptr 1
  .amdhsa_system_sgpr_workgroup_id_x 1
.end_amdhsa_kernel
"""
    hdr = f"; @launch grid=(256,1,1) block=(256,1,1) lds={LDS_MAIN}\n"
    return hdr + '.amdgcn_target "amdgcn-amd-amdhsa--gfx950"\n.text\n' + t + '.section .rodata,"a"\n' + d


if __name__ == "__main__":
    args = [x for x in sys.argv[1:] if not x.startswith("-")]
    PROF = "-p" in sys.argv
    if "-c" in sys.argv: PROF = True; CLK = "s_memtime"
    for x in sys.argv:
        if x.startswith("-q"): PROBE = tuple(int(y) for y in x[2:].split(","))
    out = args[0] if args else f"cdna_kernels/{NAME}.s"
    open(out, "w").write(build_merged())
```

```python
import re

REG = re.compile(r'(?<![\w.])([vas])(\d+)(?![\w\[])|(?<![\w.])([vas])\[(\d+):(\d+)\]|(?<![\w.])(vcc|exec|m0)(?:_lo|_hi)?(?![\w])')
TRANS = ('v_exp_f32', 'v_log_f32', 'v_rcp_f32', 'v_rsq_f32', 'v_sqrt_f32', 'v_sin_f32', 'v_cos_f32')


def regs_of(text):
    out = []
    for m in REG.finditer(text):
        if m.group(1):
            out.append([(m.group(1), int(m.group(2)))])
        elif m.group(3):
            out.append([(m.group(3), i) for i in range(int(m.group(4)), int(m.group(5)) + 1)])
        else:
            out.append([(m.group(6), 0)])
    return out


class Ins:
    def __init__(self, text, tag=None):
        self.text = text
        self.tag = tag
        self.defs = set()
        self.uses = set()
        self.kind = None
        self.passes = 0
        self.srcC = set()
        self.srcAB = set()
        self.states = 1
        t = text.split(None, 1)
        op = self.op = t[0]
        rest = t[1] if len(t) > 1 else ''
        if op.endswith(':') or op.startswith('.'):
            self.kind = 'label'; self.states = 0; return
        if op.startswith('!'):
            self.text = text[1:]; self.kind = 'label'; self.states = 0; return
        if op.startswith('@'):
            self.kind = 'pseudo'; self.states = 0; self.arg = rest.strip(); return
        r = regs_of(rest)
        flat = lambda l: set(x for g in l for x in g)
        if op == 's_nop':
            self.kind = 'nop'; self.states = int(rest) + 1
        elif op in ('s_waitcnt', 's_barrier', 's_endpgm', 's_sleep', 's_setprio') or op.startswith('s_cbranch') or op == 's_branch':
            self.kind = 'ctl'
        elif op.startswith('s_load') or op.startswith('s_buffer_load') or op in ('s_memrealtime', 's_memtime'):
            self.kind = 'smem'; self.defs = flat(r[:1]); self.uses = flat(r[1:])
        elif op.startswith('s_cmp') or op.startswith('s_bitcmp') or op.startswith('s_setpc'):
            self.kind = 'salu'; self.uses = flat(r)
        elif op.startswith('s_'):
            self.kind = 'salu'; self.defs = flat(r[:1]); self.uses = flat(r[1:])
            if 'saveexec' in op: self.defs.add(('exec', 0))
            if op in ('s_addk_i32', 's_mulk_i32') or op.startswith('s_cmov'): self.uses |= self.defs
        elif op.startswith('v_mfma'):
            self.kind = 'mfma'; self.defs = flat(r[:1]); self.uses = flat(r[1:])
            self.passes = 8 if '32x32' in op else 4
            self.srcAB = flat(r[1:3]); self.srcC = flat(r[3:4])
        elif op.startswith('v_'):
            self.kind = 'valu'
            nd = 1
            if op.startswith('v_add_co') or op.startswith('v_addc_co') or op.startswith('v_sub_co'): nd = 2
            if 'swap' in op:
                self.defs = flat(r); self.uses = flat(r)
            else:
                self.defs = flat(r[:nd]); self.uses = flat(r[nd:])
                if 'fmac' in op or 'dpp' in text or 'sdwa' in text or op.startswith('v_writelane') or 'row_' in text or 'quad_perm' in text:
                    self.uses |= self.defs
        elif op.startswith('ds_read'):
            self.kind = 'dsr'; self.defs = flat(r[:1]); self.uses = flat(r[1:])
            if 'addtid' in op: self.uses.add(('m0', 0))
        elif op.startswith('ds_write'):
            self.kind = 'dsw'; self.uses = flat(r)
            if 'addtid' in op: self.uses.add(('m0', 0))
        elif op.startswith('buffer_load') or op.startswith('global_load'):
            if re.search(r'\blds\b', rest) or '_lds_' in op:
                self.kind = 'dma'; self.uses = flat(r) | {('m0', 0)}
            else:
                self.kind = 'vld'; self.defs = flat(r[:1]); self.uses = flat(r[1:])
        elif op.startswith('buffer_store') or op.startswith('global_store'):
            self.kind = 'vst'; self.uses = flat(r)
            di = 0 if op.startswith('buffer') else 1
            self.wide = set(r[di]) if len(r[di]) > 2 else set()
        else:
            raise ValueError('unknown instruction: ' + text)
        self.trans = op.replace('_e32', '').replace('_e64', '') in TRANS

    def isvm(self): return self.kind in ('dma', 'vld', 'vst')
    def isds(self): return self.kind in ('dsr', 'dsw')


class Asm:
    def __init__(self):
        self.ins = []

    def __call__(self, text, tag=None):
        for line in text.split('\n'):
            line = line.split(';')[0].strip()
            if line:
                self.ins.append(Ins(line, tag))
        return self

    def add(self, other):
        self.ins += other.ins if isinstance(other, Asm) else other
        return self


def sg(x): return x[0] in ('s', 'vcc')


def hazard(p, c):
    n = 0
    if p.kind == 'valu':
        vd = p.defs
        if c.kind == 'mfma' and vd & c.uses: n = max(n, 2)
        if c.kind == 'valu':
            if p.trans and vd & c.uses: n = max(n, 1)
            sd = set(x for x in vd if sg(x))
            if sd & c.uses: n = max(n, 4 if 'lane' in c.op else 2)
            if vd & c.uses:
                if c.op.startswith('v_readlane') or c.op.startswith('v_readfirstlane'): n = max(n, 1)
                if 'permlane' in c.op or 'dpp' in c.text or 'row_' in c.text or 'quad_perm' in c.text: n = max(n, 2)
            if 'dst_sel' in p.text and vd & (c.uses | c.defs): n = max(n, 1)
        if c.isvm() and set(x for x in vd if sg(x)) & c.uses: n = max(n, 5)
    if p.kind == 'mfma':
        big = 8 if p.passes == 4 else 12
        if c.kind == 'mfma':
            if p.defs & c.srcAB: n = max(n, big)
            if p.defs & (c.srcC | c.defs):
                exact = c.op == p.op and (c.srcC == p.defs or not (c.srcC & p.defs)) and (c.defs == p.defs or not (c.defs & p.defs))
                if not exact: n = max(n, big - 2)
        elif c.kind in ('valu', 'dsr', 'dsw', 'vld', 'vst', 'dma'):
            if p.defs & (c.uses | c.defs): n = max(n, big)
            if c.kind == 'valu' and p.srcC & c.defs: n = max(n, p.passes - 1)
    if p.kind == 'salu' and ('m0', 0) in p.defs and ('m0', 0) in c.uses and c.kind != 'salu': n = max(n, 1)
    if p.kind == 'vst' and p.wide & c.defs: n = max(n, 2 if c.kind in ('valu', 'mfma') else 1)
    return n


def finalize(ins):
    out = []
    vm = []
    lg = []

    def emit(i):
        need = 0; dist = 0
        for p in reversed(out):
            if p.kind in ('label', 'pseudo'): continue
            h = hazard(p, i)
            if h - dist > need: need = h - dist
            dist += p.states
            if dist > 14: break
        while need > 0:
            k = min(need, 16)
            out.append(Ins(f's_nop {k-1}')); need -= k
        out.append(i)

    def wait(nv, nl):
        nonlocal vm, lg
        parts = []
        if nv is not None and nv < len(vm):
            nv = min(nv, 63)
            parts.append(f'vmcnt({nv})'); vm = vm[len(vm) - nv:] if nv else []
        if nl is not None and nl < len(lg):
            if any(x.kind == 'smem' for x in lg): nl = 0
            nl = min(nl, 15)
            parts.append(f'lgkmcnt({nl})'); lg = lg[len(lg) - nl:] if nl else []
        if parts: emit(Ins('s_waitcnt ' + ' '.join(parts)))

    for i in ins:
        if i.kind == 'pseudo':
            if i.op == '@wait':
                idx = [k for k, x in enumerate(vm) if x.tag == i.arg]
                if idx: wait(len(vm) - 1 - idx[-1], None)
            elif i.op == '@lwait':
                idx = [k for k, x in enumerate(lg) if x.tag == i.arg]
                if idx: wait(None, len(lg) - 1 - idx[-1])
            elif i.op == '@bar': emit(Ins('s_barrier'))
            elif i.op == '@drain': wait(0, 0)
            elif i.op == '@lgkm0': wait(None, 0)
            elif i.op == '@vm0': wait(0, None)
            elif i.op == '@reset': vm = []; lg = []
            else: raise ValueError(i.text)
            continue
        if i.kind == 'label':
            out.append(i); continue
        touch = i.uses | i.defs
        nv = nl = None
        for k in range(len(vm) - 1, -1, -1):
            d = vm[k].defs
            if d & i.uses or (d & i.defs and not i.isvm()):
                nv = len(vm) - 1 - k; break
        for k in range(len(lg) - 1, -1, -1):
            d = lg[k].defs
            if d & i.uses or (d & i.defs and not (i.isds() and lg[k].isds())):
                nl = len(lg) - 1 - k; break
        if i.op == 's_barrier' and not getattr(i, 'raw', False): nl = 0
        wait(nv, nl)
        if i.op == 's_waitcnt':
            m = re.search(r'vmcnt\((\d+)\)', i.text)
            if m: n = int(m.group(1)); vm = vm[max(0, len(vm) - n):] if n else []
            m = re.search(r'lgkmcnt\((\d+)\)', i.text)
            if m and (int(m.group(1)) == 0 or not any(x.kind == 'smem' for x in lg)):
                n = int(m.group(1)); lg = lg[max(0, len(lg) - n):] if n else []
        emit(i)
        if i.isvm(): vm.append(i)
        if i.isds() or i.kind == 'smem': lg.append(i)
    return out


def text_of(ins):
    return '\n'.join((i.text if i.kind == 'label' else '  ' + i.text) for i in ins) + '\n'


def weave(main, fill, start=0, every=1, per=1):
    out = []; fill = list(fill); k = 0
    for n, i in enumerate(main):
        out.append(i)
        if n >= start and i.kind not in ('label', 'pseudo') and not getattr(i, 'glue', False):
            k += 1
            if k % every == 0:
                for _ in range(per):
                    if fill: out += fill.pop(0)
    for f in fill: out += f
    return out


def groups(ins):
    out = []; cur = []
    for i in ins:
        cur.append(i)
        if i.kind not in ('label', 'pseudo') and not getattr(i, 'glue', False):
            out.append(cur); cur = []
    if cur: out.append(cur)
    return out


def cost(g): return sum(1 for i in g if i.kind != 'label')


def fill(slots, queue, m0, m1):
    cap = 0.0
    while True:
        cap += 0.05
        q = list(queue); credit = 0.0; add = {}
        for m in range(m0, m1):
            credit = min(credit, 1.0) + cap - cost(slots[m])
            while q and credit >= 1:
                g = q.pop(0); add.setdefault(m, []).extend(g); credit -= cost(g)
        if not q: break
    for m, g in add.items(): slots[m] = slots[m] + g
    return cap
```

```python
import sys
from dsl import *

NAME = "gated_mix__ssm_conv_s4d__dense_activation_squared_relu__prompt"
FL_U, FL_H, FL_A, STAMPS = 0x10000, 0x30000, 0x50000, 0x70000
UT, A2, HH, WS_SIZE = 0x100000, 0x300000, 0x500000, 0xC00000
LOG2E = 0x3fb8aa3b
XB = 65536
WB = XB + 49152
LDS = 163840
GWO, BIO, GO, UO, KXO = 11 * 256, 15 * 256, 23 * 256, 6144, 12288
UP = 1088
W2SLOT = [16384, 65536, 32768, 81920, 0, 49152]
SC = "sc1"

X, W1, WS, OUT, W2 = 4, 8, 12, 16, 20
P_LA, P_AI, P_CR, P_CI, P_DT, P_DS, P_B1, P_W2, P_B2, P_GW = 24, 26, 28, 30, 32, 34, 36, 38, 40, 42
sW, sXCD, sJ7, sJM, sRT, sCT, sP, sC, sCW, sM = 3, 44, 45, 46, 47, 48, 49, 50, 51, 52
sT0, sT1, sT2, sT3, sDT, sDS, sH0, sH1, sTAG, sF = 53, 54, 55, 56, 57, 58, 59, 60, 61, 62
sCNT, sW2, sU, sPL, sR = 63, 64, 65, 66, 67
sHX, sFH, sUL, sMK = 24, 25, 26, 27
STAMP0 = 68
SPIN = 1 << 16
PROF = False
PROBE = None
CLK = 's_memrealtime'

vXa, vWa, vA, vB, vL16, vUL, vUW, vTAG, vKI = 2, 6, 10, 12, 16, 17, 18, 19, 20
vD2, vT2, vK, vKR, vUT, vGX, vGW, vUS, vPU, vFU = 24, 28, 32, 48, 56, 58, 60, 61, 62, 63
ACC1, BIAS, FR = 64, 128, 160
aG, aGD, aU = 224, 240, 244
UREG = [2, 6, 20]


def R(b, n=1, f='v'): return f"{f}{b}" if n == 1 else f"{f}[{b}:{b+n-1}]"
def S(b, n): return f"s[{b}:{b+n-1}]"
def L(text, tag=None): return Asm()(text, tag).ins


def glue(ins):
    for i in ins[:-1]: i.glue = True
    return ins


def stamp(i):
    if PROF or (PROBE is not None and i == PROBE[1]): return L(f"{CLK} {S(STAMP0+2*i,2)}")
    return []


def probe_out(a):
    if PROBE is None: return
    a(f"""
    s_cmp_lg_u32 s2, {PROBE[0]}
    s_cbranch_scc1 Lprobe_done
    s_waitcnt lgkmcnt(0)
    s_add_u32 s{sT0}, s{STAMP0+2*PROBE[1]}, 5000
    Lprobe:
    !  s_memrealtime s[100:101]
    !  s_waitcnt lgkmcnt(0)
    !  s_sub_u32 s100, s100, s{sT0}
    !  s_cmp_lt_i32 s100, 0
    !  s_cbranch_scc1 Lprobe
    Lprobe_done:
    """)


def stamps_out(a, n):
    if not PROF: return
    a(f"""
    s_lshl_b32 s{sT0}, s2, 2
    s_add_u32 s{sT0}, s{sT0}, s{sW}
    s_lshl_b32 s{sT0}, s{sT0}, 6
    s_add_u32 s{sT0}, s{sT0}, {STAMPS}
    s_mov_b64 exec, 1
    """)
    for i in range(n):
        a(f"v_mov_b32 v2, s{STAMP0+2*i}\nbuffer_store_dword v2, off, {S(WS,4)}, s{sT0} offset:{4*i}")


def flag_store(soff):
    return glue(L(f"""
    s_mov_b64 exec, 1
    buffer_store_dword v{vTAG}, off, {S(WS,4)}, {soff} sc1
    s_mov_b64 exec, -1
    """))


def poll_load(vf, va, soff):
    return f"buffer_load_dword v{vf}, v{va}, {S(WS,4)}, {soff} offen sc1"


def poll_check(name, vf, va, soff):
    return glue(L(f"""
    v_cmp_ne_u32 vcc, s{sTAG}, v{vf}
    s_cbranch_vccz Lok_{name}
    !  s_mov_b32 s{sCNT}, 0
    Lspin_{name}:
    !  {poll_load(vf, va, soff)}
    !  s_add_u32 s{sCNT}, s{sCNT}, 1
    !  s_cmp_lt_u32 s{sCNT}, {SPIN}
    !  s_waitcnt vmcnt(0)
    !  v_cmp_ne_u32 vcc, s{sTAG}, v{vf}
    !  s_cbranch_vccz Lok_{name}
    !  s_cbranch_scc1 Lspin_{name}
    Lok_{name}:
    """))


def prologue(a):
    a(f"""
    s_load_dwordx8 {S(P_LA,8)}, s[0:1], 8
    s_load_dwordx2 {S(X,2)}, s[0:1], 0
    s_load_dwordx2 {S(W1,2)}, s[0:1], 64
    s_load_dwordx8 {S(P_B1,8)}, s[0:1], 72
    s_load_dwordx2 {S(WS,2)}, s[0:1], 120
    s_load_dwordx4 {S(P_DT,4)}, s[0:1], 40
    s_cmp_ge_u32 s2, 224
    s_cbranch_scc1 Lend
    v_lshrrev_b32 v2, 6, v0
    v_and_b32 v1, 63, v0
    s_and_b32 s{sXCD}, s2, 7
    s_lshr_b32 s{sT0}, s2, 3
    v_readfirstlane_b32 s{sW}, v2
    s_mul_i32 s{sJ7}, s{sT0}, 37
    s_lshr_b32 s{sJ7}, s{sJ7}, 8
    s_mul_i32 s{sJM}, s{sJ7}, 7
    s_sub_u32 s{sJM}, s{sT0}, s{sJM}
    s_lshl_b32 s{sP}, s{sJM}, 3
    s_add_u32 s{sP}, s{sP}, s{sXCD}
    s_lshl_b32 s{sP}, s{sP}, 2
    s_add_u32 s{sP}, s{sP}, s{sJ7}
    s_lshr_b32 s{sRT}, s{sXCD}, 1
    s_lshl_b32 s{sRT}, s{sRT}, 2
    s_add_u32 s{sRT}, s{sRT}, s{sJ7}
    s_and_b32 s{sXCD}, s{sXCD}, 1
    s_mul_i32 s{sCT}, s{sXCD}, 7
    s_add_u32 s{sCT}, s{sCT}, s{sJM}
    s_lshl_b32 s{sC}, s{sJ7}, 1
    s_add_u32 s{sC}, s{sC}, s{sJM}
    s_sub_u32 s{sT0}, s{sC}, 7
    s_min_u32 s{sC}, s{sC}, s{sT0}
    s_lshl_b32 s{sU}, s{sC}, 1
    s_add_u32 s{sU}, s{sU}, s{sXCD}
    s_lshl_b32 s{sC}, s{sC}, 7
    s_mul_i32 s{sCW}, s{sC}, 1792
    s_lshl_b32 s{sT0}, s{sRT}, 2
    s_add_u32 s{sF}, s{sT0}, s{sW}
    s_mul_i32 s{sT0}, s{sF}, {32*896}
    s_mul_i32 s{sT1}, s{sW}, {16*3584}
    s_lshl_b32 s{sT2}, s{sCT}, 8
    s_add_u32 s{sT1}, s{sT1}, s{sT2}
    s_lshl_b32 s{sM}, s{sW}, 12
    s_add_u32 s{sM}, s{sM}, {XB}
    s_lshl_b32 s{sR}, s{sW}, 14
    s_lshl_b32 s{sT3}, s{sP}, 2
    s_add_u32 s{sH0}, s{sT3}, s{sW}
    s_lshl_b32 s{sH0}, s{sH0}, 8
    v_lshlrev_b32 v{vK}, 2, v1
    v_add_u32 v33, s{sH0}, v{vK}
    v_add_u32 v34, s{sT2}, v{vK}
    s_lshl_b32 s{sH0}, s{sW}, 8
    s_add_u32 s{sH0}, s{sH0}, s{sC}
    v_add_u32 v35, s{sH0}, v{vK}
    v_subrev_u32 v36, 896, v35
    v_min_u32 v35, v35, v36
    v_lshrrev_b32 v17, 3, v1
    v_lshrrev_b32 v18, 4, v1
    v_mul_u32_u24 v{vD2}, 896, v17
    v_and_b32 v19, 7, v1
    v_xor_b32 v19, v19, v18
    v_lshl_add_u32 v17, v19, 4, v{vD2}
    v_add_u32 v{vXa}, s{sT0}, v17
    v_xor_b32 v17, 64, v{vXa}
    v_add_u32 v{vXa+1}, 6144, v17
    v_add_u32 v{vXa+2}, 12288, v{vXa}
    v_add_u32 v{vXa+3}, {6144+12288}, v17
    v_mul_u32_u24 v17, 3584, v18
    v_lshlrev_b32 v18, 2, v18
    v_xor_b32 v18, v18, v1
    v_and_b32 v18, 15, v18
    v_lshl_add_u32 v17, v18, 4, v17
    v_add_u32 v{vWa}, s{sT1}, v17
    v_add_u32 v{vWa+1}, 13312, v{vWa}
    v_add_u32 v{vWa+2}, {2*13312}, v{vWa}
    v_add_u32 v{vWa+3}, {3*13312}, v{vWa}
    s_mov_b32 s{X+2}, {2048*896}
    s_mov_b32 s{X+3}, 0x20000
    s_mov_b32 s{W1+2}, {448*3584}
    s_mov_b32 s{W1+3}, 0x20000
    s_add_u32 m0, s{sR}, {BIO}
    @lgkm0
    """)
    a.add(stamp(13))
    a(f"""
    global_load_dword v{vKI}, v33, {S(P_LA,2)}
    global_load_dword v{vKI+1}, v33, {S(P_AI,2)}
    global_load_dword v{vKI+2}, v33, {S(P_CR,2)}
    global_load_dword v{vKI+3}, v33, {S(P_CI,2)}
    """)
    a(f"global_load_lds_dword v34, {S(P_B1,2)}", tag="bias")
    a(f"""
    s_load_dword s{sDT}, {S(P_DT,2)}, s{sT3}
    s_load_dword s{sDS}, {S(P_DS,2)}, s{sT3}
    s_load_dword s{sTAG}, {S(WS,2)}, 0
    s_load_dwordx2 {S(OUT,2)}, s[0:1], 104
    """)
    for g in g1_dma(0): a.add(g)
    a(f"s_add_u32 m0, s{sR}, {GWO}")
    a(f"global_load_lds_dword v35, {S(P_GW,2)}", tag="c0")


def g1_dma(c):
    slot = c % 3
    out = []
    for i in range(4):
        o = Asm()
        if i == 0:
            if c: o(f"s_add_u32 s{sC}, s{sC}, 128\ns_cmp_eq_u32 s{sC}, 896\ns_cselect_b32 s{sC}, 0, s{sC}")
            o(f"s_add_u32 m0, s{sM}, {slot*16384}")
            if c: o(f"s_mul_i32 s{sCW}, s{sC}, 1792")
        o(f"buffer_load_dwordx4 v{vXa+i}, {S(X,4)}, s{sC} offen offset:{1024*i} lds", tag=f"c{c}" if c else "c0x")
        if i == 3: o(f"s_add_u32 m0, s{sM}, {49152 + slot*16384}")
        out.append(o.ins)
    for i in range(4):
        out.append(L(f"buffer_load_dwordx4 v{vWa+i}, {S(W1,4)}, s{sCW} offen offset:{1024*i} lds", tag=f"c{c}"))
    return out


def setup(a):
    a(f"""
    s_lshr_b32 s{sT0}, s{sW}, 1
    s_and_b32 s{sT1}, s{sW}, 1
    v_lshrrev_b32 v17, 5, v1
    v_bfe_u32 v18, v1, 2, 2
    v_lshl_add_u32 v19, v17, 3, v18
    v_lshlrev_b32 v19, 8, v19
    s_lshl_b32 s{sT2}, s{sT0}, 1
    v_xor_b32 v33, s{sT2}, v18
    v_lshl_add_u32 v19, v33, 6, v19
    v_and_b32 v33, 1, v1
    v_lshl_add_u32 v19, v33, 5, v19
    v_and_b32 v34, 16, v1
    v_add_u32 v19, v34, v19
    v_and_b32 v35, 2, v1
    v_lshl_add_u32 v19, v35, 2, v19
    v_add_u32 v{vA}, {WB}, v19
    v_xor_b32 v{vA+1}, 64, v{vA}
    v_lshl_add_u32 v19, v17, 4, v18
    v_lshlrev_b32 v19, 7, v19
    v_lshl_add_u32 v19, v33, 4, v19
    v_lshl_add_u32 v19, v34, 1, v19
    v_lshl_add_u32 v19, v35, 2, v19
    v_and_b32 v36, 8, v1
    v_lshl_add_u32 v19, v36, 3, v19
    v_add_u32 v{vT2}, s{sM}, v19
    v_xor_b32 v{vT2+1}, 64, v{vT2}
    v_add_u32 v{vT2+2}, 0x10000, v{vT2}
    v_add_u32 v{vT2+3}, 0x10000, v{vT2+1}
    v_and_b32 v19, 3, v1
    v_lshl_add_u32 v19, v19, 3, v18
    v_lshlrev_b32 v19, 7, v19
    v_xor_b32 v33, s{sXCD}, v33
    v_lshl_add_u32 v19, v33, 6, v19
    v_lshrrev_b32 v36, 3, v36
    v_xor_b32 v36, v36, v17
    v_lshl_add_u32 v19, v36, 4, v19
    v_lshrrev_b32 v34, 1, v34
    v_add3_u32 v{vUT}, v19, v34, s{sM}
    v_xor_b32 v{vUT+1}, 32, v{vUT}
    v_and_b32 v33, 31, v1
    v_lshlrev_b32 v18, 7, v33
    v_bfe_u32 v34, v1, 1, 3
    v_xor_b32 v19, v34, v17
    v_lshl_add_u32 v18, v19, 4, v18
    s_lshl_b32 s{sT2}, s{sT1}, 13
    s_add_u32 s{sT2}, s{sT2}, {XB}
    v_add_u32 v{vB}, s{sT2}, v18
    v_xor_b32 v{vB+1}, 32, v{vB}
    v_xor_b32 v{vB+2}, 64, v{vB}
    v_xor_b32 v{vB+3}, 96, v{vB}
    v_lshlrev_b32 v{vL16}, 4, v1
    v_and_b32 v35, 15, v1
    v_xor_b32 v19, v35, v17
    v_lshlrev_b32 v19, 4, v19
    v_lshl_add_u32 v19, v33, 8, v19
    v_add_u32 v{vKR}, s{sR}, v19
    s_lshl_b32 s{sT2}, s{sT0}, 7
    s_add_u32 s{sT2}, s{sT2}, s{sR}
    v_lshl_add_u32 v{vFU}, v17, 5, s{sT2}
    v_lshrrev_b32 v18, 4, v1
    v_lshlrev_b32 v{vGW}, 4, v18
    v_xor_b32 v19, v34, v18
    v_lshlrev_b32 v19, 4, v19
    v_lshl_add_u32 v19, v35, 7, v19
    s_lshl_b32 s{sT2}, s{sXCD}, 2
    s_add_u32 s{sT2}, s{sT2}, s{sW}
    s_lshl_b32 s{sT2}, s{sT2}, 11
    s_add_u32 s{sT2}, s{sT2}, {XB}
    v_add_u32 v{vGX}, s{sT2}, v19
    v_xor_b32 v{vGX+1}, 64, v{vGX}
    v_lshlrev_b32 v19, 4, v35
    v_lshl_add_u32 v{vUS}, v18, 14, v19
    v_lshrrev_b32 v19, 2, v1
    v_and_b32 v19, 4, v19
    v_xor_b32 v19, v19, v1
    v_and_b32 v19, 7, v19
    v_lshl_add_u32 v{vD2}, v19, 4, v{vD2}
    v_add_u32 v{vD2+1}, 6144, v{vD2}
    v_add_u32 v{vD2+2}, 12288, v{vD2}
    v_add_u32 v{vD2+3}, 18432, v{vD2}
    s_mul_i32 s{sW2}, s{sW}, {448*896}
    s_lshl_b32 s{sT2}, s{sJM}, 7
    s_add_u32 s{sW2}, s{sW2}, s{sT2}
    v_lshrrev_b32 v19, 1, v1
    v_and_b32 v33, 1, v1
    v_lshlrev_b32 v{vUL}, 6, v19
    v_lshl_add_u32 v{vUL}, v33, 4, v{vUL}
    v_mul_u32_u24 v33, {2*UP}, v33
    v_lshl_add_u32 v19, v19, 4, v33
    s_add_u32 s{sT2}, s{sR}, {UO}
    v_add_u32 v{vUW}, s{sT2}, v19
    s_lshl_b32 s{sT2}, s{sW}, 4
    v_min_u32 v19, 16, v1
    v_add_u32 v19, s{sT2}, v19
    v_max_u32 v19, 1, v19
    v_lshlrev_b32 v{vPU}, 7, v19
    v_add_u32 v{vK}, s{sR}, v{vK}
    """)
    for i in range(1, 16): a(f"v_xor_b32 v{vK+i}, {16*i}, v{vK}")
    for i in range(1, 8): a(f"v_xor_b32 v{vKR+i}, {32*i}, v{vKR}")
    a(f"""
    s_mov_b32 s{WS+2}, {WS_SIZE}
    s_mov_b32 s{WS+3}, 0x20000
    s_mov_b32 s{OUT+2}, {2048*896}
    s_mov_b32 s{OUT+3}, 0x20000
    s_mov_b32 s{W2}, s{P_W2}
    s_mov_b32 s{W2+1}, s{P_W2+1}
    s_mov_b32 s{W2+2}, {1792*896}
    s_mov_b32 s{W2+3}, 0x20000
    s_lshl_b32 s{sH0}, s{sRT}, 1
    s_add_u32 s{sRT}, s{sH0}, s{sXCD}
    s_add_u32 s{sH0}, s{sH0}, s{sT1}
    s_mul_i32 s{sH0}, s{sH0}, 28
    s_lshl_b32 s{sT2}, s{sCT}, 1
    s_add_u32 s{sT2}, s{sT2}, s{sT0}
    s_add_u32 s{sFH}, s{sH0}, s{sT2}
    s_add_u32 s{sH0}, s{sH0}, s{sFH}
    s_lshl_b32 s{sFH}, s{sFH}, 7
    s_add_u32 s{sFH}, s{sFH}, {FL_H}
    s_lshl_b32 s{sH0}, s{sH0}, 12
    s_add_u32 s{sH0}, s{sH0}, {HH}
    s_add_u32 s{sH1}, s{sH0}, {112*1024}
    s_lshl_b32 s{sT2}, s{sU}, 6
    s_add_u32 s{sT2}, s{sT2}, s{sF}
    s_lshl_b32 s{sU}, s{sU}, 9
    s_add_u32 s{sU}, s{sU}, s{sF}
    s_lshl_b32 s{sU}, s{sU}, 8
    s_add_u32 s{sU}, s{sU}, {UT}
    s_lshl_b32 s{sF}, s{sT2}, 7
    s_add_u32 s{sF}, s{sF}, {FL_U}
    s_lshr_b32 s{sPL}, s{sP}, 4
    s_lshl_b32 s{sPL}, s{sPL}, 13
    s_add_u32 s{sPL}, s{sPL}, {FL_U - 128}
    s_lshr_b32 s{sUL}, s{sP}, 1
    s_lshl_b32 s{sUL}, s{sUL}, 2
    s_add_u32 s{sUL}, s{sUL}, s{sW}
    s_lshl_b32 s{sUL}, s{sUL}, 7
    s_and_b32 s{sT2}, s{sP}, 1
    s_add_u32 s{sUL}, s{sUL}, s{sT2}
    s_lshl_b32 s{sUL}, s{sUL}, 5
    s_add_u32 s{sUL}, s{sUL}, {UT - 128}
    """)
    a.add(glue(L(f"s_cmp_lg_u32 s{sW}, 0\ns_cselect_b32 s{sMK}, -1, 0")))


def bias(a):
    a("@wait bias")
    for k, o in enumerate((0, 16, 64, 80)): a(f"ds_read_b128 {R(FR+4*k,4)}, v{vFU} offset:{BIO + o}")
    o = Asm()
    for k in range(16):
        o(f"v_lshlrev_b32 v{BIAS+2*k}, 16, v{FR+k}\nv_and_b32 v{BIAS+2*k+1}, 0xffff0000, v{FR+k}")
    return o.ins


def g1_reads(t):
    c, s = divmod(t, 4)
    slot = c % 3
    b = FR + 16 * (t & 1)
    A = lambda tf: [Ins(f"ds_read_b64_tr_b16 {R(b+4*tf+2*h,2)}, v{vA+tf} offset:{slot*16384 + (16*s+4*h)*256}", f"r{t}") for h in range(2)]
    B = lambda tl: [Ins(f"ds_read_b128 {R(b+8+4*tl,4)}, v{vB+s} offset:{slot*16384 + 4096*tl}", f"r{t}")]
    return A(0) + B(0) + B(1) + A(1)


def gate(c, kb):
    b = aG + 8 * kb
    rd = L(f"""
    ds_read_b128 {R(b,4,'a')}, v{vGW} offset:{(c>>1)*16384 + GWO + (c&1)*128 + 64*kb}
    ds_read_b128 {R(b+4,4,'a')}, v{vGX+kb} offset:{(c%3)*16384}
    """)
    return rd, L(f"v_mfma_f32_16x16x32_bf16 {R(aGD,4,'a')}, {R(b,4,'a')}, {R(b+4,4,'a')}, {'0' if c == 0 and kb == 0 else R(aGD,4,'a')}")


def gate_out(a):
    a(f"""
    v_accvgpr_read_b32 v{vGX}, a{aGD}
    v_and_b32 v{vGX+1}, 15, v1
    v_mul_f32 v{vGX}, {LOG2E | 0x80000000}, v{vGX}
    v_exp_f32 v{vGX}, v{vGX}
    v_lshl_add_u32 v{vGX+1}, v{vGX+1}, 2, s{sR}
    v_add_f32 v{vGX}, 1.0, v{vGX}
    v_rcp_f32 v{vGX}, v{vGX}
    s_nop 0
    ds_write_b32 v{vGX+1}, v{vGX} offset:{GO}
    """)


def w2_dma(k):
    out = []
    for i in range(4):
        o = Asm()
        if i == 0:
            if k >= 6: o(f"@lwait x{k-6}")
            o(f"s_add_u32 m0, s{sM}, {W2SLOT[k % 6]}")
            if k: o(f"s_add_u32 s{sW2}, s{sW2}, {32*896}")
        o(f"buffer_load_dwordx4 v{vD2+i}, {S(W2,4)}, s{sW2} offen offset:{1024*i} lds", tag=f"w{k}")
        out.append(o.ins)
    return out


def w2_reads(k):
    off = W2SLOT[k % 6]
    hi = 2 if off >= 65536 else 0
    out = []
    for s in range(2):
        for td in range(2):
            for h in range(2):
                o = Asm()
                if not out: o(f"@wait w{k}")
                o(f"ds_read_b64_tr_b16 {R(8*(2*k+s)+4*td+2*h,2,'a')}, v{vT2+hi+td} offset:{(off & 0xffff) + (8*s+4*h)*128}", tag=f"x{k}")
                out.append(o.ins)
    return out


def u_load():
    o = Asm()
    for i in range(2):
        o(f"buffer_load_dwordx4 {R(UREG[i],4)}, v{vUL}, {S(WS,4)}, s{sUL} offen offset:{128 + 2048*i} {SC}")
    return groups(o.ins + glue(L(f"""
    s_mov_b64 exec, 15
    buffer_load_dwordx4 {R(UREG[2],4)}, v{vUL}, {S(WS,4)}, s{sUL} offen {SC}
    s_mov_b64 exec, -1
    """)))


def gemm1(a, P):
    kq = groups(kgen_pass(0))
    slots = [[] for _ in range(112)]
    pre = [[] for _ in range(112)]
    for t in range(28):
        c, s = divmod(t, 4)
        pre[4*t] = L(f"@lwait r{t}")
        if s == 3:
            slots[4*t] += L(f"@wait c{c+1}\n@bar" if c < 6 else "@bar")
            if c == 2: slots[4*t] += L("@wait ut") + flag_store(f"s{sF}")
        if t < 27:
            for i, r in zip(P['RD'], g1_reads(t + 1)): slots[4*t + i].append(r)
        if s < 2:
            rd, mf = gate(c, s)
            slots[4*t + 2] += rd
            slots[4*t + 6] += mf
    for c in range(7):
        d = g1_dma(c + 3) if c < 4 else w2_dma(2*(c-4)) + w2_dma(2*(c-4) + 1)
        pos = [16*c + 12 + x for x in P['DM']]
        rest = []
        for m, g in zip(pos, d):
            if m < 112: slots[m] += g
            else: rest.append(g)
    for s in range(2):
        o = Asm()
        if s: o(f"s_add_u32 s{sU}, s{sU}, 65536")
        o(f"buffer_store_dwordx4 {R(aU+4*s,4,'a')}, v{vUS}, {S(WS,4)}, s{sU} offen {SC}", tag="ut")
        slots[1 + 2*s] += o.ins
    slots[P['UP']] += L(poll_load(vFU, vPU, f"s{sPL}"))
    slots[P['UC']] += poll_check("u", vFU, vPU, f"s{sPL}") + stamp(3)
    for i, g in enumerate(u_load()): slots[P['UC'] + 2*i] += g
    cap = fill(slots, kq, P['K0'], P['K1'])
    print("gemm1 cap", round(cap, 2), "instr", sum(cost(s) for s in slots) + 112 + 28)
    a("@wait c0x")
    for s in range(2):
        for h in range(2):
            a(f"ds_read_b64_tr_b16 {R(aU+4*s+2*h,2,'a')}, v{vUT + (s^h)} offset:{512*h}")
    a("@wait c0\n@bar")
    a.add(stamp(1))
    a.add(g1_reads(0))
    for m in range(112):
        t, k = divmod(m, 4)
        tf, tl = divmod(k, 2)
        b = FR + 16 * (t & 1)
        d = R(ACC1 + 32*tf + 16*tl, 16)
        a.add(pre[m])
        a(f"v_mfma_f32_32x32x16_bf16 {d}, {R(b+4*tf,4)}, {R(b+8+4*tl,4)}, {R(BIAS+16*tf,16) if t == 0 else d}")
        a.add(slots[m])
    return rest


def g1_epilogue(a):
    for tf in range(2):
        for tl in range(2):
            d = ACC1 + 32*tf + 16*tl
            o = FR + 16*tf + 8*tl
            for s in range(2):
                for r in range(8*s, 8*s + 8): a(f"v_max_f32 v{d+r}, 0, v{d+r}")
                for r in range(8*s, 8*s + 8, 2): a(f"v_pk_mul_f32 {R(d+r,2)}, {R(d+r,2)}, {R(d+r,2)}")
                for r in range(8*s, 8*s + 8, 2): a(f"v_cvt_pk_bf16_f32 v{o+r//2}, v{d+r}, v{d+r+1}")
                a(f"buffer_store_dwordx4 {R(o+4*s,4)}, v{vL16}, {S(WS,4)}, s{sH1 if tl else sH0} offen offset:{(2*tf+s)*1024} {SC}", tag="hst")


E1, E8, E256, CC, E2, E4, SA, TT, SB, TA, TB = 192, 196, 200, 204, 208, 210, 212, 214, 216, 218, 220
WA, WBR, W10, ONE, ER, ZI, KD, KF = 222, 226, 230, 231, 232, 234, 236, 128


def kgen_pre(a):
    DT, TM = E2, TA
    a(f"""
    s_lshr_b32 s{sT0}, s{sW}, 1
    s_lshl_b32 s{sT0}, s{sT0}, 4
    s_lshr_b32 s{sDT}, s{sDT}, s{sT0}
    s_lshl_b32 s{sDT}, s{sDT}, 16
    s_lshr_b32 s{sDS}, s{sDS}, s{sT0}
    s_lshl_b32 s{sDS}, s{sDS}, 16
    s_mul_i32 s{sTAG}, s{sTAG}, 0x9E3779B1
    s_add_u32 s{sTAG}, s{sTAG}, 0x7F4A7C15
    v_mov_b32 v{DT}, {LOG2E}
    v_mul_f32 v{DT}, s{sDT}, v{DT}
    v_exp_f32 v{DT}, v{DT}
    v_mov_b32 v{vTAG}, s{sTAG}
    v_mov_b32 v{ONE}, 0x3f80
    v_cvt_pk_bf16_f32 v{DT}, v{DT}, v{DT}
    v_lshlrev_b32 v{ER}, 16, v{vKI}
    v_and_b32 v{ER+1}, 0xffff0000, v{vKI}
    v_mul_f32 v{ER}, {LOG2E}, v{ER}
    v_mul_f32 v{ER+1}, {LOG2E}, v{ER+1}
    v_exp_f32 v{ER}, v{ER}
    v_exp_f32 v{ER+1}, v{ER+1}
    v_lshlrev_b32 v{DT}, 16, v{DT}
    v_lshlrev_b32 v{ZI}, 16, v{vKI+1}
    v_and_b32 v{ZI+1}, 0xffff0000, v{vKI+1}
    v_cvt_pk_bf16_f32 v{ER+1}, v{ER}, v{ER+1}
    v_mul_f32 v{ZI}, v{ZI}, v{DT}
    v_mul_f32 v{ZI+1}, v{ZI+1}, v{DT}
    v_lshlrev_b32 v{ER}, 16, v{ER+1}
    v_and_b32 v{ER+1}, 0xffff0000, v{ER+1}
    v_mul_f32 v{ZI}, 0.15915494, v{ZI}
    v_mul_f32 v{ZI+1}, 0.15915494, v{ZI+1}
    v_mul_f32 v{ER}, v{ER}, v{DT}
    v_mul_f32 v{ER+1}, v{ER+1}, v{DT}
    v_mul_f32 v{ER}, {LOG2E | 0x80000000}, v{ER}
    v_mul_f32 v{ER+1}, {LOG2E | 0x80000000}, v{ER+1}
    v_add_f32 v{DT}, v{DT}, v{DT}
    v_lshlrev_b32 v{CC}, 16, v{vKI+2}
    v_lshlrev_b32 v{CC+1}, 16, v{vKI+3}
    v_and_b32 v{CC+2}, 0xffff0000, v{vKI+2}
    v_and_b32 v{CC+3}, 0xffff0000, v{vKI+3}
    v_pk_mul_f32 {R(CC,2)}, {R(CC,2)}, {R(DT,2)} op_sel_hi:[1,0]
    v_pk_mul_f32 {R(CC+2,2)}, {R(CC+2,2)}, {R(DT,2)} op_sel_hi:[1,0]
    """)
    for E, p in ((E8, 0x41000000), (E1, None), (E256, 0x43800000)):
        for n in range(2):
            if p:
                a(f"v_mul_f32 v{TM+2*n}, {p}, v{ER+n}\nv_mul_f32 v{TM+2*n+1}, {p}, v{ZI+n}")
                a(f"v_exp_f32 v{TM+2*n}, v{TM+2*n}\nv_fract_f32 v{TM+2*n+1}, v{TM+2*n+1}")
            else:
                a(f"v_exp_f32 v{TM+2*n}, v{ER+n}\nv_fract_f32 v{TM+2*n+1}, v{ZI+n}")
            a(f"v_cos_f32 v{E+2*n}, v{TM+2*n+1}\nv_sin_f32 v{E+2*n+1}, v{TM+2*n+1}")
        for n in range(2):
            a(f"v_pk_mul_f32 {R(E+2*n,2)}, {R(E+2*n,2)}, {R(TM+2*n,2)} op_sel_hi:[1,0]")


def kgen_pass(n, extra=()):
    a = Asm()
    e1, e8, e256, cc = E1 + 2*n, E8 + 2*n, E256 + 2*n, CC + 2*n
    A = {0: (None, cc), 1: ((cc, e1), SA), 8: ((cc, e256), TT), 9: ((TT, E2), SA)}
    for r in range(2, 8): A[r] = ((SA, e1), SA)
    for r in (10, 13, 14): A[r] = ((SA, E2), SA)
    for r in (16, 20): A[r] = ((TT, e256), TT); A[r+1] = ((TT, E4), SA); A[r+2] = ((SA, E4), SA)
    for r in (24, 26, 28, 30): A[r] = ((TT, e256), TT); A[r+1] = ((TT, e8), SA)
    for r in range(32):
        ops = []
        if r in A and A[r][0]: ops.append((A[r][1], *A[r][0], TA))
        ops.append({0: (E2, e1, e1, TB), 1: (E4, E2, E2, TB), 2: (SB, e8, e8, TB)}.get(r, (SB, SB, e8, TB)))
        for d, x, y, t in ops: a(f"v_pk_mul_f32 {R(t,2)}, {R(x,2)}, {R(y,2)} op_sel:[0,0] op_sel_hi:[0,1]")
        for d, x, y, t in ops: a(f"v_pk_fma_f32 {R(d,2)}, {R(x,2)}, {R(y,2)}, {R(t,2)} op_sel:[1,1,0] op_sel_hi:[1,0,1] neg_lo:[1,0,0]")
        wa = W10 if r in (10, 12) else WA + (r & 3)
        wb = ONE if r == 0 else WBR + (r & 3)
        if r in A: a(f"v_cvt_pk_bf16_f32 v{wa}, v{A[r][1]}, -v{A[r][1]+1}")
        if r: sb = e8 if r == 1 else SB; a(f"v_cvt_pk_bf16_f32 v{wb}, v{sb}, v{sb+1}")
        if r in A or r == 12: a(f"ds_write2st64_b32 v{vK + (r&15)}, v{wa}, v{wb} offset0:{r} offset1:{32+r}")
        else: a(f"ds_write_b32 v{vK + (r&15)}, v{wb} offset:{(32+r)*256}")
    a.add(stamp(6) if n else [])
    extra = list(extra)
    for s in range(12):
        if s >= 4:
            k = s - 4
            b = KF + 8*(k & 3)
            a(f"v_mfma_f32_32x32x16_bf16 {R(KD,16)}, {R(b,4)}, {R(b+4,4)}, {'0' if k == 0 and n == 0 else R(KD,16)}")
        if s < 8:
            b = KF + 8*(s & 3)
            a(f"ds_read_b128 {R(b,4)}, v{vKR+s}\nds_read_b128 {R(b+4,4)}, v{vKR+s} offset:8192")
        if s >= 7:
            for _ in range(7):
                if extra: a.add(extra.pop(0))
    for g in extra: a.add(g)
    return a.ins


def u_stage():
    a = Asm()
    T = ACC1
    for k in range(4): a(f"v_and_b32 v{UREG[2]+k}, s{sMK}, v{UREG[2]+k}")
    for i in range(3):
        d = UREG[i]
        a(f"v_lshlrev_b32 v{T+4*i}, 16, v{d}")
        for k in range(1, 4): a(f"v_alignbit_b32 v{T+4*i+k}, v{d+k}, v{d+k-1}, 16")
        if i < 2:
            a(f"ds_write_b128 v{vUW}, {R(d,4)} offset:{32 + 512*i}")
            a(f"ds_write_b128 v{vUW}, {R(T+4*i,4)} offset:{UP + 32 + 512*i}")
    for i in range(2): a(f"ds_write_b16_d16_hi v{vUW}, v{UREG[i]+3} offset:{UP + 48 + 512*i}")
    a.add(glue(L(f"""
    s_mov_b64 exec, 15
    ds_write_b128 v{vUW}, {R(UREG[2],4)}
    ds_write_b128 v{vUW}, {R(T+8,4)} offset:{UP}
    ds_write_b16_d16_hi v{vUW}, v{UREG[2]+3} offset:{UP + 16}
    s_mov_b64 exec, -1
    """)))
    a(f"""
    v_add_u32 v10, s{sR}, v{vL16}
    v_xor_b32 v11, 0x4000, v10
    v_mov_b32 v100, 0
    v_mov_b32 v101, 0
    v_mov_b32 v102, 0
    v_mov_b32 v103, 0
    ds_write_b128 v10, v[100:103] offset:4096
    v_cmp_eq_u32 vcc, 0, v1
    v_mov_b32 v15, s{sDS}
    v_and_b32 v32, 31, v1
    v_cndmask_b32 v15, 0, v15, vcc
    v_lshrrev_b32 v33, 5, v1
    v_lshlrev_b32 v34, 4, v32
    v_sub_u32 v34, s{sR}, v34
    v_lshlrev_b32 v35, 3, v33
    v_sub_u32 v12, v34, v35
    v_lshlrev_b32 v35, 9, v33
    v_sub_u32 v13, v34, v35
    v_sub_u32 v14, v13, v35
    v_add_u32 v12, 3576, v12
    v_add_u32 v13, 3056, v13
    v_add_u32 v14, 1520, v14
    v_and_b32 v33, 15, v1
    v_lshrrev_b32 v32, 4, v32
    v_lshlrev_b32 v33, 2, v33
    v_lshl_add_u32 v32, v32, 14, v33
    """)
    return groups(a.ins)


GV = 20


def kgen_tail(a):
    D = KD
    for q in range(4): a(f"ds_write_b128 v10, {R(D+4*q,4)} offset:{KXO + 1024*q}")
    a(f"""
    v_and_b32 v33, 1, v1
    v_cmp_eq_u32 vcc, 1, v33
    s_barrier
    """)
    a.add(stamp(7))
    for q in range(4): a(f"ds_read_b128 {R(80+4*q,4)}, v11 offset:{KXO + 1024*q}")
    for tl in range(2): a(f"ds_read_b32 v{GV+2*tl}, v32 offset:{GO + 32768*tl}")
    conv_setup(a)
    a(f"v_add_f32 v{D}, v{D}, v15")
    for k in range(0, 16, 2): a(f"v_pk_add_f32 {R(D+k,2)}, {R(D+k,2)}, {R(80+k,2)}")
    O = 96
    cv = lambda o, x, y: a(f"v_cvt_pk_bf16_f32 v{o}, v{x}, v{y}")
    cv(O, D+3, D+2); cv(O+1, D+1, D); a(f"ds_write_b64 v12, {R(O,2)} offset:512")
    cv(O+2, D+6, D+5); cv(O+3, D+4, D+4); a(f"ds_write_b64 v12, {R(O+2,2)}")
    cv(O+4, D+10, D+10); cv(O+5, D+9, D+9); cv(O+6, D+9, D+8); cv(O+7, D+8, D+8); a(f"ds_write_b128 v13, {R(O+4,4)}")
    for t in range(2):
        e0, e1, o = D+12+2*t, D+13+2*t, O+8+4*t
        a(f"v_cndmask_b32 v33, v{e0}, v{e1}, vcc")
        cv(o, e1, e1); cv(o+1, e1, 33); cv(o+2, e0, e0); cv(o+3, e0, e0)
        a(f"ds_write_b128 v14, {R(o,4)} offset:{512*(1-t)}")


vU, vKf, vCW, vCR = 2, 6, 7, 8
vPH, vFH, vPA, vFA, B2R, vA2, vO, vGXW, vGXR, AV = 9, 10, 11, 17, 12, 18, 21, 23, 2, 24


def conv_setup(a):
    a(f"""
    s_lshr_b32 s{sT0}, s{sW}, 1
    s_and_b32 s{sT2}, s{sW}, 1
    s_mul_i32 s{sT1}, s{sT0}, {2*UP}
    s_lshl_b32 s{sT3}, s{sT2}, 8
    s_sub_u32 s{sT1}, s{sT1}, s{sT3}
    s_add_u32 s{sT1}, s{sT1}, {UO + UP + 260}
    v_lshrrev_b32 v7, 4, v1
    v_bfe_u32 v8, v1, 1, 3
    v_lshlrev_b32 v8, 2, v8
    v_lshl_add_u32 v8, v7, 4, v8
    v_mul_u32_u24 v9, {UP}, v33
    v_sub_u32 v8, v8, v9
    v_add_u32 v{vU}, s{sT1}, v8
    v_add_u32 v{vU+1}, 0x4000, v{vU}
    v_add_u32 v{vU+2}, 0x8000, v{vU}
    v_add_u32 v{vU+3}, 0xc000, v{vU}
    s_sub_u32 s{sT1}, s{sR}, s{sT3}
    s_add_u32 s{sT1}, s{sT1}, {4512 - 3584 - 192}
    v_and_b32 v8, 15, v1
    v_lshlrev_b32 v8, 5, v8
    v_lshlrev_b32 v9, 4, v7
    v_sub_u32 v8, v9, v8
    v_add_u32 v{vKf}, s{sT1}, v8
    """)


def g2_setup():
    return L(f"""
    s_mul_i32 s{sPL}, s{sRT}, 28
    s_mul_i32 s{sT1}, s{sW}, 7
    s_add_u32 s{sT1}, s{sT1}, s{sPL}
    s_add_u32 s{sH0}, s{sT1}, s{sPL}
    s_lshl_b32 s{sH0}, s{sH0}, 12
    s_add_u32 s{sH0}, s{sH0}, {HH}
    s_lshl_b32 s{sPL}, s{sT1}, 7
    s_add_u32 s{sPL}, s{sPL}, {FL_H}
    v_min_u32 v{vPH}, 6, v1
    v_lshlrev_b32 v{vPH}, 7, v{vPH}
    v_and_b32 v{vCR}, 15, v1
    v_lshl_add_u32 v{vCW}, v{vCR}, 2, v7
    v_lshrrev_b32 v{vCR}, 2, v{vCR}
    v_xor_b32 v{vCW}, v{vCW}, v{vCR}
    s_add_u32 s{sT1}, s{sM}, 32768
    v_lshl_add_u32 v{vCW}, v{vCW}, 4, s{sT1}
    v_lshrrev_b32 v{vCR}, 4, v1
    v_xor_b32 v{vCR}, v{vCR}, v1
    s_mul_i32 s{sT1}, s{sT0}, 49152
    s_lshl_b32 s{sT3}, s{sT2}, 11
    s_add_u32 s{sT1}, s{sT1}, s{sT3}
    s_add_u32 s{sT1}, s{sT1}, {XB + 32768}
    v_lshl_add_u32 v{vCR}, v{vCR}, 4, s{sT1}
    s_lshl_b32 s{sF}, s{sP}, 2
    s_add_u32 s{sF}, s{sF}, s{sW}
    s_lshl_b32 s{sU}, s{sF}, 11
    s_add_u32 s{sU}, s{sU}, {A2}
    s_lshl_b32 s{sF}, s{sF}, 7
    s_add_u32 s{sF}, s{sF}, {FL_A}
    s_lshl_b32 s{sT0}, s{sJM}, 2
    s_add_u32 s{sT0}, s{sT0}, s{sW}
    s_lshl_b32 s{sT2}, s{sT0}, 5
    s_lshr_b32 s{sT1}, s{sRT}, 3
    s_add_u32 s{sUL}, s{sT2}, s{sT1}
    s_lshl_b32 s{sUL}, s{sUL}, 7
    s_add_u32 s{sUL}, s{sUL}, {FL_A}
    v_and_b32 v{vPA}, 7, v1
    v_lshlrev_b32 v{vPA}, 9, v{vPA}
    v_lshrrev_b32 v{vA2}, 5, v1
    v_lshl_add_u32 v{vGXW}, v{vA2}, 4, s{sT2}
    global_load_dwordx4 {R(B2R,4)}, v{vGXW}, {S(P_B2,2)}
    v_and_b32 v{vFA}, 31, v1
    v_mul_u32_u24 v{vO}, 896, v{vFA}
    v_add_u32 v{vO}, v{vO}, v{vGXW}
    v_lshlrev_b32 v{vFA}, 2, v{vFA}
    v_lshl_add_u32 v{vA2}, v{vA2}, 15, v{vFA}
    s_mul_i32 s{sH1}, s{sRT}, {64*896}
    s_lshl_b32 s{sT0}, s{sT0}, 16
    s_lshl_b32 s{sT1}, s{sRT}, 8
    s_add_u32 s{sT0}, s{sT0}, s{sT1}
    s_add_u32 s{sT0}, s{sT0}, {A2}
    v_add_u32 v{vGXW}, s{sR}, v{vL16}
    """)


HB, NB = 128, 32
def slot(i): return HB + 4 * ((i + 16) % NB)


def hload(i):
    out = Asm()
    tl, k = divmod(i, 28)
    if i and k % 4 == 0: out(f"s_add_u32 s{sH0}, s{sH0}, {4096 if k else (112-24)*1024}")
    out(f"buffer_load_dwordx4 {R(slot(i),4)}, v{vL16}, {S(WS,4)}, s{sH0} offen offset:{1024*(k%4)} {SC}")
    return out.ins


def conv(a, P, wq):
    ACC, F = 32, 64

    def reads(r):
        b = F + 64 * (r & 1)
        out = []
        for i in range(8):
            o = 128 * (i & 1) + 16 * (3 - r)
            out.append(Ins(f"ds_read_b128 {R(b+32+4*i,4)}, v{vKf} offset:{512*(7-i) + 64*(3-r)}"))
            out.append(Ins(f"ds_read2_b32 {R(b+4*i,2)}, v{vU+(i>>1)} offset0:{o} offset1:{o+1}"))
            out.append(Ins(f"ds_read2_b32 {R(b+4*i+2,2)}, v{vU+(i>>1)} offset0:{o+2} offset1:{o+3}"))
        return out

    order = sorted(((t, d) for t in range(8) for d in range(8) if t + d < 8), key=lambda x: (max(x), x[0] + x[1], x[0]))
    slots = [[] for _ in range(144)]
    for r in range(3):
        for k, i in enumerate(reads(r + 1)): slots[36*r + P['CR'] + k].append(i)
    if P['HF'] >= 1000: slots[P['HF'] - 1000] += L("@wait hst") + flag_store(f"s{sFH}") + stamp(5)
    cap1 = fill(slots, wq, 0, P['WE'])
    cap2 = fill(slots, groups(g2_setup()), 0, P['HP'])
    slots[P['HP']] += L(poll_load(vFH, vPH, f"s{sPL}"))
    slots[P['HC']] += stamp(8) + poll_check("h", vFH, vPH, f"s{sPL}") + stamp(9)
    hq = [hload(i) for i in range(16)]
    for m in range(P['HC'], 144, P['HS']):
        if hq: slots[m] += hq.pop(0)
    print("conv caps", round(cap1, 2), round(cap2, 2), "instr", sum(cost(s) for s in slots) + 144)
    a.add(reads(0))
    for r in range(4):
        b = F + 64 * (r & 1)
        seen = set()
        for k, (t, d) in enumerate(order):
            c = t + d
            acc = R(ACC + 4*c, 4)
            first = r == 0 and c not in seen
            seen.add(c)
            a(f"v_mfma_f32_16x16x32_bf16 {acc}, {R(b+4*d,4)}, {R(b+32+4*t,4)}, {'0' if first else acc}")
            a.add(slots[36*r + k])
    a.add(stamp(15))
    for c in range(8):
        a(f"ds_write_b128 v{vCW}, {R(ACC+4*c,4)} offset:{49152*(c>>2) + 1024*(c&3)}")
        if c & 1 and hq: a.add(hq.pop(0))
    a(f"s_lshl_b32 s{sT1}, s{sW}, 11\nv_add_u32 v{vGXR}, s{sT1}, v{vL16}")
    a("s_barrier")
    for i in range(2):
        for w in range(4):
            a(f"ds_read_b128 {R(F+16*i+4*w,4)}, v{vCR} offset:{4096*w + 1024*i}")
    for g in hq: a.add(g)
    for i in range(2):
        b = F + 16*i
        for k in (0, 2, 8, 10): a(f"v_pk_add_f32 {R(b+k,2)}, {R(b+k,2)}, {R(b+k+4,2)}")
        for k in range(4): a(f"v_cvt_pk_bf16_f32 v{b+4+k}, v{b+k}, v{b+8+k}")
        a(f"buffer_store_dwordx4 {R(b+4,4)}, v{vL16}, {S(WS,4)}, s{sU} offen offset:{1024*i} {SC}", tag="ast")


def gemm2(a, P, wq):
    ACC, PT = 32, 96
    B2 = slot(24)
    PRE = P['PRE']

    def aload():
        o = Asm()
        for i in range(4):
            for tl in range(2):
                o(f"buffer_load_dword v{AV+4*tl+i}, v{vA2}, {S(WS,4)}, s{sT0} offen offset:{128*tl} {SC}")
            if i < 3: o(f"s_add_u32 s{sT0}, s{sT0}, 8192")
        return o.ins

    def reduce(tl, P):
        o = Asm()
        for td in range(2):
            for q in range(4):
                o(f"ds_write_b128 v{vGXW}, {R(ACC+32*tl+16*td+4*q,4)} offset:{8192*tl + 1024*(4*td+q)}")
        o("s_barrier")
        for w in range(4):
            for q in range(2):
                o(f"ds_read_b128 {R(P+8*w+4*q,4)}, v{vGXR} offset:{8192*tl + 16384*w + 1024*q}")
        if tl == 0:
            for k in range(4): o(f"v_lshlrev_b32 v{B2+2*k}, 16, v{B2R+k}\nv_and_b32 v{B2+2*k+1}, 0xffff0000, v{B2R+k}")
        n = len(o.ins)
        for k in range(0, 8, 2): o(f"v_pk_add_f32 {R(P+k,2)}, {R(P+k,2)}, {R(B2+k,2)}")
        for w in range(1, 4):
            for k in range(0, 8, 2): o(f"v_pk_add_f32 {R(P+k,2)}, {R(P+k,2)}, {R(P+8*w+k,2)}")
        return o.ins[:n], o.ins[n:]

    def mix(tl, P, U):
        o = Asm()
        for k in range(4): o(f"v_lshlrev_b32 v{U+2*k}, 16, v{AV+4*tl+k}\nv_and_b32 v{U+2*k+1}, 0xffff0000, v{AV+4*tl+k}")
        n = len(o.ins)
        for k in range(0, 8, 2): o(f"v_pk_add_f32 {R(U+k,2)}, {R(U+k,2)}, {R(P+k,2)} neg_lo:[0,1] neg_hi:[0,1]")
        for k in range(0, 8, 2): o(f"v_pk_fma_f32 {R(U+k,2)}, {R(U+k,2)}, {R(GV+2*tl,2)}, {R(P+k,2)} op_sel_hi:[1,0,1]")
        for k in range(4): o(f"v_cvt_pk_bf16_f32 v{U+8+k}, v{U+2*k}, v{U+2*k+1}")
        if tl: o(f"s_add_u32 s{sH1}, s{sH1}, {32*896}")
        o(f"buffer_store_dwordx4 {R(U+8,4)}, v{vO}, {S(OUT,4)}, s{sH1} offen")
        return o.ins[:n], o.ins[n:]

    slots = [[] for _ in range(112)]
    nxt = 16
    for m in range(112):
        i = m >> 1
        if nxt < 56 and nxt < i + PRE and (m & 1 == 0 or nxt < PRE): slots[m] += hload(nxt); nxt += 1
    slots[P['AF']] += L("@wait ast") + flag_store(f"s{sF}")
    slots[P['AP']] += L(poll_load(vFA, vPA, f"s{sUL}"))
    slots[P['AC']] += poll_check("a", vFA, vPA, f"s{sUL}") + stamp(10)
    fill(slots, groups(aload()), P['AC'], min(112, P['AC'] + 8))
    fill(slots, wq, 0, 24)
    r0 = reduce(0, PT)
    fill(slots, groups(r0[0] + r0[1]), 60, 84)
    for m in range(112):
        i, td = divmod(m, 2)
        tl, k = divmod(i, 28)
        acc = R(ACC + 32*tl + 16*td, 16)
        a(f"v_mfma_f32_32x32x16_bf16 {acc}, {R(8*k+4*td,4,'a')}, {R(slot(i),4)}, {'0' if k == 0 else acc}")
        a.add(slots[m])
    a.add(stamp(11))
    P1 = slot(0)
    r1 = reduce(1, P1)
    m0 = mix(0, PT, ACC)
    m1 = mix(1, P1, ACC + 16)
    a.add(r1[0]); a.add(m0[0]); a.add(m0[1]); a.add(m1[0]); a.add(r1[1]); a.add(m1[1])


DEF = dict(RD=(0, 0, 0, 1, 2, 2), DM=(1, 3, 5, 7, 9, 11, 13, 15), UP=84, UC=102, K0=0, K1=108,
           HF=230, EV=4, CR=10, WE=100, HP=88, HC=108, HS=4, PRE=24, AF=32, AP=68, AC=88)


def build(**kw):
    P = dict(DEF); P.update(kw)
    name = NAME + "_kernel"
    a = Asm()
    a.add(stamp(0))
    prologue(a)
    s = Asm(); setup(s)
    a.add(weave(s.ins, g1_dma(1) + g1_dma(2), 0, 10))
    a.add(stamp(14))
    b = bias(a)
    kgen_pre(a)
    a.add(b)
    rest = gemm1(a, P)
    a.add(stamp(2))
    gate_out(a)
    g1_epilogue(a)
    a.add(stamp(4))
    wq = []
    for k in range(10):
        d = w2_dma(k + 5) if 1 <= k <= 8 else []
        if k == 0: d = rest
        r = w2_reads(k)
        for i in range(max(4, len(d))):
            wq += r[2*i:2*i + 2] + d[i:i + 1]
    m = Asm()
    m.add(kgen_pass(1, u_stage()))
    kgen_tail(m)
    g = groups(m.ins)
    for n, x in enumerate(g):
        a.add(x)
        if n == P['HF']: a.add(L("@wait hst") + flag_store(f"s{sFH}") + stamp(5))
        if n % P['EV'] == P['EV'] - 1 and n < 205: a.add(wq.pop(0))
    print("mid groups", len(g), "w2 groups left", len(wq))
    conv(a, P, wq)
    gemm2(a, P, [x for k in range(10, 14) for x in w2_reads(k)])
    a.add(stamp(12))
    a(f"s_or_b32 s{sT0}, s2, s{sW}\ns_cbranch_scc1 Lnoep")
    a.add(flag_store("0"))
    a("Lnoep:")
    stamps_out(a, 16)
    probe_out(a)
    ins = finalize(a.ins)
    print("instructions", sum(1 for i in ins if i.kind != 'label'), "nops", sum(1 for i in ins if i.kind == 'nop'),
          "waits", sum(1 for i in ins if i.op == 's_waitcnt'))
    t = f".globl {name}\n.p2align 8\n.type {name},@function\n{name}:\n" + text_of(ins) + "Lend:\n  s_endpgm\n"
    d = f""".p2align 6
.amdhsa_kernel {name}
  .amdhsa_next_free_vgpr 512
  .amdhsa_next_free_sgpr 102
  .amdhsa_accum_offset 256
  .amdhsa_group_segment_fixed_size 0
  .amdhsa_kernarg_size 128
  .amdhsa_user_sgpr_count 2
  .amdhsa_user_sgpr_kernarg_segment_ptr 1
  .amdhsa_system_sgpr_workgroup_id_x 1
.end_amdhsa_kernel
"""
    hdr = f"; @launch grid=(224,1,1) block=(256,1,1) lds={LDS}\n"
    return hdr + '.amdgcn_target "amdgcn-amd-amdhsa--gfx950"\n.text\n' + t + '.section .rodata,"a"\n' + d


if __name__ == "__main__":
    args = [x for x in sys.argv[1:] if not x.startswith("-") and "=" not in x]
    kw = {x.split("=")[0]: eval(x.split("=")[1]) for x in sys.argv[1:] if "=" in x}
    PROF = "-p" in sys.argv
    if "-c" in sys.argv: PROF = True; CLK = "s_memtime"
    for x in sys.argv:
        if x.startswith("-q"): PROBE = tuple(int(y) for y in x[2:].split(","))
    out = args[0] if args else f"cdna_kernels/{NAME}.s"
    open(out, "w").write(build(**kw))
```

```python
import re
from dsl import Ins, hazard, regs_of

MEM = ('dsr', 'dsw', 'dma', 'vld', 'vst')


def icost(i):
    if i.kind in ('label', 'pseudo'): return 0
    if i.kind == 'valu': return 2 if i.trans or re.match(r'v_pk_\w+_f32', i.op) else 1
    if i.kind == 'mfma': return 2
    if i.kind in ('dsw', 'vst'): return max(1, sum(1 for x in i.uses if x[0] in 'va'))
    if i.op == 's_barrier' or i.op.startswith('s_cbranch'): return 2
    return 1


def ldscyc(i):
    if i.kind == 'dsr': return 4 if 'b128' in i.op or 'read2' in i.op else 2
    if 'addtid' in i.op: return 2
    return 13 if 'b128' in i.op else 6 if 'b64' in i.op or 'write2' in i.op else 4


class Node:
    def __init__(s, ins, e, d, res, lat, tag):
        s.ins = ins; s.e = e; s.d = d; s.res = res; s.lat = lat; s.tag = tag
        s.cost = sum(icost(i) for i in ins)
        k = [i.kind for i in ins]
        s.cls = 'm' if 'mfma' in k or not ins else 'v' if 'valu' in k else 'x' if any(x in MEM for x in k) else 's'
        s.bar = any(i.op == 's_barrier' for i in ins)
        s.vm = any(i.isvm() for i in ins)
        s.ds = any(i.isds() for i in ins)
        s.preds = {}; s.succs = []
        s.t = None; s.done = None; s.gap = None
        s.defs = set(); s.uses = set()
        for i in ins:
            s.uses |= i.uses - s.defs; s.defs |= i.defs
        if any('addtid' in i.op for i in ins) and not s.vm: s.uses.discard(('m0', 0))
        s.defs.discard(('exec', 0)); s.uses.discard(('exec', 0))
        s.first = next((i for i in ins if i.kind != 'label'), None)


class Prog:
    def __init__(p):
        p.nodes = []; p.car = {}; p.grp = {}; p.lastdef = {}; p.readers = {}

    def edge(p, a, b, comp):
        if a is b: return
        if a not in b.preds: a.succs.append(b); b.preds[a] = comp
        else: b.preds[a] |= comp

    def add(p, text, e=None, d=None, res='', lat=None, tag=None, atom=False, car=None):
        lines = [x.split(';')[0].strip() for x in text.split('\n')]
        lines = [x for x in lines if x]
        if not atom and len(lines) > 1:
            return [p.add(x, e, d, res, lat, tag) for x in lines][-1]
        n = Node([Ins(x, tag) for x in lines], e, d, res.split(), lat, tag)
        for r in n.uses:
            q = p.lastdef.get(r)
            if q: p.edge(q, n, q.cls == 'x' and r[0] in 'va')
        for r in n.defs:
            q = p.lastdef.get(r)
            if q: p.edge(q, n, q.cls == 'x' and r[0] in 'va' and not ((q.ds and n.ds) or (q.vm and n.vm)))
            for q in p.readers.get(r, ()): p.edge(q, n, False)
        for r in n.uses: p.readers.setdefault(r, []).append(n)
        for r in n.defs: p.lastdef[r] = n; p.readers[r] = []
        for x in n.res:
            r, c = x.split(':')
            g = p.grp.setdefault(r, [None, [], []])
            if g[0] != c or c == '!': g[:] = [c, [], g[1]]
            g[1].append(n)
            for q in g[2]: p.edge(q, n, (q.vm and not r.startswith('_')) or (q.ds and (n.vm or n.bar)))
        p.nodes.append(n)
        if car is not None: p.car[car] = n
        return n

    def virt(p, name, cap):
        n = Node([], None, None, [], None, None); n.cap = cap; n.np = 0
        p.car[name] = n
        return n


def schedule(p, order, INFL=2.0, DSLAT=112, VMLAT=900, LDSQ=48, VMQ=128, CAP32=6, CAP16=2, log=None):
    car = [p.car[k] for k in order]
    idx = {k: g for g, k in enumerate(order)}
    pos = lambda x: idx[x] if x in idx else idx[x[0]] + x[1]
    T = []; t = 0
    for c in car:
        if c.ins: c.cap = CAP32 if c.first.passes == 8 else CAP16; c.span = 4 * c.first.passes
        else: c.span = 4 * c.cap
        T.append(t); c.dl = t; t += c.span
    T.append(t)
    cs = set(car)
    fill = [n for n in p.nodes if n not in cs]
    for n in reversed(p.nodes):
        if n in cs: continue
        n.eg = pos(n.e) if n.e is not None else 0
        n.dl = T[min(len(car), pos(n.d) + 1)] if n.d is not None else t + 100000
        for s in n.succs:
            l = (n.lat or (VMLAT if n.vm else DSLAT + 32)) if s.preds[n] else 0
            n.dl = min(n.dl, s.dl - l - n.cost * 4 * INFL)
    for k, n in enumerate(p.nodes): n.k = k; n.np = len(n.preds)
    ready = [n for n in fill if n.np == 0]
    out = []; vq = []; lq = []
    st = dict(now=0, lds=0, vm=0, lastv=False, stall=0, waits=0)

    def nops(i):
        need = 0; dist = 0
        for q in reversed(out):
            if q.kind == 'label': continue
            need = max(need, hazard(q, i) - dist)
            dist += q.states
            if dist > 14: break
        return need

    def needs(ns):
        nv = nl = None
        for n in ns:
            for q, c in n.preds.items():
                if not c or q.t is None: continue
                if q in vq: nv = max(nv or 0, len(vq) - vq[::-1].index(q))
                if q in lq: nl = max(nl or 0, len(lq) - lq[::-1].index(q))
        return nv, nl

    def rtime(n): return max([q.done for q, c in n.preds.items() if c and q.t is not None] + [0])

    def wait(nv, nl):
        parts = []
        if nv:
            r = min(len(vq) - nv, 63); parts.append(f'vmcnt({r})')
            st['now'] = max(st['now'], vq[len(vq) - r - 1].done); del vq[:len(vq) - r]
        if nl:
            r = min(len(lq) - nl, 15); parts.append(f'lgkmcnt({r})')
            st['now'] = max(st['now'], lq[len(lq) - r - 1].done); del lq[:len(lq) - r]
        if parts: out.append(Ins('s_waitcnt ' + ' '.join(parts))); st['waits'] += 1
        return bool(parts)

    def emit(n, g, free=False):
        c = n.cost - (1 if free else 0)
        if n.cls == 'x' and st['lastv']: c += 2
        n.t = st['now']; n.gap = g; n.done = n.t
        for i in n.ins:
            if i.kind != 'label':
                k = nops(i)
                if k > 0: out.append(Ins(f's_nop {k-1}')); c += k; st['stall'] += k
            out.append(i)
            if i.isds():
                st['lds'] = max(st['lds'], st['now']) + 4 * ldscyc(i)
                n.done = st['lds'] + DSLAT - 16; lq.append(n)
            if i.isvm():
                w = 64 if 'x4' in i.op else 32 if 'x2' in i.op else 16
                st['vm'] = max(st['vm'], st['now']) + w
                n.done = max(st['vm'] + (n.lat or VMLAT), vq[-1].done if vq else 0); vq.append(n)
            if i.kind == 'valu': st['lastv'] = True
            elif i.kind in MEM or i.kind == 'mfma': st['lastv'] = False
        st['now'] += 4 * c
        if n in ready: ready.remove(n)
        for s in n.succs:
            s.np -= 1
            if s.np == 0 and s not in cs: ready.append(s)
        return c

    def ok(n, g, urgent):
        if n.eg > g or rtime(n) > st['now']: return False
        if n.ds and (sum(1 for q in lq if q.done > st['now']) >= 15 or (st['lds'] - st['now'] > LDSQ and not urgent)): return False
        if n.vm and st['vm'] - st['now'] > VMQ: return False
        return True

    for g, c in enumerate(car):
        assert c.np == 0
        real = bool(c.ins)
        t0 = st['now']
        if real: emit(c, g)
        else: c.t = t0
        end = t0 + c.span
        nxt = car[g + 1] if g + 1 < len(car) else None
        left = c.cap; first = real; rounds = 0
        while True:
            rounds += 1
            forced = left <= 0
            if forced:
                if nxt is None:
                    if not ready: break
                elif nxt.np == 0 and rtime(nxt) <= st['now'] + 4: break
                left = lim = 4 if real else 10
            cand = sorted((n for n in ready if ok(n, g, n.dl <= T[g + 1])), key=lambda n: (n.dl, n.k))
            plan = []; room = left + (1 if first else 0)
            for n in cand:
                if n.cost <= room or (n.cost > c.cap and room >= c.cap) or (forced and not plan): plan.append(n); room -= n.cost
                if room <= 0: break
            w = [n for n in plan]
            late = nxt is not None and nxt.np == 0 and any(needs([nxt]))
            if late and rtime(nxt) <= st['now'] + 8: w.append(nxt); late = False
            nv, nl = needs(w)
            if nl:
                while (nl or 0) < len(lq) and lq[nl or 0].done <= st['now']: nl = (nl or 0) + 1
            did = False
            if wait(nv, nl):
                if not first: left -= 1; st['now'] += 4
                first = False; did = True
            if late: left -= 1
            for phase in 'xv':
                while True:
                    cand = [n for n in ready if ok(n, g, n.dl <= T[g + 1]) and not any(needs([n])) and (n.cls == phase or n.cls == 's')]
                    cand.sort(key=lambda n: (not (first and n.cls == 's' and not n.bar), n.dl, n.k))
                    pick = None
                    for n in cand:
                        fr = first and n.first.kind == 'salu'
                        cc = n.cost - fr + (2 if n.cls == 'x' and st['lastv'] else 0)
                        res = 0
                        if phase == 'x': res = sum(q.cost for q in plan if q.cls == 'v' and q.dl < n.dl)
                        big = n.cost > c.cap - 1 and left >= c.cap - 1 and n in plan
                        if (cc + res <= left or cc == 0 or big or (forced and left == lim and n in plan)) and not nops(n.first): pick = n; break
                    if pick is None: break
                    left -= emit(pick, g, first and pick.first.kind == 'salu'); first = False; did = True
            first = False
            if not forced:
                if did and left >= 3 and rounds < 4: continue
                left = 0
                if real: st['now'] = max(st['now'], end - 4 if late else end)
            elif not did:
                cand = [n for n in ready if n.eg <= g]
                if nxt is not None and nxt.np == 0 and not any(rtime(n) < rtime(nxt) for n in cand): break
                assert cand, ("deadlock", g, order[g], [q.first.text for q in nxt.preds if q.t is None][:4])
                n = min(cand, key=lambda n: (max(rtime(n), st['now']), n.dl))
                if ok(n, g, True) and not any(needs([n])): left -= emit(n, g)
                else: st['now'] += 4; st['stall'] += 1
                left = 0
        if nxt is not None:
            if wait(*needs([nxt])): st['now'] += 4
        if log is not None: log.append((order[g], t0, st['now'] - t0, c.span))
    assert all(n.t is not None for n in fill), [n.first.text for n in fill if n.t is None][:5]
    return out, st
```

```python
import sys
from dsl import Asm, finalize, text_of, Ins
from sched import Prog, schedule

NAME = "gated_mix__ssm_conv_s4d__dense_activation_squared_relu__prompt"
FL_U, FL_H, FL_A, STAMPS = 0x10000, 0x30000, 0x50000, 0x70000
UT, A2, HH, WS_SIZE = 0x100000, 0x300000, 0x500000, 0xC00000
LOG2E = 0x3fb8aa3b
LDS, RB = 163840, 40960
TB, KXO, UO, GWO, BIO, GO, UP = 24576, 29696, 33792, 38144, 39168, 39424, 1088
W2SLOT = [8192, 12288, 16384, 20480, 0, 4096]

X, W1, WS, OUT, W2 = 4, 8, 12, 16, 20
P_LA, P_AI, P_CR, P_CI, P_DT, P_DS, P_B1, P_W2, P_B2, P_GW = 24, 26, 28, 30, 32, 34, 36, 38, 40, 42
sW, sHX, sJ7, sJM, sRT, sCT, sP, sC, sCW, sM = 3, 44, 45, 46, 47, 48, 49, 50, 51, 52
sT0, sT1, sT2, sT3, sDT, sDS, sH0, sH1, sTAG, sF = 53, 54, 55, 56, 57, 58, 59, 60, 61, 62
sCNT, sW2, sFH, sPL, sU = 63, 64, 65, 66, 67
sCX = {0: sC, 1: 0, 2: 24, 3: 26, 4: 28, 5: 30, 6: 36}
sUL, sMK, sPH, sG0, sG1, sAS, sFA, sPA, sAL, sO = 32, 33, 34, 35, 38, 39, 40, 41, 42, 43
sODD = 100
STAMP0 = 68
SPIN = 1 << 16
PROF = False
CLK = 's_memrealtime'

vXa, vWa, vA, vB, vGX, vU, vKf, vKR, vKP, vKT, vDS = 2, 6, 10, 14, 18, 20, 24, 25, 26, 27, 30
vUL, vUW, vPU, vUS, vPH, vF, vL16, vM16, vTAG, vD2, vT2 = 31, 32, 33, 34, 35, 36, 38, 39, 40, 42, 46
vCW, vCR, vPA, vA2, vO, vG, B2R, vXR, vSC = 48, 49, 51, 52, 53, 54, 56, 60, 63
ACC1, BIAS, FR, KD = 64, 128, 160, 128
aG, aGD, aU, aGW, aK, aC = 224, 232, 236, 40, 96, 224
UREG, UTMP = [2, 6, 144], 148


def R(b, n=1, f='v'): return f"{f}{b}" if n == 1 else f"{f}[{b}:{b+n-1}]"
def S(b, n): return f"s[{b}:{b+n-1}]"
def st(i): return f"{CLK} {S(STAMP0+2*i,2)}\n" if PROF else ""


def stamp(p, i, g):
    if PROF: p.add(st(i), e=g, d=(g[0], g[1] - 40) if isinstance(g[0], tuple) else (g, -40))


def flag(p, soff, res, extra="", **kw):
    p.add(f"s_mov_b64 exec, 1\nbuffer_store_dword v{vTAG}, off, {S(WS,4)}, {soff} sc1\ns_mov_b64 exec, -1\n{extra}", res=res, atom=True, **kw)


def poll(p, name, va, soff, e0, e1, res, pre="", post=""):
    ld = f"buffer_load_dword v{vF}, v{va}, {S(WS,4)}, {soff} offen sc1"
    p.add(ld, e=e0, d=e0, lat=64)
    p.add(f"""
    {pre}
    v_cmp_ne_u32 vcc, s{sTAG}, v{vF}
    s_cbranch_vccnz Lspin_{name}
    Lok_{name}:
    {post}
    """, e=e1, d=e1, res=res, atom=True)
    return f"""Lspin_{name}:
  s_mov_b32 s{sCNT}, 0
Lloop_{name}:
  {ld}
  s_add_u32 s{sCNT}, s{sCNT}, 1
  s_cmp_lt_u32 s{sCNT}, {SPIN}
  s_waitcnt vmcnt(0)
  v_cmp_ne_u32 vcc, s{sTAG}, v{vF}
  s_cbranch_vccz Lok_{name}
  s_cbranch_scc1 Lloop_{name}
  s_branch Lok_{name}
"""


MAPS = [f'''s_lshr_b32 s{sRT}, s{sHX}, 1
    s_lshl_b32 s{sRT}, s{sRT}, 2
    s_add_u32 s{sRT}, s{sRT}, s{sJ7}
    s_and_b32 s{sHX}, s{sHX}, 1''', f'''s_lshr_b32 s{sRT}, s{sJ7}, 1
    s_lshl_b32 s{sHX}, s{sHX}, 1
    s_add_u32 s{sRT}, s{sRT}, s{sHX}
    s_and_b32 s{sHX}, s{sJ7}, 1''']
T0 = 64
_T = f'''
    s_min_u32 s{sCNT}, s{sPL}, 15
    s_lshl_b32 s{sCNT}, s{sCNT}, 3
    s_load_dwordx2 {S(sW2,2)}, s[0:1], s{sCNT}
    s_max_u32 s{sPL}, s{sPL}, 16
    s_sub_u32 s{sPL}, s{sPL}, 16
    s_min_u32 s{sPL}, s{sPL}, 11
    s_lshl_b32 s{sPL}, s{sPL}, 20'''
TOUCH = ["", f"s_mov_b32 s{sPL}, s{sT0}" + _T, f"s_lshl_b32 s{sPL}, s{sT0}, 2\ns_add_u32 s{sPL}, s{sPL}, s{sW}\ns_and_b32 s{sPL}, s{sPL}, 31" + _T]


def prologue(a, P):
    t = T0
    a(f"""
    s_load_dwordx8 {S(P_LA,8)}, s[0:1], 8
    s_load_dwordx2 {S(X,2)}, s[0:1], 0
    s_load_dwordx2 {S(W1,2)}, s[0:1], 64
    s_load_dwordx8 {S(P_B1,8)}, s[0:1], 72
    s_load_dwordx2 {S(WS,2)}, s[0:1], 120
    s_load_dwordx4 {S(P_DT,4)}, s[0:1], 40
    s_load_dwordx2 {S(OUT,2)}, s[0:1], 104
    s_cmp_ge_u32 s2, 224
    s_cbranch_scc1 Lend
    v_lshrrev_b32 v2, 6, v0
    v_and_b32 v1, 63, v0
    s_and_b32 s{sHX}, s2, 7
    s_lshr_b32 s{sT0}, s2, 3
    v_readfirstlane_b32 s{sW}, v2
    {TOUCH[P['TS']]}
    s_mul_i32 s{sJ7}, s{sT0}, 37
    s_lshr_b32 s{sJ7}, s{sJ7}, 8
    s_mul_i32 s{sJM}, s{sJ7}, 7
    s_sub_u32 s{sJM}, s{sT0}, s{sJM}
    s_lshl_b32 s{sP}, s{sJM}, 3
    s_add_u32 s{sP}, s{sP}, s{sHX}
    s_lshl_b32 s{sP}, s{sP}, 2
    s_add_u32 s{sP}, s{sP}, s{sJ7}
    {MAPS[P['MAP']]}
    s_mul_i32 s{sCT}, s{sHX}, 7
    s_add_u32 s{sCT}, s{sCT}, s{sJM}
    s_lshl_b32 s{sC}, s{sJ7}, 1
    s_add_u32 s{sC}, s{sC}, s{sJM}
    s_sub_u32 s{sT0}, s{sC}, 7
    s_min_u32 s{sC}, s{sC}, s{sT0}
    s_lshl_b32 s{sU}, s{sC}, 1
    s_add_u32 s{sU}, s{sU}, s{sHX}
    s_lshl_b32 s{sC}, s{sC}, 7
    s_mul_i32 s{sCW}, s{sC}, 1792
    s_lshl_b32 s{sT0}, s{sRT}, 2
    s_add_u32 s{sF}, s{sT0}, s{sW}
    s_mul_i32 s{sT0}, s{sF}, {32*896}
    s_mul_i32 s{sT1}, s{sW}, {16*3584}
    s_lshl_b32 s{sT2}, s{sCT}, 8
    s_add_u32 s{sT1}, s{sT1}, s{sT2}
    s_mul_i32 s{sM}, s{sW}, {RB}
    s_lshl_b32 s{sT3}, s{sP}, 2
    s_add_u32 s{sH0}, s{sT3}, s{sW}
    s_lshl_b32 s{sH0}, s{sH0}, 8
    v_lshrrev_b32 v{t}, 3, v1
    v_lshrrev_b32 v{t+1}, 4, v1
    v_mul_u32_u24 v{vD2}, 896, v{t}
    v_and_b32 v{t+2}, 7, v1
    v_xor_b32 v{t+2}, v{t+2}, v{t+1}
    v_lshl_add_u32 v{t}, v{t+2}, 4, v{vD2}
    v_add_u32 v{vXa}, s{sT0}, v{t}
    v_xor_b32 v{t}, 64, v{vXa}
    v_add_u32 v{vXa+1}, 6144, v{t}
    v_add_u32 v{vXa+2}, 12288, v{vXa}
    v_add_u32 v{vXa+3}, {6144+12288}, v{t}
    v_mul_u32_u24 v{t}, 3584, v{t+1}
    v_lshlrev_b32 v{t+1}, 2, v{t+1}
    v_xor_b32 v{t+1}, v{t+1}, v1
    v_and_b32 v{t+1}, 15, v{t+1}
    v_lshl_add_u32 v{t}, v{t+1}, 4, v{t}
    v_add_u32 v{vWa}, s{sT1}, v{t}
    v_add_u32 v{vWa+1}, 13312, v{vWa}
    v_add_u32 v{vWa+2}, {2*13312}, v{vWa}
    v_add_u32 v{vWa+3}, {3*13312}, v{vWa}
    v_lshl_add_u32 v{t+3}, v1, 2, s{sH0}
    v_lshl_add_u32 v{t+4}, v1, 2, s{sT2}
    v_lshlrev_b32 v{vL16}, 4, v1
    v_add_u32 v{t+5}, s{sC}, v{vL16}
    v_subrev_u32 v{t+6}, 896, v{t+5}
    v_min_u32 v{t+5}, v{t+5}, v{t+6}
    s_lshl_b32 s{sT0}, s{sJM}, 2
    s_add_u32 s{sT0}, s{sT0}, s{sW}
    s_lshl_b32 s{sT0}, s{sT0}, 5
    v_lshrrev_b32 v{t+7}, 5, v1
    v_lshl_add_u32 v{vO}, v{t+7}, 4, s{sT0}
    s_mov_b32 s{X+2}, {2048*896}
    s_mov_b32 s{X+3}, 0x20000
    s_mov_b32 s{W1+2}, {448*3584}
    s_mov_b32 s{W1+3}, 0x20000
    @lgkm0
    """)
    if PROF: a("! " + st(13))
    if P['TS']: a(f"!  s_load_dword s{sCNT}, {S(sW2,2)}, s{sPL}")
    a(f"""
    !  s_load_dword s{sDT}, {S(P_DT,2)}, s{sT3}
    !  s_load_dword s{sDS}, {S(P_DS,2)}, s{sT3}
    !  s_load_dword s{sTAG}, {S(WS,2)}, 0
    """)


KI = 252


def g1_dma(p, c, P, **kw):
    slot = c % 3
    res = f"c{c}:w" + (f" f{c-3}:w" if c >= 3 else "") + (" f0:w" if c == 2 and P['C2'] else "")
    p.add(f"s_add_u32 m0, s{sM}, {slot*8192}", **kw)
    for i in range(4):
        p.add(f"buffer_load_dwordx4 v{vXa+i}, {S(X,4)}, s{sCX[c]} offen offset:{1024*i} lds", res=res + (" x0:w" if c == 0 else ""), **kw)
    p.add(f"s_add_u32 m0, s{sM}, {slot*8192 + 4096}", **kw)
    for i in range(4):
        p.add(f"buffer_load_dwordx4 v{vWa+i}, {S(W1,4)}, s{sCX[c]+1} offen offset:{1024*i} lds", res=res, **kw)


def first_loads(p, P):
    t = T0
    for c in range(1, 7):
        q = lambda: (p.add(f"s_add_u32 s{sCX[c]}, s{sCX[c-1]}, 128\ns_cmp_eq_u32 s{sCX[c]}, 896\ns_cselect_b32 s{sCX[c]}, 0, s{sCX[c]}", atom=True),
                     p.add(f"s_mul_i32 s{sCX[c]+1}, s{sCX[c]}, 1792"))
        if c == 1: q()
    V = ['V0']; m0 = [None]; need = "_pa:w"

    def ld(text, m, res, lat):
        d = dict(e=V[-1], d=(V[-1], -1))
        if m is not None and m != m0[0]: p.add(f"s_add_u32 m0, s{sM}, {m}", res="_m0:w" if m0[0] is None else "", **d); m0[0] = m
        p.add(text, lat=lat, res=res + " _o:!", **d)

    late = []
    for k in P['ORD'].split():
        if k[0] == '|': p.virt(V[-1], int(k[1:])); V.append(f"V{len(V)}")
        elif k[0] == 'p': ld(f"global_load_dword v{KI+int(k[1])}, v{t+3}, {S(P_LA+2*int(k[1]),2)}", None, "", P['LP'])
        elif k == 'b': ld(f"global_load_lds_dword v{t+4}, {S(P_B1,2)}", BIO, "bias:w", P['LP'])
        elif k == 'g': ld(f"global_load_lds_dwordx4 v{t+5}, {S(P_GW,2)}", GWO, "gw:w", P['LP'])
        elif k == '2': ld(f"global_load_dwordx4 {R(B2R,4)}, v{vO}, {S(P_B2,2)}", None, "", P['LP'])
        elif k == 'c':
            for c in range(2, 7):
                p.add(f"s_add_u32 s{sCX[c]}, s{sCX[c-1]}, 128\ns_cmp_eq_u32 s{sCX[c]}, 896\ns_cselect_b32 s{sCX[c]}, 0, s{sCX[c]}", atom=True)
                p.add(f"s_mul_i32 s{sCX[c]+1}, s{sCX[c]}, 1792")
        elif k[0] == 't':
            base, sh, n = {'W': (W1, 15, 49), 'X': (X, 15, 56), '2': (P_W2, 15, 49), 'O': (OUT, 15, 56), 'S': (WS, 18, 48)}[k[1]]
            if len(k) > 2: n = (n - 1 >> int(k[2])) + 1; sh += int(k[2])
            r = 236 + len(late); late.append(r)
            p.add(f"v_min_u32 v{r}, {n-1}, v1\nv_lshlrev_b32 v{r}, {sh}, v{r}", d=('V0', -1))
            ld(f"global_load_dword v{r}, v{r}, {S(base,2)}", None, "", P['LP'])
        else:
            c = int(k[1])
            for i in ([int(k[2])] if len(k) > 2 else range(4)):
                res = f"c{c}:w"
                lat = P['LC'] if c == 0 else P['LD']
                if k[0] == 'x': ld(f"buffer_load_dwordx4 v{vXa+i}, {S(X,4)}, s{sCX[c]} offen offset:{1024*i} lds", c*8192, res + (" x0:w" if c == 0 else ""), lat)
                else: ld(f"buffer_load_dwordx4 v{vWa+i}, {S(W1,4)}, s{sCX[c]+1} offen offset:{1024*i} lds", c*8192 + 4096, res, lat)
    if PROF: p.add(st(14), res="_o:!", d=V[-1])
    p.virt(V[-1], 0)
    return V


vUT, vFU, vGW = 80, 82, 83


def setup(p):
    t = T0 + 8
    hi, q4, b0, b4, b1, b3, l31, l15, g4, x, y = range(t, t + 11)
    hi = T0 + 7
    p.add(f"""
    s_lshr_b32 s{sT0}, s{sW}, 1
    s_and_b32 s{sT1}, s{sW}, 1
    v_bfe_u32 v{q4}, v1, 2, 2
    v_and_b32 v{b0}, 1, v1
    v_and_b32 v{b4}, 16, v1
    v_and_b32 v{b1}, 2, v1
    v_and_b32 v{b3}, 8, v1
    v_and_b32 v{x}, 3, v1
    v_lshl_add_u32 v{x}, v{x}, 3, v{q4}
    v_lshlrev_b32 v{x}, 7, v{x}
    v_xor_b32 v{y}, s{sHX}, v{b0}
    v_lshl_add_u32 v{x}, v{y}, 6, v{x}
    v_lshrrev_b32 v{y}, 3, v{b3}
    v_xor_b32 v{y}, v{y}, v{hi}
    v_lshl_add_u32 v{x}, v{y}, 4, v{x}
    v_lshrrev_b32 v{y}, 1, v{b4}
    v_add3_u32 v{vUT+8}, v{x}, v{y}, s{sM}
    v_xor_b32 v{vUT+9}, 32, v{vUT+8}
    v_lshl_add_u32 v{x}, v{hi}, 3, v{q4}
    v_lshlrev_b32 v{x}, 8, v{x}
    s_lshl_b32 s{sT2}, s{sT0}, 1
    v_xor_b32 v{y}, s{sT2}, v{q4}
    v_lshl_add_u32 v{x}, v{y}, 6, v{x}
    v_lshl_add_u32 v{x}, v{b0}, 5, v{x}
    v_add_u32 v{x}, v{b4}, v{x}
    v_lshl_add_u32 v{x}, v{b1}, 2, v{x}
    v_add_u32 v{vA}, 4096, v{x}
    v_xor_b32 v{vA+1}, 64, v{vA}
    v_add_u32 v{vA+2}, {2*RB}, v{vA}
    v_add_u32 v{vA+3}, {2*RB}, v{vA+1}
    v_and_b32 v{l31}, 31, v1
    v_and_b32 v{l15}, 15, v1
    v_lshrrev_b32 v{g4}, 4, v1
    v_bfe_u32 v{y}, v1, 1, 3
    v_xor_b32 v{x}, v{y}, v{hi}
    v_lshlrev_b32 v{x}, 4, v{x}
    v_lshl_add_u32 v{x}, v{l31}, 7, v{x}
    s_mul_i32 s{sT2}, s{sT1}, {2*RB}
    v_add_u32 v{vB}, s{sT2}, v{x}
    v_xor_b32 v{vB+1}, 32, v{vB}
    v_xor_b32 v{vB+2}, 64, v{vB}
    v_xor_b32 v{vB+3}, 96, v{vB}
    v_xor_b32 v{x}, v{y}, v{g4}
    v_lshlrev_b32 v{x}, 4, v{x}
    v_lshl_add_u32 v{x}, v{l15}, 7, v{x}
    s_lshl_b32 s{sT2}, s{sHX}, 1
    s_add_u32 s{sT2}, s{sT2}, s{sT0}
    s_mul_i32 s{sT2}, s{sT2}, {RB}
    s_lshl_b32 s{sT3}, s{sT1}, 11
    s_add_u32 s{sT2}, s{sT2}, s{sT3}
    v_add_u32 v{vGX}, s{sT2}, v{x}
    v_xor_b32 v{vGX+1}, 64, v{vGX}
    v_lshlrev_b32 v{y}, 2, v{y}
    v_lshl_add_u32 v{y}, v{g4}, 4, v{y}
    v_mul_u32_u24 v{x}, {UP}, v{b0}
    v_sub_u32 v{y}, v{y}, v{x}
    s_mul_i32 s{sT2}, s{sT0}, {2*UP}
    s_lshl_b32 s{sT3}, s{sT1}, 8
    s_sub_u32 s{sT2}, s{sT2}, s{sT3}
    s_add_u32 s{sT2}, s{sT2}, {UO + UP + 260}
    v_add_u32 v{vU}, s{sT2}, v{y}
    v_add_u32 v{vU+1}, {RB}, v{vU}
    v_add_u32 v{vU+2}, {2*RB}, v{vU}
    v_add_u32 v{vU+3}, {3*RB}, v{vU}
    s_sub_u32 s{sT2}, s{sM}, s{sT3}
    s_add_u32 s{sT2}, s{sT2}, {TB + 4512 - 3584 - 192}
    v_lshlrev_b32 v{x}, 5, v{l15}
    v_lshlrev_b32 v{y}, 4, v{g4}
    v_sub_u32 v{x}, v{y}, v{x}
    v_add_u32 v{vKf}, s{sT2}, v{x}
    v_add_u32 v{vGW+8}, s{sM}, v{y}
    s_lshl_b32 s{sT2}, s{sT0}, 7
    s_add_u32 s{sT2}, s{sT2}, s{sM}
    v_lshl_add_u32 v{vFU+8}, v{hi}, 5, s{sT2}
    v_lshlrev_b32 v{x}, 4, v{l15}
    v_lshl_add_u32 v{vUS}, v{g4}, 14, v{x}
    v_mul_u32_u24 v{x}, 272, v{l31}
    v_lshl_add_u32 v{x}, v{hi}, 4, v{x}
    v_add_u32 v{vKR}, s{sM}, v{x}
    v_lshl_add_u32 v{x}, v{hi}, 4, v{q4}
    v_lshlrev_b32 v{x}, 7, v{x}
    v_lshl_add_u32 v{x}, v{b0}, 4, v{x}
    v_lshl_add_u32 v{x}, v{b4}, 1, v{x}
    v_lshl_add_u32 v{x}, v{b1}, 2, v{x}
    v_lshl_add_u32 v{x}, v{b3}, 3, v{x}
    s_xor_b32 s{sT2}, s{sW}, 3
    s_lshl_b32 s{sT3}, s{sT2}, 5
    v_xor_b32 v{x}, s{sT3}, v{x}
    v_add_u32 v{vT2}, s{sM}, v{x}
    v_xor_b32 v{vT2+1}, 64, v{vT2}
    s_mul_i32 s{sT3}, s{sT2}, {RB}
    v_add_u32 v{vXR}, s{sT3}, v{vL16}
    s_xor_b32 s{sT3}, s{sW}, 2
    s_mul_i32 s{sT3}, s{sT3}, {RB}
    v_add_u32 v{vXR+1}, s{sT3}, v{vL16}
    s_xor_b32 s{sT3}, s{sW}, 1
    s_mul_i32 s{sT3}, s{sT3}, {RB}
    v_add_u32 v{vXR+2}, s{sT3}, v{vL16}
    v_add_u32 v{vM16}, s{sM}, v{vL16}
    v_lshrrev_b32 v{x}, 2, v1
    v_and_b32 v{x}, 4, v{x}
    v_xor_b32 v{x}, v{x}, v1
    v_and_b32 v{x}, 7, v{x}
    v_lshl_add_u32 v{vD2}, v{x}, 4, v{vD2}
    v_add_u32 v{vD2+1}, 6144, v{vD2}
    v_add_u32 v{vD2+2}, 12288, v{vD2}
    v_add_u32 v{vD2+3}, 18432, v{vD2}
    s_mul_i32 s{sW2}, s{sW}, {448*896}
    s_lshl_b32 s{sT2}, s{sJM}, 7
    s_add_u32 s{sW2}, s{sW2}, s{sT2}
    v_lshrrev_b32 v{x}, 1, v1
    v_lshlrev_b32 v{vUL}, 6, v{x}
    v_lshl_add_u32 v{vUL}, v{b0}, 4, v{vUL}
    v_mul_u32_u24 v{y}, {2*UP}, v{b0}
    v_lshl_add_u32 v{x}, v{x}, 4, v{y}
    s_add_u32 s{sT2}, s{sM}, {UO}
    v_add_u32 v{vUW}, s{sT2}, v{x}
    s_lshl_b32 s{sT2}, s{sW}, 4
    v_min_u32 v{x}, 16, v1
    v_add_u32 v{x}, s{sT2}, v{x}
    v_max_u32 v{x}, 1, v{x}
    v_lshlrev_b32 v{vPU}, 7, v{x}
    v_lshlrev_b32 v{x}, 4, v{l31}
    s_add_u32 s{sT2}, s{sM}, {TB + 1520}
    v_sub_u32 v{x}, s{sT2}, v{x}
    v_lshlrev_b32 v{y}, 3, v{hi}
    v_sub_u32 v{vKT}, v{x}, v{y}
    v_lshlrev_b32 v{y}, 9, v{hi}
    v_sub_u32 v{vKT+1}, v{x}, v{y}
    v_sub_u32 v{vKT+2}, v{vKT+1}, v{y}
    v_lshrrev_b32 v{x}, 4, v{l31}
    v_mul_u32_u24 v{x}, {RB}, v{x}
    v_lshl_add_u32 v{vG}, v{l15}, 2, v{x}
    v_add_u32 v{vG+1}, {2*RB}, v{vG}
    v_min_u32 v{x}, 6, v1
    v_lshlrev_b32 v{vPH}, 7, v{x}
    v_lshl_add_u32 v{x}, v{l15}, 2, v{g4}
    v_xor_b32 v{x}, v{x}, v{q4}
    s_add_u32 s{sT2}, s{sM}, {TB}
    v_lshl_add_u32 v{vCW}, v{x}, 4, s{sT2}
    v_xor_b32 v{x}, v{g4}, v1
    s_lshl_b32 s{sT2}, s{sW}, 11
    s_add_u32 s{sT2}, s{sT2}, {TB}
    v_lshl_add_u32 v{vCR}, v{x}, 4, s{sT2}
    v_add_u32 v{vCR+1}, {2*RB}, v{vCR}
    v_and_b32 v{x}, 7, v1
    v_lshlrev_b32 v{vPA}, 9, v{x}
    v_mul_u32_u24 v{x}, 896, v{l31}
    v_add_u32 v{vO}, v{vO}, v{x}
    v_lshlrev_b32 v{x}, 2, v{l31}
    v_lshl_add_u32 v{vA2}, v{hi}, 15, v{x}
    s_mov_b32 s{WS+2}, {WS_SIZE}
    s_mov_b32 s{WS+3}, 0x20000
    s_mov_b32 s{OUT+2}, {2048*896}
    s_mov_b32 s{OUT+3}, 0x20000
    s_mov_b32 s{W2}, s{P_W2}
    s_mov_b32 s{W2+1}, s{P_W2+1}
    s_mov_b32 s{W2+2}, {1792*896}
    s_mov_b32 s{W2+3}, 0x20000
    s_mov_b32 s{sODD}, 0xaaaaaaaa
    s_mov_b32 s{sODD+1}, 0xaaaaaaaa
    s_lshl_b32 s{sH0}, s{sRT}, 1
    s_add_u32 s{sRT}, s{sH0}, s{sHX}
    s_add_u32 s{sH0}, s{sH0}, s{sT1}
    s_mul_i32 s{sH0}, s{sH0}, 28
    s_lshl_b32 s{sT2}, s{sCT}, 1
    s_add_u32 s{sT2}, s{sT2}, s{sT0}
    s_add_u32 s{sFH}, s{sH0}, s{sT2}
    s_add_u32 s{sH0}, s{sH0}, s{sFH}
    s_lshl_b32 s{sFH}, s{sFH}, 7
    s_add_u32 s{sFH}, s{sFH}, {FL_H}
    s_lshl_b32 s{sH0}, s{sH0}, 12
    s_add_u32 s{sH0}, s{sH0}, {HH}
    s_add_u32 s{sH1}, s{sH0}, {112*1024}
    s_lshl_b32 s{sT2}, s{sU}, 6
    s_add_u32 s{sT2}, s{sT2}, s{sF}
    s_lshl_b32 s{sU}, s{sU}, 9
    s_add_u32 s{sU}, s{sU}, s{sF}
    s_lshl_b32 s{sU}, s{sU}, 8
    s_add_u32 s{sU}, s{sU}, {UT}
    s_add_u32 s{sCT}, s{sU}, 65536
    s_lshl_b32 s{sF}, s{sT2}, 7
    s_add_u32 s{sF}, s{sF}, {FL_U}
    s_lshr_b32 s{sPL}, s{sP}, 4
    s_lshl_b32 s{sPL}, s{sPL}, 13
    s_add_u32 s{sPL}, s{sPL}, {FL_U - 128}
    s_lshl_b32 s{sFA}, s{sP}, 2
    s_add_u32 s{sFA}, s{sFA}, s{sW}
    s_lshl_b32 s{sAS}, s{sFA}, 11
    s_add_u32 s{sAS}, s{sAS}, {A2}
    s_lshl_b32 s{sFA}, s{sFA}, 7
    s_add_u32 s{sFA}, s{sFA}, {FL_A}
    s_lshl_b32 s{sT0}, s{sJM}, 2
    s_add_u32 s{sT0}, s{sT0}, s{sW}
    s_lshl_b32 s{sT2}, s{sT0}, 5
    s_lshr_b32 s{sT1}, s{sRT}, 3
    s_add_u32 s{sPA}, s{sT2}, s{sT1}
    s_lshl_b32 s{sPA}, s{sPA}, 7
    s_add_u32 s{sPA}, s{sPA}, {FL_A}
    s_mul_i32 s{sO}, s{sRT}, {64*896}
    s_lshl_b32 s{sT0}, s{sT0}, 16
    s_lshl_b32 s{sT1}, s{sRT}, 8
    s_add_u32 s{sAL}, s{sT0}, s{sT1}
    s_add_u32 s{sAL}, s{sAL}, {A2}
    """, d='V0')
    p.add("s_waitcnt lgkmcnt(0)", res="_sm:w", d='V1', e='V1')
    p.add(f"""
    s_lshr_b32 s{sUL}, s{sP}, 1
    s_lshl_b32 s{sUL}, s{sUL}, 2
    s_add_u32 s{sUL}, s{sUL}, s{sW}
    s_lshl_b32 s{sUL}, s{sUL}, 7
    s_and_b32 s{sT2}, s{sP}, 1
    s_add_u32 s{sUL}, s{sUL}, s{sT2}
    s_lshl_b32 s{sUL}, s{sUL}, 5
    s_add_u32 s{sUL}, s{sUL}, {UT - 128}
    s_mul_i32 s{sPH}, s{sRT}, 28
    s_mul_i32 s{sT1}, s{sW}, 7
    s_add_u32 s{sT1}, s{sT1}, s{sPH}
    s_add_u32 s{sG0}, s{sT1}, s{sPH}
    s_lshl_b32 s{sG0}, s{sG0}, 12
    s_add_u32 s{sG0}, s{sG0}, {HH}
    s_add_u32 s{sG1}, s{sG0}, {112*1024}
    s_lshl_b32 s{sPH}, s{sT1}, 7
    s_add_u32 s{sPH}, s{sPH}, {FL_H}
    s_lshr_b32 s{sT0}, s{sW}, 1
    s_lshl_b32 s{sT0}, s{sT0}, 4
    s_lshr_b32 s{sDT}, s{sDT}, s{sT0}
    s_lshl_b32 s{sDT}, s{sDT}, 16
    s_lshr_b32 s{sDS}, s{sDS}, s{sT0}
    s_lshl_b32 s{sDS}, s{sDS}, 16
    s_mul_i32 s{sTAG}, s{sTAG}, 0x9E3779B1
    s_add_u32 s{sTAG}, s{sTAG}, 0x7F4A7C15
    v_mov_b32 v{vTAG}, s{sTAG}
    v_mov_b32 v{vDS}, 0
    v_writelane_b32 v{vDS}, s{sDS}, 0
    """, res="_sm:r", d='V0')
    p.add(f"s_cmp_lg_u32 s{sW}, 0\ns_cselect_b32 s{sMK}, -1, 0", res="_sm:r", atom=True, d='V0')
    for k, o in enumerate((0, 16, 64, 80)): p.add(f"ds_read_b128 {R(FR+16+4*k,4)}, v{vFU+8} offset:{BIO + o}", res="bias:r _sm:r")
    for k in range(16): p.add(f"v_lshlrev_b32 v{BIAS+2*k}, 16, v{FR+16+k}\nv_and_b32 v{BIAS+2*k+1}, 0xffff0000, v{FR+16+k}")
    for k in range(14): p.add(f"ds_read_b128 {R(aGW+4*k,4,'a')}, v{vGW+8} offset:{GWO + 64*k}", res="gw:r _sm:r")


EH, CH, ONE, KEEP, ROT, NROT = 192, 214, 216, 217, 224, 12


def kgen_pre(p, P):
    DT, ER, ZI, TM, E, MX, CC = 96, 98, 100, 102, 108, 116, 118
    p.add(f"""
    v_mov_b32 v{DT}, {LOG2E}
    v_mul_f32 v{DT}, s{sDT}, v{DT}
    v_exp_f32 v{DT}, v{DT}
    v_mov_b32 v{ONE}, 0x3c00
    v_cvt_pk_bf16_f32 v{DT}, v{DT}, v{DT}
    v_lshlrev_b32 v{DT}, 16, v{DT}
    v_lshlrev_b32 v{ER}, 16, v{KI}
    v_and_b32 v{ER+1}, 0xffff0000, v{KI}
    v_mul_f32 v{ER}, {LOG2E}, v{ER}
    v_mul_f32 v{ER+1}, {LOG2E}, v{ER+1}
    v_exp_f32 v{ER}, v{ER}
    v_exp_f32 v{ER+1}, v{ER+1}
    v_lshlrev_b32 v{ZI}, 16, v{KI+1}
    v_and_b32 v{ZI+1}, 0xffff0000, v{KI+1}
    v_cvt_pk_bf16_f32 v{ER+1}, v{ER}, v{ER+1}
    v_mul_f32 v{ZI}, v{ZI}, v{DT}
    v_mul_f32 v{ZI+1}, v{ZI+1}, v{DT}
    v_lshlrev_b32 v{ER}, 16, v{ER+1}
    v_and_b32 v{ER+1}, 0xffff0000, v{ER+1}
    v_mul_f32 v{ZI}, 0.15915494, v{ZI}
    v_mul_f32 v{ZI+1}, 0.15915494, v{ZI+1}
    v_mul_f32 v{ER}, v{ER}, v{DT}
    v_mul_f32 v{ER+1}, v{ER+1}, v{DT}
    v_mul_f32 v{ER}, {LOG2E | 0x80000000}, v{ER}
    v_mul_f32 v{ER+1}, {LOG2E | 0x80000000}, v{ER+1}
    v_lshlrev_b32 v{CC}, 16, v{KI+2}
    v_lshlrev_b32 v{CC+1}, 16, v{KI+3}
    v_and_b32 v{CC+2}, 0xffff0000, v{KI+2}
    v_and_b32 v{CC+3}, 0xffff0000, v{KI+3}
    v_max3_f32 v{MX}, |v{CC}|, |v{CC+1}|, |v{CC+2}|
    v_max_f32 v{MX}, v{MX}, |v{CC+3}|
    v_max_u32_dpp v{MX}, v{MX}, v{MX} row_shr:1 row_mask:0xf bank_mask:0xf
    v_max_u32_dpp v{MX}, v{MX}, v{MX} row_shr:2 row_mask:0xf bank_mask:0xf
    v_max_u32_dpp v{MX}, v{MX}, v{MX} row_shr:4 row_mask:0xf bank_mask:0xf
    v_max_u32_dpp v{MX}, v{MX}, v{MX} row_shr:8 row_mask:0xf bank_mask:0xf
    v_max_u32_dpp v{MX}, v{MX}, v{MX} row_bcast:15 row_mask:0xa bank_mask:0xf
    v_max_u32_dpp v{MX}, v{MX}, v{MX} row_bcast:31 row_mask:0xc bank_mask:0xf
    v_readlane_b32 s{sT0}, v{MX}, 63
    s_lshr_b32 s{sT0}, s{sT0}, 23
    s_max_u32 s{sT0}, s{sT0}, 14
    s_sub_u32 s{sT1}, 267, s{sT0}
    s_lshl_b32 s{sT1}, s{sT1}, 23
    s_sub_u32 s{sT0}, s{sT0}, 12
    s_lshl_b32 s{sT0}, s{sT0}, 23
    v_mul_f32 v{vSC}, s{sT0}, v{DT}
    """)
    for k in range(4): p.add(f"v_mul_f32 v{CC+k}, s{sT1}, v{CC+k}")
    for n in range(2): p.add(f"v_cvt_pk_f16_f32 v{CH+n}, v{CC+2*n}, -v{CC+2*n+1}")
    for n in range(2):
        for h in range(2):
            e = E + 4*n + 2*h; tm = TM + (2*n + h) % 3 * 2
            if h: p.add(f"v_mul_f32 v{tm}, 0x42000000, v{ER+n}\nv_mul_f32 v{tm+1}, 0x42000000, v{ZI+n}\nv_exp_f32 v{tm}, v{tm}\nv_fract_f32 v{tm+1}, v{tm+1}")
            else: p.add(f"v_exp_f32 v{tm}, v{ER+n}\nv_fract_f32 v{tm+1}, v{ZI+n}")
            p.add(f"v_cos_f32 v{e}, v{tm+1}\nv_sin_f32 v{e+1}, v{tm+1}\nv_mul_f32 v{e}, v{e}, v{tm}\nv_mul_f32 v{e+1}, v{e+1}, v{tm}")
    for k in range(6):
        for n in range(2):
            for h in range(2):
                if k == 5 and not h: continue
                e = E + 4*n + 2*h; tm = TM + (2*n + h) % 3 * 2
                p.add(f"v_cvt_pk_f16_f32 v{EH + 11*n + 5*h + k}, v{e}, v{e+1}")
                if k < 4 + h:
                    p.add(f"v_pk_mul_f32 {R(tm,2)}, {R(e,2)}, {R(e,2)} op_sel:[0,0] op_sel_hi:[0,1]")
                    p.add(f"v_pk_fma_f32 {R(e,2)}, {R(e,2)}, {R(e,2)}, {R(tm,2)} op_sel:[1,1,0] op_sel_hi:[1,0,1] neg_lo:[1,0,0]")


def kgen_pass(p, n):
    E = lambda k: EH + 11*n + k
    rot = [0]

    def dst(keep):
        if keep is not None: return KEEP + keep
        rot[0] += 1
        return ROT + rot[0] % NROT

    def wr(row, r): p.add(f"ds_write_addtid_b32 v{r} offset:{TB + 272*row}", res="tab:w _m0:r")

    def ca(rows, x, y, keep=None):
        d = dst(keep)
        p.add(f"v_pk_mul_f16 v{d}, v{x}, v{y} op_sel:[0,0] op_sel_hi:[1,0]")
        p.add(f"v_pk_fma_f16 v{d}, v{x}, v{y}, v{d} op_sel:[1,1,0] op_sel_hi:[0,1,1] neg_hi:[1,0,0]")
        for r in rows: wr(r, d)
        return d

    def cb(row, x, y, keep=None):
        d = dst(keep)
        p.add(f"v_pk_mul_f16 v{d}, v{x}, v{y} op_sel:[0,0] op_sel_hi:[0,1]")
        p.add(f"v_pk_fma_f16 v{d}, v{x}, v{y}, v{d} op_sel:[1,1,0] op_sel_hi:[1,0,1] neg_lo:[1,0,0]")
        wr(row, d)
        return d

    c = CH + n
    wr(0, c)
    r1 = ca([1], c, E(0)); r2 = ca([2], c, E(1)); r3 = ca([3], r1, E(1))
    for k, x in enumerate((c, r1, r2, r3)): ca([4 + k], x, E(2))
    r8 = ca([8], c, E(8), 0); r9 = ca([9], r8, E(1)); ca([10, 12], r8, E(2)); ca([13], r9, E(2)); ca([14], r8, E(3))
    r16 = ca([16], c, E(9), 1); r20 = ca([20], r8, E(9), 2)
    for r, x in ((16, r16), (20, r20)): ca([r + 1], x, E(2)); ca([r + 2], x, E(3))
    for k, x in enumerate((c, r8, r16, r20)): ca([25 + 2*k], ca([24 + 2*k], x, E(10)), E(3))
    for s in range(8): p.add(f"ds_read_b128 {R(aK+64*n+4*s,4,'a')}, v{vKR} offset:{TB + 32*s}", res="tab:r")
    B = {1: E(3), 2: E(4), 4: E(5), 8: E(6), 16: E(7)}
    wr(0, ONE)
    for j in (1, 2, 4, 8, 16): wr(j, B[j])
    for j in range(1, 16):
        if j not in B:
            h = 1 << (j.bit_length() - 1)
            B[j] = cb(j, B[j - h], B[h], {3: 3, 5: 4, 6: 5, 7: 6}.get(j))
        cb(16 + j, B[j], B[16])
    for s in range(8): p.add(f"ds_read_b128 {R(aK+64*n+32+4*s,4,'a')}, v{vKR} offset:{TB + 32*s}", res="tab:r")
    for s in range(8):
        p.add(f"v_mfma_f32_32x32x16_f16 {R(KD,16)}, {R(aK+64*n+4*s,4,'a')}, {R(aK+64*n+32+4*s,4,'a')}, {'0' if s == 0 and n == 0 else R(KD,16)}", car=('k', n, s))


KUSED = [r for r in range(16) if r not in (7, 11)]


def kgen_x(p):
    for r in KUSED: p.add(f"v_mul_f32 v{KD+r}, v{vSC}, v{KD+r}")
    for q in range(4): p.add(f"ds_write_b128 v{vM16}, {R(KD+4*q,4)} offset:{KXO + 1024*q}", res="tab:w kx:w")
    p.add(f"v_mov_b32 v{ONE}, 0")
    for q in range(4): p.add(f"ds_write_addtid_b32 v{ONE} offset:{TB + 4096 + 256*q}", res="tab:w")


def kgen_tail(p):
    D, Q, O = KD, 224, 240
    for q in range(4): p.add(f"ds_read_b128 {R(Q+4*q,4)}, v{vXR+2} offset:{KXO + 1024*q}", res="kx:r ky:r")
    p.add(f"v_add_f32 v{D}, v{D}, v{vDS}")
    for r in KUSED: p.add(f"v_add_f32 v{D+r}, v{D+r}, v{Q+r}")
    cv = lambda o, x, y: p.add(f"v_cvt_pk_bf16_f32 v{o}, v{x}, v{y}")
    w = lambda t: p.add(t, res="tab:w")
    cv(O, D+3, D+2); cv(O+1, D+1, D); w(f"ds_write_b64 v{vKT}, {R(O,2)} offset:{2056 + 512}")
    cv(O+2, D+6, D+5); cv(O+3, D+4, D+4); w(f"ds_write_b64 v{vKT}, {R(O+2,2)} offset:2056")
    cv(O+4, D+10, D+10); cv(O+5, D+9, D+9); cv(O+6, D+9, D+8); cv(O+7, D+8, D+8); w(f"ds_write_b128 v{vKT+1}, {R(O+4,4)} offset:1536")
    for t in range(2):
        e0, e1, o = D+12+2*t, D+13+2*t, O+8+4*t
        p.add(f"v_cndmask_b32 v{o+1}, v{e0}, v{e1}, {S(sODD,2)}")
        cv(o, e1, e1); cv(o+1, e1, o+1); cv(o+2, e0, e0); cv(o+3, e0, e0)
        w(f"ds_write_b128 v{vKT+2}, {R(o,4)} offset:{512*(1-t)}")


def g1_reads(p, t):
    c, s = divmod(t, 4)
    o = c % 3 * 8192
    b = FR + 16 * (t & 1)
    res = f"c{c}:r f{c}:r"
    A = lambda tf: [p.add(f"ds_read_b64_tr_b16 {R(b+4*tf+2*h,2)}, v{vA+(s&2)+tf} offset:{o + RB*(s&1) + 1024*h}", res=res) for h in range(2)]
    B = lambda tl: p.add(f"ds_read_b128 {R(b+8+4*tl,4)}, v{vB+s} offset:{o + RB*tl}", res=res)
    A(0); B(0); B(1); A(1)


def w2_dma(p, k, P, **kw):
    res = f"w{k%6}:w" + (f" f{4 + k//2}:w" if k < 6 else "")
    p.add(f"s_add_u32 m0, s{sM}, {W2SLOT[k % 6]}", **kw)
    if k: p.add(f"s_add_u32 s{sW2}, s{sW2}, {32*896}", **kw)
    for i in range(4):
        p.add(f"buffer_load_dwordx4 v{vD2+i}, {S(W2,4)}, s{sW2} offen offset:{1024*i} lds", res=res, lat=P['LW'], **kw)


def w2_reads(p, k, **kw):
    for s in range(2):
        for td in range(2):
            for h in range(2):
                p.add(f"ds_read_b64_tr_b16 {R(8*(2*k+s)+4*td+2*h,2,'a')}, v{vT2+td} offset:{W2SLOT[k % 6] + (8*s+4*h)*128}", res=f"w{k%6}:r", **kw)


def u_part(p, P):
    sp = poll(p, "u", vPU, f"s{sPL}", ('g', P['UP']), ('g', P['UC']), "_u:w", post=st(3))
    d = dict(d=('g', P['UC']), lat=P['LU'], res="_u:r")
    for i in range(2): p.add(f"buffer_load_dwordx4 {R(UREG[i],4)}, v{vUL}, {S(WS,4)}, s{sUL} offen offset:{128 + 2048*i} sc1", **d)
    p.add(f"s_mov_b64 exec, 15\nbuffer_load_dwordx4 {R(UREG[2],4)}, v{vUL}, {S(WS,4)}, s{sUL} offen sc1\ns_mov_b64 exec, -1", atom=True, **d)
    T = UTMP
    for i in range(3):
        r = UREG[i]
        if i == 2:
            for k in range(4): p.add(f"v_and_b32 v{r+k}, s{sMK}, v{r+k}")
        p.add(f"v_lshlrev_b32 v{T+4*i}, 16, v{r}")
        for k in range(1, 4): p.add(f"v_alignbit_b32 v{T+4*i+k}, v{r+k}, v{r+k-1}, 16")
        if i < 2:
            p.add(f"ds_write_b128 v{vUW}, {R(r,4)} offset:{32 + 512*i}", res="us:w")
            p.add(f"ds_write_b128 v{vUW}, {R(T+4*i,4)} offset:{UP + 32 + 512*i}", res="us:w u16:a")
    for k, o in ((UREG[2], 0), (T + 8, UP)):
        p.add(f"s_mov_b64 exec, 15\nds_write_b128 v{vUW}, {R(k,4)} offset:{o}\ns_mov_b64 exec, -1", atom=True, res="us:w u16:a")
    for i in range(2): p.add(f"ds_write_b16_d16_hi v{vUW}, v{UREG[i]+3} offset:{UP + 48 + 512*i}", res="us:w u16:b")
    p.add(f"s_mov_b64 exec, 15\nds_write_b16_d16_hi v{vUW}, v{UREG[2]+3} offset:{UP + 16}\ns_mov_b64 exec, -1", atom=True, res="us:w u16:b")
    return sp


def gemm1(p, P):
    for s in range(2):
        for h in range(2):
            p.add(f"ds_read_b64_tr_b16 {R(aU+4*s+2*h,2,'a')}, v{vUT+8 + (s^h)} offset:{512*h}", res="x0:r f0:r" if not P['C2'] else "x0:r")

    def ut():
        for s in range(2):
            p.add(f"buffer_store_dwordx4 {R(aU+4*s,4,'a')}, v{vUS}, {S(WS,4)}, s{sCT if s else sU} offen sc1", res="ut:w", lat=P['LS'], d=('g', P['US']), e=P['UE'])
    p.add("s_barrier\n" + st(1), res="c0:b" + (" f0:b" if P['C2'] else ""), atom=True)
    if P['C2']: g1_dma(p, 2, P, lat=P['LD'], d=('g', 0)); p.grp.pop('f0')
    ut()
    g1_reads(p, 0)
    sp = ""
    for t in range(28):
        c, s = divmod(t, 4)
        if s < 2:
            b = aG + 4*s
            p.add(f"ds_read_b128 {R(b,4,'a')}, v{vGX+s} offset:{c % 3 * 8192}", res=f"c{c}:r f{c}:r")
            p.add(f"v_mfma_f32_16x16x32_bf16 {R(aGD,4,'a')}, {R(aGW+8*c+4*s,4,'a')}, {R(b,4,'a')}, {'0' if t == 0 else R(aGD,4,'a')}", car=('a', c, s))
        if s == 3:
            res = f"f{c}:b" + (f" c{c+1}:b" if c < 6 else "")
            if c == P['KB']: kgen_x(p); res += " kx:b"
            if c == P['UB']: res += " us:b"
            if c == P['KB'] + 1: res += " ky:b"
            p.add("s_barrier\n" + (st(7) if c == P['KB'] else ""), res=res, e=('g', 4*t - 1), d=('g', 4*t - 2), atom=True)
            if c == P['KB']: kgen_tail(p)
            if c == P['UF']: flag(p, f"s{sF}", "ut:f", e=('g', 4*t - 1), d=('g', 4*t))
            if c < 4: g1_dma(p, c + 3, P, lat=P['LD'], d=('g', 4*t + P['DD']))
            else:
                for k in (2*c - 8, 2*c - 7): w2_dma(p, k, P, d=(('g', 4*t), P['DD']))
            if c == 3: sp = u_part(p, P)
        if t < 27: g1_reads(p, t + 1)
        b = FR + 16 * (t & 1)
        for k in range(4):
            tf, tl = divmod(k, 2)
            d = R(ACC1 + 32*tf + 16*tl, 16)
            p.add(f"v_mfma_f32_32x32x16_bf16 {d}, {R(b+4*tf,4)}, {R(b+8+4*tl,4)}, {R(BIAS+16*tf,16) if t == 0 else d}", car=('g', 4*t + k))
        if t == 0: kgen_pass(p, 0); kgen_pass(p, 1)
    p.add(f"""
    v_accvgpr_read_b32 v{vGX}, a{aGD}
    v_mul_f32 v{vGX}, {LOG2E | 0x80000000}, v{vGX}
    v_exp_f32 v{vGX}, v{vGX}
    v_add_f32 v{vGX}, 1.0, v{vGX}
    v_rcp_f32 v{vGX}, v{vGX}
    """)
    p.add(f"ds_write_addtid_b32 v{vGX} offset:{GO}", res="cx:w")
    if P['KB'] == 7 or P['UB'] == 7:
        res = "us:b" if P['UB'] == 7 else ""
        if P['KB'] == 7: kgen_x(p); res += " kx:b"
        if P['KB'] == 6: res += " ky:b"
        p.add("s_barrier\n" + (st(7) if 7 == P['KB'] else ""), res=res, atom=True)
        if P['KB'] == 7: kgen_tail(p)
    return sp


def g1_epilogue(p, P):
    n = 0
    for tf in range(2):
        for tl in range(2):
            for s in range(2):
                d = ACC1 + 32*tf + 16*tl + 8*s
                kw = dict(d=(('g', 111), P['ED'] + P['ES'] * n)); n += 1
                for r in range(8): p.add(f"v_mul_f32 v{d+r}, v{d+r}, |v{d+r}|")
                for r in range(4): p.add(f"v_cvt_pk_bf16_f32 v{d+r}, v{d+2*r}, v{d+2*r+1}")
                for r in range(4): p.add(f"v_pk_max_i16 v{d+r}, v{d+r}, 0")
                p.add(f"buffer_store_dwordx4 {R(d,4)}, v{vL16}, {S(WS,4)}, s{sH1 if tl else sH0} offen offset:{(2*tf+s)*1024} {P['HSC']}\n" + (st(4) if n == 8 else ""),
                      res="hs:w", lat=P['LH'], atom=True, **kw)
    flag(p, f"s{sFH}", "hs:f", extra=st(5), e=('c', P['HF']), d=('c', P['HF']))


def conv(p, P):
    F = [192, 128]
    order = sorted(((t, d) for t in range(8) for d in range(8) if t + d < 8), key=lambda x: (max(x), x[0] + x[1], x[0]))
    seen = set()
    for r in range(4):
        b = F[r & 1]
        for i in range(8):
            o = 128 * (i & 1) + 16 * (3 - r)
            p.add(f"ds_read2_b32 {R(b+4*i,2)}, v{vU+(i>>1)} offset0:{o} offset1:{o+1}", res="us:r")
            p.add(f"ds_read2_b32 {R(b+4*i+2,2)}, v{vU+(i>>1)} offset0:{o+2} offset1:{o+3}", res="us:r")
            p.add(f"ds_read_b128 {R(b+32+4*i,4)}, v{vKf} offset:{512*(7-i) + 64*(3-r)}", res="tab:r")
        od = order if r < 3 else sorted(order, key=lambda x: (x[0] + x[1], x[0]))
        for k, (t, d) in enumerate(od):
            c = t + d
            acc = R(aC + 4*c, 4, 'a')
            p.add(f"v_mfma_f32_16x16x32_bf16 {acc}, {R(b+4*d,4)}, {R(b+32+4*t,4)}, {acc if c in seen else '0'}", car=('c', 36*r + k))
            seen.add(c)
    if P['KB'] == 7 or (P['KB'] == 6 and P['UB'] != 7): p.add("s_barrier", res="ky:b", e=('c', 40), d=('c', 40))


def conv_out(p, P):
    F = 2
    d = dict(d=('h', P['AD']))
    for c in range(8): p.add(f"ds_write_b128 v{vCW}, {R(aC+4*c,4,'a')} offset:{1024*c}", res="tab:w cx:w ky:w")
    p.add("s_barrier", res="cx:b")
    for i in range(2):
        for w in range(4): p.add(f"ds_read_b128 {R(F+16*i+4*w,4)}, v{vCR+(w>>1)} offset:{RB*(w&1) + 1024*i}", res="cx:r")
    for tl in range(2): p.add(f"ds_read_b32 v{vG+tl}, v{vG+tl} offset:{GO}", res="cx:r")
    for i in range(2):
        b = F + 16*i
        for k in (0, 1, 2, 3, 8, 9, 10, 11): p.add(f"v_add_f32 v{b+k}, v{b+k}, v{b+k+4}")
        for k in range(4): p.add(f"v_cvt_pk_bf16_f32 v{b+4+k}, v{b+k}, v{b+8+k}")
        p.add(f"buffer_store_dwordx4 {R(b+4,4)}, v{vL16}, {S(WS,4)}, s{sAS} offen offset:{1024*i} sc1", res="as:w", lat=P['LA'], **d)
    flag(p, f"s{sFA}", "as:f", e=('h', P['AF']), d=('h', P['AF']))


def slot(i):
    i %= 32
    return 192 + 4*(i - 16) if i >= 16 else 64 + 8*(i & 7) + (4 if i < 8 else 0)


def gemm2(p, P):
    ACC, AV, BS, GN = 128, 2, 10, 0
    SK, S2 = P['SK'], P['S2']
    seq = sorted(((tl, k) for tl in range(2) for k in range(28)), key=lambda x: (x[1] + SK * x[0], x[0]))
    mf = [(tl, k, td) for tl, k in seq[:56 - S2] for td in range(2)] + [(tl, k, td) for td in range(2) for tl, k in seq[56 - S2:]]
    sp = poll(p, "h", vPH, f"s{sPH}", ('c', P['HP']), ('c', P['HC']), "_h:w", pre=st(8), post=st(9))

    def hload(i):
        tl, k = seq[i]
        s = sG1 if tl else sG0
        if k and k % 4 == 0: p.add(f"s_add_u32 s{s}, s{s}, 4096")
        p.add(f"buffer_load_dwordx4 {R(slot(i),4)}, v{vL16}, {S(WS,4)}, s{s} offen offset:{1024*(k%4)} sc1", res="_h:r", lat=P['LG'])

    def out(tl):
        A = ACC + 32*tl
        Q = slot(24) if tl == 0 else ACC
        B = BS + 8*tl
        for q in range(6): p.add(f"ds_write_b128 v{vM16}, {R(A+4*q,4)} offset:{8192*tl + 1024*q}", res=f"gx{tl}:w w{4-4*tl}:w w{5-4*tl}:w")
        for k in range(8): p.add(f"v_fmac_f32 v{B+k}, v{A+24+k}, v{GN+tl}")
        p.add("s_barrier", res=f"gx{tl}:b")
        for q in range(6): p.add(f"ds_read_b128 {R(Q+4*q,4)}, v{vXR+(q>>1)} offset:{8192*tl + 1024*q}", res=f"gx{tl}:r")
        if tl == 0:
            for j in (8, 16):
                for k in range(8): p.add(f"v_add_f32 v{Q+k}, v{Q+k}, v{Q+j+k}")
            for k in range(8): p.add(f"v_fmac_f32 v{B+k}, v{Q+k}, v{GN}")
        else:
            for j in (8, 16):
                for k in range(0, 8, 2): p.add(f"v_pk_add_f32 {R(Q+k,2)}, {R(Q+k,2)}, {R(Q+j+k,2)}")
            for k in range(0, 8, 2): p.add(f"v_pk_fma_f32 {R(B+k,2)}, {R(Q+k,2)}, {R(GN,2)}, {R(B+k,2)} op_sel:[0,1,0] op_sel_hi:[1,1,1]")
            p.add(f"s_add_u32 s{sO}, s{sO}, {32*896}")
        for k in range(4): p.add(f"v_cvt_pk_bf16_f32 v{B+k}, v{B+2*k}, v{B+2*k+1}")
        p.add(f"buffer_store_dwordx4 {R(B,4)}, v{vO}, {S(OUT,4)}, s{sO} offen", d='END')

    for k in range(14):
        w2_reads(p, k)
        if k + 6 < 14: w2_dma(p, k + 6, P, d=(('c', 0), P['W0'] + P['W1'] * k))
    for i in range(32): hload(i)
    conv_out(p, P)
    sp += poll(p, "a", vPA, f"s{sPA}", ('h', P['AP']), ('h', P['AC']), "_a:w", post=st(10))
    for i in range(4):
        if i: p.add(f"s_add_u32 s{sAL}, s{sAL}, 8192")
        for tl in range(2):
            p.add(f"buffer_load_dword v{AV+4*tl+i}, v{vA2}, {S(WS,4)}, s{sAL} offen offset:{128*tl} sc1", res="_a:r", lat=P['LU'], d=('h', P['AC']))
    U = 26
    for tl in range(2): p.add(f"v_sub_f32 v{GN+tl}, 1.0, v{vG+tl}")
    for k in range(4): p.add(f"v_lshlrev_b32 v{U+2*k}, 16, v{B2R+k}\nv_and_b32 v{U+2*k+1}, 0xffff0000, v{B2R+k}")
    for tl in range(2):
        for k in range(8): p.add(f"v_mul_f32 v{BS+8*tl+k}, v{U+k}, v{GN+tl}")
    for tl in range(2):
        for k in range(4): p.add(f"v_lshlrev_b32 v{U+2*k}, 16, v{AV+4*tl+k}\nv_and_b32 v{U+2*k+1}, 0xffff0000, v{AV+4*tl+k}")
        for k in range(8): p.add(f"v_fmac_f32 v{BS+8*tl+k}, v{U+k}, v{vG+tl}")
    for m, (tl, k, td) in enumerate(mf):
        i = seq.index((tl, k))
        acc = R(ACC + 32*tl + 16*td, 16)
        p.add(f"v_mfma_f32_32x32x16_bf16 {acc}, {R(8*k+4*td,4,'a')}, {R(slot(i),4)}, {'0' if k == 0 else acc}", car=('h', m))
        if td and i + 32 < 56: hload(i + 32)
    out(0); out(1)
    return sp


DEF = dict(MAP=0, HSC='sc1', C2=1, TS=0, ORD='p0 p1 p2 p3 b g x0 w0 x1 w1 2 c |60', LP=2400, LC=3200, LD=500, LW=500, LU=700, LS=700, LH=600, LA=600, LG=600,
           US=0, UE=None, UF=1, UP=62, UC=76, KB=6, UB=6, K0=52, K1=84, KS=1, DD=4, ED=4, ES=3, EV=8, HF=60, HP=70, HC=100,
           AD=12, AF=40, AP=60, AC=76, SK=6, S2=3, INFL=2.0, DSLAT=112, LDSQ=48, VMQ=128, CAP32=6, CAP16=2, V0=60, W0=0, W1=16)


def build(**kw):
    P = dict(DEF); P.update(kw)
    name = NAME + "_kernel"
    global PROF
    a = Asm()
    if PROF: a("! " + st(0))
    XS = P.get('XS')
    if XS: PROF = False
    prologue(a, P)
    p = Prog()
    order = first_loads(p, P)
    setup(p)
    kgen_pre(p, P)
    sp = gemm1(p, P)
    g1_epilogue(p, P)
    conv(p, P)
    sp += gemm2(p, P)
    p.virt('END', 0)
    ins = {}
    for c in range(7):
        for s in range(2): ins.setdefault(16*c + 4*s + 5, []).append(('a', c, s))
    for n in range(2):
        for s in range(8): ins.setdefault(P['K1' if n else 'K0'] + s * P['KS'], []).append(('k', n, s))
    for m in range(112): order += [('g', m)] + ins.get(m, [])
    for k in range(P['EV']): p.virt(('e', k), 10); order.append(('e', k))
    order += [('c', m) for m in range(144)] + [('h', m) for m in range(112)] + ['END']
    stamp(p, 2, ('g', 111)); stamp(p, 6, ('k', 1, 7)); stamp(p, 15, ('c', 143)); stamp(p, 11, ('h', 111))
    log = []
    body, s = schedule(p, order, log=log, **{k: P[k] for k in ('INFL', 'DSLAT', 'LDSQ', 'VMQ', 'CAP32', 'CAP16')})
    m0 = None
    for i in body:
        if i.kind == 'salu' and ('m0', 0) in i.defs: m0 = int(i.text.split(',')[-1])
        if 'addtid' in i.op:
            h, o = i.text.split('offset:'); o = int(o) - m0
            assert 0 <= o < 65536
            i.text = f"{h}offset:{o}"
        i.raw = True
        if i.kind == 'smem': i.kind = 'label'; i.text = '  ' + i.text; i.states = 0
    if XS:
        PROF = True
        for k, c in enumerate(XS):
            i = Ins(st(k + 1).strip()); i.kind = 'label'; i.text = '  ' + i.text; i.states = 0; i.raw = True
            if isinstance(c, int): q = [x for x in body if x.kind != 'label' and x.isvm()][c]
            elif isinstance(c[0], str) and len(c[0]) > 1: q = [x for x in body if c[0] in x.text][c[1]]
            else: q = p.car[c].ins[0]
            body.insert(body.index(q) + 1, i)
    n0 = len(a.ins) + len(body)
    a.add(body)
    if PROF: a("! " + st(15 if XS else 12))
    a(f"""
    s_or_b32 s{sT0}, s2, s{sW}
    s_cbranch_scc1 Lnoep
    s_mov_b64 exec, 1
    buffer_store_dword v{vTAG}, off, {S(WS,4)}, 0 sc1
    Lnoep:
    """)
    if PROF:
        a(f"""
        s_lshl_b32 s{sT0}, s2, 2
        s_add_u32 s{sT0}, s{sT0}, s{sW}
        s_lshl_b32 s{sT0}, s{sT0}, 6
        s_add_u32 s{sT0}, s{sT0}, {STAMPS}
        s_mov_b64 exec, 1
        s_waitcnt lgkmcnt(0)
        """)
        for i in range(16): a(f"v_mov_b32 v2, s{STAMP0+2*i}\nbuffer_store_dword v2, off, {S(WS,4)}, s{sT0} offset:{4*i}")
    n1 = len(a.ins)
    fin = finalize(a.ins)
    tm = {k: (t, u, v) for k, t, u, v in log}
    ph = lambda c: sum(u for k, t, u, v in log if k[0] in c)
    print(f"instr {sum(1 for i in fin if i.kind != 'label')} added {len(fin) - n1} waits {s['waits']} stall {s['stall']} | g0 {tm[('g',0)][0]} G1 {ph('gak')} epi {ph('e')}"
          f" conv {ph('c')} G2 {ph('h')} tail {tm['END'][1]} total {s['now']}")
    if XS: print("model    ", " ".join(f"{tm.get(c, (0,))[0]/1000:6.2f}" for c in ['V0'] + XS))
    if P.get('LOG'):
        for k, t, u, v in log:
            if u > v: print(k, t, u, v)
    t = f".globl {name}\n.p2align 8\n.type {name},@function\n{name}:\n" + text_of(fin) + "Lend:\n  s_endpgm\n" + sp
    d = f""".p2align 6
.amdhsa_kernel {name}
  .amdhsa_next_free_vgpr 512
  .amdhsa_next_free_sgpr 102
  .amdhsa_accum_offset 256
  .amdhsa_group_segment_fixed_size 0
  .amdhsa_kernarg_size 128
  .amdhsa_user_sgpr_count 2
  .amdhsa_user_sgpr_kernarg_segment_ptr 1
  .amdhsa_system_sgpr_workgroup_id_x 1
.end_amdhsa_kernel
"""
    hdr = f"; @launch grid=(224,1,1) block=(256,1,1) lds={LDS}\n"
    return hdr + '.amdgcn_target "amdgcn-amd-amdhsa--gfx950"\n.text\n' + t + '.section .rodata,"a"\n' + d


if __name__ == "__main__":
    args = [x for x in sys.argv[1:] if not x.startswith("-") and "=" not in x]
    kw = {x.split("=")[0]: eval(x.split("=")[1]) for x in sys.argv[1:] if "=" in x}
    PROF = "-p" in sys.argv
    if "-c" in sys.argv: PROF = True; CLK = "s_memtime"
    open(args[0], "w").write(build(**kw))
```

```python
import sys
from dsl import Asm, finalize, text_of, Ins
from sched import Prog, schedule

NAME = "gated_mix__ssm_conv_s4d__dense_activation_squared_relu__prompt"
FL_U, FL_H, FL_A, STAMPS = 0x10000, 0x30000, 0x50000, 0x70000
UT, A2, HH, WS_SIZE = 0x100000, 0x300000, 0x500000, 0xC00000
LOG2E = 0x3fb8aa3b
LDS, RB = 163840, 40960
TB, KXO, UO, GWO, BIO, GO, UP = 24576, 29696, 33792, 38144, 39168, 39424, 1088
W2SLOT = [8192, 12288, 16384, 20480, 0, 4096]

X, W1, WS, OUT, W2 = 4, 8, 12, 16, 20
P_LA, P_AI, P_CR, P_CI, P_DT, P_DS, P_B1, P_W2, P_B2, P_GW = 24, 26, 28, 30, 32, 34, 36, 38, 40, 42
sW, sHX, sJ7, sJM, sRT, sCT, sP, sC, sCW, sM = 3, 44, 45, 46, 47, 48, 49, 50, 51, 52
sT0, sT1, sT2, sT3, sDT, sDS, sH0, sH1, sTAG, sF = 53, 54, 55, 56, 57, 58, 59, 60, 61, 62
sCNT, sW2, sFH, sPL, sU = 63, 64, 65, 66, 67
sCX = {0: sC, 1: 0, 2: 24, 3: 26, 4: 28, 5: 30, 6: 36}
sUL, sMK, sPH, sG0, sG1, sAS, sFA, sPA, sAL, sO = 32, 33, 34, 35, 38, 39, 40, 41, 42, 43
sODD = 100
STAMP0 = 68
SPIN = 1 << 16
PROF = False
EXP = 0
CLK = 's_memrealtime'

vXa, vWa, vA, vB, vGX, vU, vKf, vKR, vKP, vKT, vDS = 2, 6, 10, 14, 18, 20, 24, 25, 26, 27, 30
vUL, vUW, vPU, vUS, vPH, vF, vL16, vM16, vTAG, vD2, vT2 = 31, 32, 33, 34, 35, 36, 38, 39, 40, 42, 46
vCW, vCR, vPA, vA2, vO, vG, B2R, vXR, vSC = 48, 49, 51, 52, 53, 54, 56, 60, 63
ACC1, BIAS, FR, KD = 64, 128, 160, 128
aG, aGD, aU, aGW, aK, aC = 224, 232, 236, 40, 96, 224
UREG, UTMP = [2, 6, 144], 148


def R(b, n=1, f='v'): return f"{f}{b}" if n == 1 else f"{f}[{b}:{b+n-1}]"
def S(b, n): return f"s[{b}:{b+n-1}]"
def st(i): return f"{CLK} {S(STAMP0+2*i,2)}\n" if PROF else ""


def stamp(p, i, g):
    if PROF: p.add(st(i), e=g, d=(g[0], g[1] - 40) if isinstance(g[0], tuple) else (g, -40))


def flag(p, soff, res, extra="", pre="", n=1, sc="sc1", **kw):
    p.add(f"{pre}s_mov_b64 exec, 1\nbuffer_store_dword{'x2' if n == 2 else ''} {R(vTAG,n)}, off, {S(WS,4)}, {soff} {sc}\ns_mov_b64 exec, -1\n{extra}", res=res, atom=True, **kw)


def poll(p, name, va, soff, e0, e1, res, pre="", post="", n=1):
    ld = f"buffer_load_dword{'x2' if n == 2 else ''} {R(vF,n)}, v{va}, {S(WS,4)}, {soff} offen sc1"
    p.add(ld, e=e0, d=e0, lat=64)
    p.add(f"""
    {pre}
    v_cmp_ne_u32 vcc, s{sTAG}, v{vF}
    s_cbranch_vccnz Lspin_{name}
    Lok_{name}:
    {post}
    """, e=e1, d=e1, res=res, atom=True)
    return f"""Lspin_{name}:
  s_mov_b32 s{sCNT}, 0
Lloop_{name}:
  {ld}
  s_add_u32 s{sCNT}, s{sCNT}, 1
  s_cmp_lt_u32 s{sCNT}, {SPIN}
  s_waitcnt vmcnt(0)
  v_cmp_ne_u32 vcc, s{sTAG}, v{vF}
  s_cbranch_vccz Lok_{name}
  s_cbranch_scc1 Lloop_{name}
  s_branch Lok_{name}
"""


MAPS = [f'''s_lshr_b32 s{sRT}, s{sHX}, 1
    s_lshl_b32 s{sRT}, s{sRT}, 2
    s_add_u32 s{sRT}, s{sRT}, s{sJ7}
    s_and_b32 s{sHX}, s{sHX}, 1''', f'''s_lshr_b32 s{sRT}, s{sJ7}, 1
    s_lshl_b32 s{sHX}, s{sHX}, 1
    s_add_u32 s{sRT}, s{sRT}, s{sHX}
    s_and_b32 s{sHX}, s{sJ7}, 1''']
T0 = 64
_T = f'''
    s_min_u32 s{sCNT}, s{sPL}, 15
    s_lshl_b32 s{sCNT}, s{sCNT}, 3
    s_load_dwordx2 {S(sW2,2)}, s[0:1], s{sCNT}
    s_max_u32 s{sPL}, s{sPL}, 16
    s_sub_u32 s{sPL}, s{sPL}, 16
    s_min_u32 s{sPL}, s{sPL}, 11
    s_lshl_b32 s{sPL}, s{sPL}, 20'''
TOUCH = ["", f"s_mov_b32 s{sPL}, s{sT0}" + _T, f"s_lshl_b32 s{sPL}, s{sT0}, 2\ns_add_u32 s{sPL}, s{sPL}, s{sW}\ns_and_b32 s{sPL}, s{sPL}, 31" + _T]


def prologue(a, P):
    t = T0
    a(f"""
    s_load_dwordx8 {S(P_LA,8)}, s[0:1], 8
    s_load_dwordx2 {S(X,2)}, s[0:1], 0
    s_load_dwordx2 {S(W1,2)}, s[0:1], 64
    s_load_dwordx8 {S(P_B1,8)}, s[0:1], 72
    s_load_dwordx2 {S(WS,2)}, s[0:1], 120
    s_load_dwordx4 {S(P_DT,4)}, s[0:1], 40
    s_load_dwordx2 {S(OUT,2)}, s[0:1], 104
    s_cmp_ge_u32 s2, 224
    s_cbranch_scc1 {'Lhelp' if P['NH'] else 'Lend'}
    v_lshrrev_b32 v2, 6, v0
    v_and_b32 v1, 63, v0
    s_and_b32 s{sHX}, s2, 7
    s_lshr_b32 s{sT0}, s2, 3
    v_readfirstlane_b32 s{sW}, v2
    {TOUCH[P['TS']]}
    s_mul_i32 s{sJ7}, s{sT0}, 37
    s_lshr_b32 s{sJ7}, s{sJ7}, 8
    s_mul_i32 s{sJM}, s{sJ7}, 7
    s_sub_u32 s{sJM}, s{sT0}, s{sJM}
    s_lshl_b32 s{sP}, s{sJM}, 3
    s_add_u32 s{sP}, s{sP}, s{sHX}
    s_lshl_b32 s{sP}, s{sP}, 2
    s_add_u32 s{sP}, s{sP}, s{sJ7}
    {MAPS[P['MAP']]}
    s_mul_i32 s{sCT}, s{sHX}, 7
    s_add_u32 s{sCT}, s{sCT}, s{sJM}
    s_lshl_b32 s{sC}, s{sJ7}, 1
    s_add_u32 s{sC}, s{sC}, s{sJM}
    s_sub_u32 s{sT0}, s{sC}, 7
    s_min_u32 s{sC}, s{sC}, s{sT0}
    s_lshl_b32 s{sU}, s{sC}, 1
    s_add_u32 s{sU}, s{sU}, s{sHX}
    s_lshl_b32 s{sC}, s{sC}, 7
    s_mul_i32 s{sCW}, s{sC}, 1792
    s_lshl_b32 s{sT0}, s{sRT}, 2
    s_add_u32 s{sF}, s{sT0}, s{sW}
    s_mul_i32 s{sT0}, s{sF}, {32*896}
    s_mul_i32 s{sT1}, s{sW}, {16*3584}
    s_lshl_b32 s{sT2}, s{sCT}, 8
    s_add_u32 s{sT1}, s{sT1}, s{sT2}
    s_mul_i32 s{sM}, s{sW}, {RB}
    s_lshl_b32 s{sT3}, s{sP}, 2
    s_add_u32 s{sH0}, s{sT3}, s{sW}
    s_lshl_b32 s{sH0}, s{sH0}, 8
    v_lshrrev_b32 v{t}, 3, v1
    v_lshrrev_b32 v{t+1}, 4, v1
    v_mul_u32_u24 v{vD2}, 896, v{t}
    v_and_b32 v{t+2}, 7, v1
    v_xor_b32 v{t+2}, v{t+2}, v{t+1}
    v_lshl_add_u32 v{t}, v{t+2}, 4, v{vD2}
    v_add_u32 v{vXa}, s{sT0}, v{t}
    v_xor_b32 v{t}, 64, v{vXa}
    v_add_u32 v{vXa+1}, 6144, v{t}
    v_add_u32 v{vXa+2}, 12288, v{vXa}
    v_add_u32 v{vXa+3}, {6144+12288}, v{t}
    v_mul_u32_u24 v{t}, 3584, v{t+1}
    v_lshlrev_b32 v{t+1}, 2, v{t+1}
    v_xor_b32 v{t+1}, v{t+1}, v1
    v_and_b32 v{t+1}, 15, v{t+1}
    v_lshl_add_u32 v{t}, v{t+1}, 4, v{t}
    v_add_u32 v{vWa}, s{sT1}, v{t}
    v_add_u32 v{vWa+1}, 13312, v{vWa}
    v_add_u32 v{vWa+2}, {2*13312}, v{vWa}
    v_add_u32 v{vWa+3}, {3*13312}, v{vWa}
    v_lshl_add_u32 v{t+3}, v1, 2, s{sH0}
    v_lshl_add_u32 v{t+4}, v1, 2, s{sT2}
    v_lshlrev_b32 v{vL16}, 4, v1
    v_add_u32 v{t+5}, s{sC}, v{vL16}
    v_subrev_u32 v{t+6}, 896, v{t+5}
    v_min_u32 v{t+5}, v{t+5}, v{t+6}
    s_lshl_b32 s{sT0}, s{sJM}, 2
    s_add_u32 s{sT0}, s{sT0}, s{sW}
    s_lshl_b32 s{sT0}, s{sT0}, 5
    v_lshrrev_b32 v{t+7}, 5, v1
    v_lshl_add_u32 v{vO}, v{t+7}, 4, s{sT0}
    s_mov_b32 s{X+2}, {2048*896}
    s_mov_b32 s{X+3}, 0x20000
    s_mov_b32 s{W1+2}, {448*3584}
    s_mov_b32 s{W1+3}, 0x20000
    @lgkm0
    """)
    if PROF: a("! " + st(13))
    if P['TS']: a(f"!  s_load_dword s{sCNT}, {S(sW2,2)}, s{sPL}")
    a(f"""
    !  s_load_dword s{sDT}, {S(P_DT,2)}, s{sT3}
    !  s_load_dword s{sDS}, {S(P_DS,2)}, s{sT3}
    !  s_load_dword s{sTAG}, {S(WS,2)}, 0
    """)


KI = 252


def g1_dma(p, c, P, **kw):
    slot = c % 3
    res = f"c{c}:w" + (f" f{c-3}:w" if c >= 3 else "") + (" f0:w" if c == 2 and P['C2'] else "")
    p.add(f"s_add_u32 m0, s{sM}, {slot*8192}", **kw)
    for i in range(4):
        p.add(f"buffer_load_dwordx4 v{vXa+i}, {S(X,4)}, s{sCX[c]} offen offset:{1024*i} lds", res=res + (" x0:w" if c == 0 else ""), **kw)
    p.add(f"s_add_u32 m0, s{sM}, {slot*8192 + 4096}", **kw)
    for i in range(4):
        p.add(f"buffer_load_dwordx4 v{vWa+i}, {S(W1,4)}, s{sCX[c]+1} offen offset:{1024*i} lds", res=res, **kw)


def first_loads(p, P):
    t = T0
    for c in range(1, 7):
        q = lambda: (p.add(f"s_add_u32 s{sCX[c]}, s{sCX[c-1]}, 128\ns_cmp_eq_u32 s{sCX[c]}, 896\ns_cselect_b32 s{sCX[c]}, 0, s{sCX[c]}", atom=True),
                     p.add(f"s_mul_i32 s{sCX[c]+1}, s{sCX[c]}, 1792"))
        if c == 1: q()
    V = ['V0']; m0 = [None]; need = "_pa:w"

    def ld(text, m, res, lat):
        d = dict(e=V[-1], d=(V[-1], -1))
        if m is not None and m != m0[0]: p.add(f"s_add_u32 m0, s{sM}, {m}", res="_m0:w" if m0[0] is None else "", **d); m0[0] = m
        p.add(text, lat=lat, res=res + " _o:!", **d)

    late = []
    for k in P['ORD'].split():
        if k[0] == '|': p.virt(V[-1], int(k[1:])); V.append(f"V{len(V)}")
        elif k[0] == 'p': ld(f"global_load_dword v{KI+int(k[1])}, v{t+3}, {S(P_LA+2*int(k[1]),2)}", None, "", P['LP'])
        elif k == 'b': ld(f"global_load_lds_dword v{t+4}, {S(P_B1,2)}", BIO, "bias:w", P['LP'])
        elif k == 'g': ld(f"global_load_lds_dwordx4 v{t+5}, {S(P_GW,2)}", GWO, "gw:w", P['LP'])
        elif k == '2': ld(f"global_load_dwordx4 {R(B2R,4)}, v{vO}, {S(P_B2,2)}", None, "", P['LP'])
        elif k == 'c':
            for c in range(2, 7):
                p.add(f"s_add_u32 s{sCX[c]}, s{sCX[c-1]}, 128\ns_cmp_eq_u32 s{sCX[c]}, 896\ns_cselect_b32 s{sCX[c]}, 0, s{sCX[c]}", atom=True)
                p.add(f"s_mul_i32 s{sCX[c]+1}, s{sCX[c]}, 1792")
        elif k[0] == 't':
            base, sh, n = {'W': (W1, 15, 49), 'X': (X, 15, 56), '2': (P_W2, 15, 49), 'O': (OUT, 15, 56), 'S': (WS, 18, 48)}[k[1]]
            if len(k) > 2: n = (n - 1 >> int(k[2])) + 1; sh += int(k[2])
            r = 236 + len(late); late.append(r)
            p.add(f"v_min_u32 v{r}, {n-1}, v1\nv_lshlrev_b32 v{r}, {sh}, v{r}", d=('V0', -1))
            ld(f"global_load_dword v{r}, v{r}, {S(base,2)}", None, "", P['LP'])
        else:
            c = int(k[1])
            for i in ([int(k[2])] if len(k) > 2 else range(4)):
                res = f"c{c}:w"
                lat = P['LC'] if c == 0 else P['LD']
                if k[0] == 'x': ld(f"buffer_load_dwordx4 v{vXa+i}, {S(X,4)}, s{sCX[c]} offen offset:{1024*i} lds", c*8192, res + (" x0:w" if c == 0 else ""), lat)
                else: ld(f"buffer_load_dwordx4 v{vWa+i}, {S(W1,4)}, s{sCX[c]+1} offen offset:{1024*i} lds", c*8192 + 4096, res, lat)
    if PROF: p.add(st(14), res="_o:!", d=V[-1])
    p.virt(V[-1], 0)
    return V


vUT, vFU, vGW = 80, 82, 83


def setup(p):
    t = T0 + 8
    hi, q4, b0, b4, b1, b3, l31, l15, g4, x, y = range(t, t + 11)
    hi = T0 + 7
    p.add(f"""
    s_lshr_b32 s{sT0}, s{sW}, 1
    s_and_b32 s{sT1}, s{sW}, 1
    v_bfe_u32 v{q4}, v1, 2, 2
    v_and_b32 v{b0}, 1, v1
    v_and_b32 v{b4}, 16, v1
    v_and_b32 v{b1}, 2, v1
    v_and_b32 v{b3}, 8, v1
    v_and_b32 v{x}, 3, v1
    v_lshl_add_u32 v{x}, v{x}, 3, v{q4}
    v_lshlrev_b32 v{x}, 7, v{x}
    v_xor_b32 v{y}, s{sHX}, v{b0}
    v_lshl_add_u32 v{x}, v{y}, 6, v{x}
    v_lshrrev_b32 v{y}, 3, v{b3}
    v_xor_b32 v{y}, v{y}, v{hi}
    v_lshl_add_u32 v{x}, v{y}, 4, v{x}
    v_lshrrev_b32 v{y}, 1, v{b4}
    v_add3_u32 v{vUT+8}, v{x}, v{y}, s{sM}
    v_xor_b32 v{vUT+9}, 32, v{vUT+8}
    v_lshl_add_u32 v{x}, v{hi}, 3, v{q4}
    v_lshlrev_b32 v{x}, 8, v{x}
    s_lshl_b32 s{sT2}, s{sT0}, 1
    v_xor_b32 v{y}, s{sT2}, v{q4}
    v_lshl_add_u32 v{x}, v{y}, 6, v{x}
    v_lshl_add_u32 v{x}, v{b0}, 5, v{x}
    v_add_u32 v{x}, v{b4}, v{x}
    v_lshl_add_u32 v{x}, v{b1}, 2, v{x}
    v_add_u32 v{vA}, 4096, v{x}
    v_xor_b32 v{vA+1}, 64, v{vA}
    v_add_u32 v{vA+2}, {2*RB}, v{vA}
    v_add_u32 v{vA+3}, {2*RB}, v{vA+1}
    v_and_b32 v{l31}, 31, v1
    v_and_b32 v{l15}, 15, v1
    v_lshrrev_b32 v{g4}, 4, v1
    v_bfe_u32 v{y}, v1, 1, 3
    v_xor_b32 v{x}, v{y}, v{hi}
    v_lshlrev_b32 v{x}, 4, v{x}
    v_lshl_add_u32 v{x}, v{l31}, 7, v{x}
    s_mul_i32 s{sT2}, s{sT1}, {2*RB}
    v_add_u32 v{vB}, s{sT2}, v{x}
    v_xor_b32 v{vB+1}, 32, v{vB}
    v_xor_b32 v{vB+2}, 64, v{vB}
    v_xor_b32 v{vB+3}, 96, v{vB}
    v_xor_b32 v{x}, v{y}, v{g4}
    v_lshlrev_b32 v{x}, 4, v{x}
    v_lshl_add_u32 v{x}, v{l15}, 7, v{x}
    s_lshl_b32 s{sT2}, s{sHX}, 1
    s_add_u32 s{sT2}, s{sT2}, s{sT0}
    s_mul_i32 s{sT2}, s{sT2}, {RB}
    s_lshl_b32 s{sT3}, s{sT1}, 11
    s_add_u32 s{sT2}, s{sT2}, s{sT3}
    v_add_u32 v{vGX}, s{sT2}, v{x}
    v_xor_b32 v{vGX+1}, 64, v{vGX}
    v_lshlrev_b32 v{y}, 2, v{y}
    v_lshl_add_u32 v{y}, v{g4}, 4, v{y}
    v_mul_u32_u24 v{x}, {UP}, v{b0}
    v_sub_u32 v{y}, v{y}, v{x}
    s_mul_i32 s{sT2}, s{sT0}, {2*UP}
    s_lshl_b32 s{sT3}, s{sT1}, 8
    s_sub_u32 s{sT2}, s{sT2}, s{sT3}
    s_add_u32 s{sT2}, s{sT2}, {UO + UP + 260}
    v_add_u32 v{vU}, s{sT2}, v{y}
    v_add_u32 v{vU+1}, {RB}, v{vU}
    v_add_u32 v{vU+2}, {2*RB}, v{vU}
    v_add_u32 v{vU+3}, {3*RB}, v{vU}
    s_sub_u32 s{sT2}, s{sM}, s{sT3}
    s_add_u32 s{sT2}, s{sT2}, {TB + 4512 - 3584 - 192}
    v_lshlrev_b32 v{x}, 5, v{l15}
    v_lshlrev_b32 v{y}, 4, v{g4}
    v_sub_u32 v{x}, v{y}, v{x}
    v_add_u32 v{vKf}, s{sT2}, v{x}
    v_add_u32 v{vGW+8}, s{sM}, v{y}
    s_lshl_b32 s{sT2}, s{sT0}, 7
    s_add_u32 s{sT2}, s{sT2}, s{sM}
    v_lshl_add_u32 v{vFU+8}, v{hi}, 5, s{sT2}
    v_lshlrev_b32 v{x}, 4, v{l15}
    v_lshl_add_u32 v{vUS}, v{g4}, 14, v{x}
    v_mul_u32_u24 v{x}, 272, v{l31}
    v_lshl_add_u32 v{x}, v{hi}, 4, v{x}
    v_add_u32 v{vKR}, s{sM}, v{x}
    v_lshl_add_u32 v{x}, v{hi}, 4, v{q4}
    v_lshlrev_b32 v{x}, 7, v{x}
    v_lshl_add_u32 v{x}, v{b0}, 4, v{x}
    v_lshl_add_u32 v{x}, v{b4}, 1, v{x}
    v_lshl_add_u32 v{x}, v{b1}, 2, v{x}
    v_lshl_add_u32 v{x}, v{b3}, 3, v{x}
    s_xor_b32 s{sT2}, s{sW}, 3
    s_lshl_b32 s{sT3}, s{sT2}, 5
    v_xor_b32 v{x}, s{sT3}, v{x}
    v_add_u32 v{vT2}, s{sM}, v{x}
    v_xor_b32 v{vT2+1}, 64, v{vT2}
    s_mul_i32 s{sT3}, s{sT2}, {RB}
    v_add_u32 v{vXR}, s{sT3}, v{vL16}
    s_xor_b32 s{sT3}, s{sW}, 2
    s_mul_i32 s{sT3}, s{sT3}, {RB}
    v_add_u32 v{vXR+1}, s{sT3}, v{vL16}
    s_xor_b32 s{sT3}, s{sW}, 1
    s_mul_i32 s{sT3}, s{sT3}, {RB}
    v_add_u32 v{vXR+2}, s{sT3}, v{vL16}
    v_add_u32 v{vM16}, s{sM}, v{vL16}
    v_lshrrev_b32 v{x}, 2, v1
    v_and_b32 v{x}, 4, v{x}
    v_xor_b32 v{x}, v{x}, v1
    v_and_b32 v{x}, 7, v{x}
    v_lshl_add_u32 v{vD2}, v{x}, 4, v{vD2}
    v_add_u32 v{vD2+1}, 6144, v{vD2}
    v_add_u32 v{vD2+2}, 12288, v{vD2}
    v_add_u32 v{vD2+3}, 18432, v{vD2}
    s_mul_i32 s{sW2}, s{sW}, {448*896}
    s_lshl_b32 s{sT2}, s{sJM}, 7
    s_add_u32 s{sW2}, s{sW2}, s{sT2}
    v_lshrrev_b32 v{x}, 1, v1
    v_lshlrev_b32 v{vUL}, 6, v{x}
    v_lshl_add_u32 v{vUL}, v{b0}, 4, v{vUL}
    v_mul_u32_u24 v{y}, {2*UP}, v{b0}
    v_lshl_add_u32 v{x}, v{x}, 4, v{y}
    s_add_u32 s{sT2}, s{sM}, {UO}
    v_add_u32 v{vUW}, s{sT2}, v{x}
    s_lshl_b32 s{sT2}, s{sW}, 4
    v_min_u32 v{x}, 16, v1
    v_add_u32 v{x}, s{sT2}, v{x}
    v_max_u32 v{x}, 1, v{x}
    s_lshr_b32 s{sT2}, s{sP}, 4
    s_lshl_b32 s{sT2}, s{sT2}, 13
    v_lshl_add_u32 v{x}, v{x}, 7, s{sT2}
    v_min_u32 v{y}, 13, v{l31}
    s_lshl_b32 s{sT2}, s{sF}, 7
    s_add_u32 s{sT2}, s{sT2}, 128
    v_lshl_add_u32 v{y}, v{y}, 13, s{sT2}
    v_sub_u32 v{y}, v{y}, v{x}
    v_mad_i32_i24 v{vPU}, v{y}, v{hi}, v{x}
    s_getreg_b32 s{sT2}, hwreg(HW_REG_XCC_ID, 0, 16)
    v_mov_b32 v{vTAG+1}, s{sT2}
    v_lshlrev_b32 v{x}, 4, v{l31}
    s_add_u32 s{sT2}, s{sM}, {TB + 1520}
    v_sub_u32 v{x}, s{sT2}, v{x}
    v_lshlrev_b32 v{y}, 3, v{hi}
    v_sub_u32 v{vKT}, v{x}, v{y}
    v_lshlrev_b32 v{y}, 9, v{hi}
    v_sub_u32 v{vKT+1}, v{x}, v{y}
    v_sub_u32 v{vKT+2}, v{vKT+1}, v{y}
    v_lshrrev_b32 v{x}, 4, v{l31}
    v_mul_u32_u24 v{x}, {RB}, v{x}
    v_lshl_add_u32 v{vG}, v{l15}, 2, v{x}
    v_add_u32 v{vG+1}, {2*RB}, v{vG}
    v_min_u32 v{x}, 6, v1
    v_lshlrev_b32 v{vPH}, 7, v{x}
    v_lshl_add_u32 v{x}, v{l15}, 2, v{g4}
    v_xor_b32 v{x}, v{x}, v{q4}
    s_add_u32 s{sT2}, s{sM}, {TB}
    v_lshl_add_u32 v{vCW}, v{x}, 4, s{sT2}
    v_xor_b32 v{x}, v{g4}, v1
    s_lshl_b32 s{sT2}, s{sW}, 11
    s_add_u32 s{sT2}, s{sT2}, {TB}
    v_lshl_add_u32 v{vCR}, v{x}, 4, s{sT2}
    v_add_u32 v{vCR+1}, {2*RB}, v{vCR}
    v_and_b32 v{x}, 7, v1
    v_lshlrev_b32 v{vPA}, 9, v{x}
    v_mul_u32_u24 v{x}, 896, v{l31}
    v_add_u32 v{vO}, v{vO}, v{x}
    v_lshlrev_b32 v{x}, 2, v{l31}
    v_lshl_add_u32 v{vA2}, v{hi}, 15, v{x}
    s_mov_b32 s{WS+2}, {WS_SIZE}
    s_mov_b32 s{WS+3}, 0x20000
    s_mov_b32 s{OUT+2}, {2048*896}
    s_mov_b32 s{OUT+3}, 0x20000
    s_mov_b32 s{W2}, s{P_W2}
    s_mov_b32 s{W2+1}, s{P_W2+1}
    s_mov_b32 s{W2+2}, {1792*896}
    s_mov_b32 s{W2+3}, 0x20000
    s_mov_b32 s{sODD}, 0xaaaaaaaa
    s_mov_b32 s{sODD+1}, 0xaaaaaaaa
    s_lshl_b32 s{sH0}, s{sRT}, 1
    s_add_u32 s{sRT}, s{sH0}, s{sHX}
    s_add_u32 s{sH0}, s{sH0}, s{sT1}
    s_mul_i32 s{sH0}, s{sH0}, 28
    s_lshl_b32 s{sT2}, s{sCT}, 1
    s_add_u32 s{sT2}, s{sT2}, s{sT0}
    s_add_u32 s{sFH}, s{sH0}, s{sT2}
    s_add_u32 s{sH0}, s{sH0}, s{sFH}
    s_lshl_b32 s{sFH}, s{sFH}, 7
    s_add_u32 s{sFH}, s{sFH}, {FL_H}
    s_lshl_b32 s{sH0}, s{sH0}, 12
    s_add_u32 s{sH0}, s{sH0}, {HH}
    s_add_u32 s{sH1}, s{sH0}, {112*1024}
    s_lshl_b32 s{sT2}, s{sU}, 6
    s_add_u32 s{sT2}, s{sT2}, s{sF}
    s_lshl_b32 s{sU}, s{sU}, 9
    s_add_u32 s{sU}, s{sU}, s{sF}
    s_lshl_b32 s{sU}, s{sU}, 8
    s_add_u32 s{sU}, s{sU}, {UT}
    s_add_u32 s{sCT}, s{sU}, 65536
    s_lshl_b32 s{sF}, s{sT2}, 7
    s_add_u32 s{sF}, s{sF}, {FL_U}
    s_mov_b32 s{sPL}, {FL_U - 128}
    s_lshl_b32 s{sFA}, s{sP}, 2
    s_add_u32 s{sFA}, s{sFA}, s{sW}
    s_lshl_b32 s{sAS}, s{sFA}, 11
    s_add_u32 s{sAS}, s{sAS}, {A2}
    s_lshl_b32 s{sFA}, s{sFA}, 7
    s_add_u32 s{sFA}, s{sFA}, {FL_A}
    s_lshl_b32 s{sT0}, s{sJM}, 2
    s_add_u32 s{sT0}, s{sT0}, s{sW}
    s_lshl_b32 s{sT2}, s{sT0}, 5
    s_lshr_b32 s{sT1}, s{sRT}, 3
    s_add_u32 s{sPA}, s{sT2}, s{sT1}
    s_lshl_b32 s{sPA}, s{sPA}, 7
    s_add_u32 s{sPA}, s{sPA}, {FL_A}
    s_mul_i32 s{sO}, s{sRT}, {64*896}
    s_lshl_b32 s{sT0}, s{sT0}, 16
    s_lshl_b32 s{sT1}, s{sRT}, 8
    s_add_u32 s{sAL}, s{sT0}, s{sT1}
    s_add_u32 s{sAL}, s{sAL}, {A2}
    """, d='V0')
    p.add("s_waitcnt lgkmcnt(0)", res="_sm:w", d='V1', e='V1')
    p.add(f"""
    s_lshr_b32 s{sUL}, s{sP}, 1
    s_lshl_b32 s{sUL}, s{sUL}, 2
    s_add_u32 s{sUL}, s{sUL}, s{sW}
    s_lshl_b32 s{sUL}, s{sUL}, 7
    s_and_b32 s{sT2}, s{sP}, 1
    s_add_u32 s{sUL}, s{sUL}, s{sT2}
    s_lshl_b32 s{sUL}, s{sUL}, 5
    s_add_u32 s{sUL}, s{sUL}, {UT - 128}
    s_mul_i32 s{sPH}, s{sRT}, 28
    s_mul_i32 s{sT1}, s{sW}, 7
    s_add_u32 s{sT1}, s{sT1}, s{sPH}
    s_add_u32 s{sG0}, s{sT1}, s{sPH}
    s_lshl_b32 s{sG0}, s{sG0}, 12
    s_add_u32 s{sG0}, s{sG0}, {HH}
    s_add_u32 s{sG1}, s{sG0}, {112*1024}
    s_lshl_b32 s{sPH}, s{sT1}, 7
    s_add_u32 s{sPH}, s{sPH}, {FL_H}
    s_lshr_b32 s{sT0}, s{sW}, 1
    s_lshl_b32 s{sT0}, s{sT0}, 4
    s_lshr_b32 s{sDT}, s{sDT}, s{sT0}
    s_lshl_b32 s{sDT}, s{sDT}, 16
    s_lshr_b32 s{sDS}, s{sDS}, s{sT0}
    s_lshl_b32 s{sDS}, s{sDS}, 16
    s_mul_i32 s{sTAG}, s{sTAG}, 0x9E3779B1
    s_add_u32 s{sTAG}, s{sTAG}, 0x7F4A7C15
    v_mov_b32 v{vTAG}, s{sTAG}
    v_mov_b32 v{vDS}, 0
    v_writelane_b32 v{vDS}, s{sDS}, 0
    """, res="_sm:r", d='V0')
    p.add(f"s_cmp_lg_u32 s{sW}, 0\ns_cselect_b32 s{sMK}, -1, 0", res="_sm:r", atom=True, d='V0')
    for k, o in enumerate((0, 16, 64, 80)): p.add(f"ds_read_b128 {R(FR+16+4*k,4)}, v{vFU+8} offset:{BIO + o}", res="bias:r _sm:r")
    for k in range(16): p.add(f"v_lshlrev_b32 v{BIAS+2*k}, 16, v{FR+16+k}\nv_and_b32 v{BIAS+2*k+1}, 0xffff0000, v{FR+16+k}")
    for k in range(14): p.add(f"ds_read_b128 {R(aGW+4*k,4,'a')}, v{vGW+8} offset:{GWO + 64*k}", res="gw:r _sm:r")


EH, CH, ONE, KEEP, ROT, NROT = 192, 214, 216, 217, 224, 12


def kgen_pre(p, P):
    DT, ER, ZI, TM, E, MX, CC = 96, 98, 100, 102, 108, 116, 118
    p.add(f"""
    v_mov_b32 v{DT}, {LOG2E}
    v_mul_f32 v{DT}, s{sDT}, v{DT}
    v_exp_f32 v{DT}, v{DT}
    v_mov_b32 v{ONE}, 0x3c00
    v_cvt_pk_bf16_f32 v{DT}, v{DT}, v{DT}
    v_lshlrev_b32 v{DT}, 16, v{DT}
    v_lshlrev_b32 v{ER}, 16, v{KI}
    v_and_b32 v{ER+1}, 0xffff0000, v{KI}
    v_mul_f32 v{ER}, {LOG2E}, v{ER}
    v_mul_f32 v{ER+1}, {LOG2E}, v{ER+1}
    v_exp_f32 v{ER}, v{ER}
    v_exp_f32 v{ER+1}, v{ER+1}
    v_lshlrev_b32 v{ZI}, 16, v{KI+1}
    v_and_b32 v{ZI+1}, 0xffff0000, v{KI+1}
    v_cvt_pk_bf16_f32 v{ER+1}, v{ER}, v{ER+1}
    v_mul_f32 v{ZI}, v{ZI}, v{DT}
    v_mul_f32 v{ZI+1}, v{ZI+1}, v{DT}
    v_lshlrev_b32 v{ER}, 16, v{ER+1}
    v_and_b32 v{ER+1}, 0xffff0000, v{ER+1}
    v_mul_f32 v{ZI}, 0.15915494, v{ZI}
    v_mul_f32 v{ZI+1}, 0.15915494, v{ZI+1}
    v_mul_f32 v{ER}, v{ER}, v{DT}
    v_mul_f32 v{ER+1}, v{ER+1}, v{DT}
    v_mul_f32 v{ER}, {LOG2E | 0x80000000}, v{ER}
    v_mul_f32 v{ER+1}, {LOG2E | 0x80000000}, v{ER+1}
    v_lshlrev_b32 v{CC}, 16, v{KI+2}
    v_lshlrev_b32 v{CC+1}, 16, v{KI+3}
    v_and_b32 v{CC+2}, 0xffff0000, v{KI+2}
    v_and_b32 v{CC+3}, 0xffff0000, v{KI+3}
    v_max3_f32 v{MX}, |v{CC}|, |v{CC+1}|, |v{CC+2}|
    v_max_f32 v{MX}, v{MX}, |v{CC+3}|
    v_max_u32_dpp v{MX}, v{MX}, v{MX} row_shr:1 row_mask:0xf bank_mask:0xf
    v_max_u32_dpp v{MX}, v{MX}, v{MX} row_shr:2 row_mask:0xf bank_mask:0xf
    v_max_u32_dpp v{MX}, v{MX}, v{MX} row_shr:4 row_mask:0xf bank_mask:0xf
    v_max_u32_dpp v{MX}, v{MX}, v{MX} row_shr:8 row_mask:0xf bank_mask:0xf
    v_max_u32_dpp v{MX}, v{MX}, v{MX} row_bcast:15 row_mask:0xa bank_mask:0xf
    v_max_u32_dpp v{MX}, v{MX}, v{MX} row_bcast:31 row_mask:0xc bank_mask:0xf
    v_readlane_b32 s{sT0}, v{MX}, 63
    s_lshr_b32 s{sT0}, s{sT0}, 23
    s_max_u32 s{sT0}, s{sT0}, 14
    s_sub_u32 s{sT1}, 267, s{sT0}
    s_lshl_b32 s{sT1}, s{sT1}, 23
    s_sub_u32 s{sT0}, s{sT0}, 12
    s_lshl_b32 s{sT0}, s{sT0}, 23
    v_mul_f32 v{vSC}, s{sT0}, v{DT}
    """)
    for k in range(4): p.add(f"v_mul_f32 v{CC+k}, s{sT1}, v{CC+k}")
    for n in range(2): p.add(f"v_cvt_pk_f16_f32 v{CH+n}, v{CC+2*n}, -v{CC+2*n+1}")
    for n in range(2):
        for h in range(2):
            e = E + 4*n + 2*h; tm = TM + (2*n + h) % 3 * 2
            if h: p.add(f"v_mul_f32 v{tm}, 0x42000000, v{ER+n}\nv_mul_f32 v{tm+1}, 0x42000000, v{ZI+n}\nv_exp_f32 v{tm}, v{tm}\nv_fract_f32 v{tm+1}, v{tm+1}")
            else: p.add(f"v_exp_f32 v{tm}, v{ER+n}\nv_fract_f32 v{tm+1}, v{ZI+n}")
            p.add(f"v_cos_f32 v{e}, v{tm+1}\nv_sin_f32 v{e+1}, v{tm+1}\nv_mul_f32 v{e}, v{e}, v{tm}\nv_mul_f32 v{e+1}, v{e+1}, v{tm}")
    for k in range(6):
        for n in range(2):
            for h in range(2):
                if k == 5 and not h: continue
                e = E + 4*n + 2*h; tm = TM + (2*n + h) % 3 * 2
                p.add(f"v_cvt_pk_f16_f32 v{EH + 11*n + 5*h + k}, v{e}, v{e+1}")
                if k < 4 + h:
                    p.add(f"v_pk_mul_f32 {R(tm,2)}, {R(e,2)}, {R(e,2)} op_sel:[0,0] op_sel_hi:[0,1]")
                    p.add(f"v_pk_fma_f32 {R(e,2)}, {R(e,2)}, {R(e,2)}, {R(tm,2)} op_sel:[1,1,0] op_sel_hi:[1,0,1] neg_lo:[1,0,0]")


def kgen_pass(p, n):
    E = lambda k: EH + 11*n + k
    rot = [0]

    def dst(keep):
        if keep is not None: return KEEP + keep
        rot[0] += 1
        return ROT + rot[0] % NROT

    def wr(row, r):
        if not EXP: p.add(f"ds_write_addtid_b32 v{r} offset:{TB + 272*row}", res="tab:w _m0:r")

    def ca(rows, x, y, keep=None):
        d = dst(keep)
        if EXP > 1: return d
        p.add(f"v_pk_mul_f16 v{d}, v{x}, v{y} op_sel:[0,0] op_sel_hi:[1,0]")
        p.add(f"v_pk_fma_f16 v{d}, v{x}, v{y}, v{d} op_sel:[1,1,0] op_sel_hi:[0,1,1] neg_hi:[1,0,0]")
        for r in rows: wr(r, d)
        return d

    def cb(row, x, y, keep=None):
        d = dst(keep)
        if EXP > 1: return d
        p.add(f"v_pk_mul_f16 v{d}, v{x}, v{y} op_sel:[0,0] op_sel_hi:[0,1]")
        p.add(f"v_pk_fma_f16 v{d}, v{x}, v{y}, v{d} op_sel:[1,1,0] op_sel_hi:[1,0,1] neg_lo:[1,0,0]")
        wr(row, d)
        return d

    c = CH + n
    wr(0, c)
    r1 = ca([1], c, E(0)); r2 = ca([2], c, E(1)); r3 = ca([3], r1, E(1))
    for k, x in enumerate((c, r1, r2, r3)): ca([4 + k], x, E(2))
    r8 = ca([8], c, E(8), 0); r9 = ca([9], r8, E(1)); ca([10, 12], r8, E(2)); ca([13], r9, E(2)); ca([14], r8, E(3))
    r16 = ca([16], c, E(9), 1); r20 = ca([20], r8, E(9), 2)
    for r, x in ((16, r16), (20, r20)): ca([r + 1], x, E(2)); ca([r + 2], x, E(3))
    for k, x in enumerate((c, r8, r16, r20)): ca([25 + 2*k], ca([24 + 2*k], x, E(10)), E(3))
    for s in range(8): p.add(f"ds_read_b128 {R(aK+64*n+4*s,4,'a')}, v{vKR} offset:{TB + 32*s}", res="tab:r")
    B = {1: E(3), 2: E(4), 4: E(5), 8: E(6), 16: E(7)}
    wr(0, ONE)
    for j in (1, 2, 4, 8, 16): wr(j, B[j])
    for j in range(1, 16):
        if j not in B:
            h = 1 << (j.bit_length() - 1)
            B[j] = cb(j, B[j - h], B[h], {3: 3, 5: 4, 6: 5, 7: 6}.get(j))
        cb(16 + j, B[j], B[16])
    for s in range(8): p.add(f"ds_read_b128 {R(aK+64*n+32+4*s,4,'a')}, v{vKR} offset:{TB + 32*s}", res="tab:r")
    for s in range(8):
        p.add(f"v_mfma_f32_32x32x16_f16 {R(KD,16)}, {R(aK+64*n+4*s,4,'a')}, {R(aK+64*n+32+4*s,4,'a')}, {'0' if s == 0 and n == 0 else R(KD,16)}", car=('k', n, s))


KUSED = [r for r in range(16) if r not in (7, 11)]


def kgen_x(p):
    for r in KUSED: p.add(f"v_mul_f32 v{KD+r}, v{vSC}, v{KD+r}")
    for q in range(4): p.add(f"ds_write_b128 v{vM16}, {R(KD+4*q,4)} offset:{KXO + 1024*q}", res="tab:w kx:w")
    p.add(f"v_mov_b32 v{ONE}, 0")
    for q in range(4): p.add(f"ds_write_addtid_b32 v{ONE} offset:{TB + 4096 + 256*q}", res="tab:w")


def kgen_tail(p):
    D, Q, O = KD, 224, 240
    for q in range(4): p.add(f"ds_read_b128 {R(Q+4*q,4)}, v{vXR+2} offset:{KXO + 1024*q}", res="kx:r ky:r")
    p.add(f"v_add_f32 v{D}, v{D}, v{vDS}")
    for r in KUSED: p.add(f"v_add_f32 v{D+r}, v{D+r}, v{Q+r}")
    cv = lambda o, x, y: p.add(f"v_cvt_pk_bf16_f32 v{o}, v{x}, v{y}")
    w = lambda t: p.add(t, res="tab:w")
    cv(O, D+3, D+2); cv(O+1, D+1, D); w(f"ds_write_b64 v{vKT}, {R(O,2)} offset:{2056 + 512}")
    cv(O+2, D+6, D+5); cv(O+3, D+4, D+4); w(f"ds_write_b64 v{vKT}, {R(O+2,2)} offset:2056")
    cv(O+4, D+10, D+10); cv(O+5, D+9, D+9); cv(O+6, D+9, D+8); cv(O+7, D+8, D+8); w(f"ds_write_b128 v{vKT+1}, {R(O+4,4)} offset:1536")
    for t in range(2):
        e0, e1, o = D+12+2*t, D+13+2*t, O+8+4*t
        p.add(f"v_cndmask_b32 v{o+1}, v{e0}, v{e1}, {S(sODD,2)}")
        cv(o, e1, e1); cv(o+1, e1, o+1); cv(o+2, e0, e0); cv(o+3, e0, e0)
        w(f"ds_write_b128 v{vKT+2}, {R(o,4)} offset:{512*(1-t)}")


def g1_reads(p, t):
    c, s = divmod(t, 4)
    o = c % 3 * 8192
    b = FR + 16 * (t & 1)
    res = f"c{c}:r f{c}:r"
    A = lambda tf: [p.add(f"ds_read_b64_tr_b16 {R(b+4*tf+2*h,2)}, v{vA+(s&2)+tf} offset:{o + RB*(s&1) + 1024*h}", res=res) for h in range(2)]
    B = lambda tl: p.add(f"ds_read_b128 {R(b+8+4*tl,4)}, v{vB+s} offset:{o + RB*tl}", res=res)
    A(0); B(0); B(1); A(1)


def w2_dma(p, k, P, **kw):
    res = f"w{k%6}:w" + (f" f{4 + k//2}:w" if k < 6 else "")
    p.add(f"s_add_u32 m0, s{sM}, {W2SLOT[k % 6]}", **kw)
    if k: p.add(f"s_add_u32 s{sW2}, s{sW2}, {32*896}", **kw)
    for i in range(4):
        p.add(f"buffer_load_dwordx4 v{vD2+i}, {S(W2,4)}, s{sW2} offen offset:{1024*i} lds", res=res, lat=P['LW'], **kw)


def w2_reads(p, k, **kw):
    for s in range(2):
        for td in range(2):
            for h in range(2):
                p.add(f"ds_read_b64_tr_b16 {R(8*(2*k+s)+4*td+2*h,2,'a')}, v{vT2+td} offset:{W2SLOT[k % 6] + (8*s+4*h)*128}", res=f"w{k%6}:r", **kw)


def u_part(p, P):
    sp = poll(p, "u", vPU, f"s{sPL}", ('g', P['UP']), ('g', P['UC']), "_u:w", post=st(3), n=2)
    p.add(f"v_cmp_ne_u32 {S(sHX,2)}, v{vTAG+1}, v{vF+1}", res="_u:r")
    d = dict(d=('g', P['UC']), lat=P['LU'], res="_u:r")
    for i in range(2): p.add(f"buffer_load_dwordx4 {R(UREG[i],4)}, v{vUL}, {S(WS,4)}, s{sUL} offen offset:{128 + 2048*i} sc1", **d)
    p.add(f"s_mov_b64 exec, 15\nbuffer_load_dwordx4 {R(UREG[2],4)}, v{vUL}, {S(WS,4)}, s{sUL} offen sc1\ns_mov_b64 exec, -1", atom=True, **d)
    T = UTMP
    for i in range(3):
        r = UREG[i]
        if i == 2:
            for k in range(4): p.add(f"v_and_b32 v{r+k}, s{sMK}, v{r+k}")
        p.add(f"v_lshlrev_b32 v{T+4*i}, 16, v{r}")
        for k in range(1, 4): p.add(f"v_alignbit_b32 v{T+4*i+k}, v{r+k}, v{r+k-1}, 16")
        if i < 2:
            p.add(f"ds_write_b128 v{vUW}, {R(r,4)} offset:{32 + 512*i}", res="us:w")
            p.add(f"ds_write_b128 v{vUW}, {R(T+4*i,4)} offset:{UP + 32 + 512*i}", res="us:w u16:a")
    for k, o in ((UREG[2], 0), (T + 8, UP)):
        p.add(f"s_mov_b64 exec, 15\nds_write_b128 v{vUW}, {R(k,4)} offset:{o}\ns_mov_b64 exec, -1", atom=True, res="us:w u16:a")
    for i in range(2): p.add(f"ds_write_b16_d16_hi v{vUW}, v{UREG[i]+3} offset:{UP + 48 + 512*i}", res="us:w u16:b")
    p.add(f"s_mov_b64 exec, 15\nds_write_b16_d16_hi v{vUW}, v{UREG[2]+3} offset:{UP + 16}\ns_mov_b64 exec, -1", atom=True, res="us:w u16:b")
    return sp


def gemm1(p, P):
    for s in range(2):
        for h in range(2):
            p.add(f"ds_read_b64_tr_b16 {R(aU+4*s+2*h,2,'a')}, v{vUT+8 + (s^h)} offset:{512*h}", res="x0:r f0:r" if not P['C2'] else "x0:r")

    def ut():
        for s in range(2):
            p.add(f"buffer_store_dwordx4 {R(aU+4*s,4,'a')}, v{vUS}, {S(WS,4)}, s{sCT if s else sU} offen sc1", res="ut:w", lat=P['LS'], d=('g', P['US']), e=P['UE'])
    p.add("s_barrier\n" + st(1), res="c0:b" + (" f0:b" if P['C2'] else ""), atom=True)
    if P['C2']: g1_dma(p, 2, P, lat=P['LD'], d=('g', 0)); p.grp.pop('f0')
    ut()
    g1_reads(p, 0)
    sp = ""
    for t in range(28):
        c, s = divmod(t, 4)
        if s < 2:
            b = aG + 4*s
            p.add(f"ds_read_b128 {R(b,4,'a')}, v{vGX+s} offset:{c % 3 * 8192}", res=f"c{c}:r f{c}:r")
            p.add(f"v_mfma_f32_16x16x32_bf16 {R(aGD,4,'a')}, {R(aGW+8*c+4*s,4,'a')}, {R(b,4,'a')}, {'0' if t == 0 else R(aGD,4,'a')}", car=('a', c, s))
        if s == 3:
            res = f"f{c}:b" + (f" c{c+1}:b" if c < 6 else "")
            if c == P['KB']: kgen_x(p); res += " kx:b"
            if c == P['UB']: res += " us:b"
            if c == P['KB'] + 1: res += " ky:b"
            p.add("s_barrier\n" + (st(7) if c == P['KB'] else ""), res=res, e=('g', 4*t - 1), d=('g', 4*t - 2), atom=True)
            if c == P['KB']: kgen_tail(p)
            if c == P['UF']: flag(p, f"s{sF}", "ut:f", n=2, e=('g', 4*t - 1), d=('g', 4*t))
            if c < 4: g1_dma(p, c + 3, P, lat=P['LD'], d=('g', 4*t + P['DD']))
            else:
                for k in (2*c - 8, 2*c - 7): w2_dma(p, k, P, d=(('g', 4*t), P['DD']))
            if c == 3: sp = u_part(p, P)
        if t < 27: g1_reads(p, t + 1)
        b = FR + 16 * (t & 1)
        for k in range(4):
            tf, tl = divmod(k, 2)
            d = R(ACC1 + 32*tf + 16*tl, 16)
            p.add(f"v_mfma_f32_32x32x16_bf16 {d}, {R(b+4*tf,4)}, {R(b+8+4*tl,4)}, {R(BIAS+16*tf,16) if t == 0 else d}", car=('g', 4*t + k))
        if t == 0: kgen_pass(p, 0); kgen_pass(p, 1)
    p.add(f"""
    v_accvgpr_read_b32 v{vGX}, a{aGD}
    v_mul_f32 v{vGX}, {LOG2E | 0x80000000}, v{vGX}
    v_exp_f32 v{vGX}, v{vGX}
    v_add_f32 v{vGX}, 1.0, v{vGX}
    v_rcp_f32 v{vGX}, v{vGX}
    """)
    p.add(f"ds_write_addtid_b32 v{vGX} offset:{GO}", res="cx:w")
    if P['KB'] == 7 or P['UB'] == 7:
        res = "us:b" if P['UB'] == 7 else ""
        if P['KB'] == 7: kgen_x(p); res += " kx:b"
        if P['KB'] == 6: res += " ky:b"
        p.add("s_barrier\n" + (st(7) if 7 == P['KB'] else ""), res=res, atom=True)
        if P['KB'] == 7: kgen_tail(p)
    return sp


def g1_epilogue(p, P):
    n = 0
    for tf in range(2):
        for tl in range(2):
            for s in range(2):
                d = ACC1 + 32*tf + 16*tl + 8*s
                kw = dict(d=(('g', 111), P['ED'] + P['ES'] * n)); n += 1
                for r in range(8): p.add(f"v_mul_f32 v{d+r}, v{d+r}, |v{d+r}|")
                for r in range(4): p.add(f"v_cvt_pk_bf16_f32 v{d+r}, v{d+2*r}, v{d+2*r+1}")
                for r in range(4): p.add(f"v_pk_max_i16 v{d+r}, v{d+r}, 0")
                p.add(f"buffer_store_dwordx4 {R(d,4)}, v{vL16}, {S(WS,4)}, s{sH1 if tl else sH0} offen offset:{(2*tf+s)*1024} {P['HSC']}\n" + (st(4) if n == 8 else ""),
                      res="hs:w", lat=P['LH'], atom=True, **kw)
    e = ('c', P['HF']) if P['HF'] >= 0 else None
    if P['HSC']:
        flag(p, f"s{sFH}", "hs:f _hf:w", extra=st(5), e=e, d=e or ('c', 0))
        return ""
    flag(p, f"s{sFH}", "hs:f _hf:w", pre=f"s_cmp_lg_u32 s{sHX+1}, {P['FS']}\ns_cbranch_scc1 Lslow\n", extra="Lfast:\n" + st(5), sc=P['FSC'], e=e, d=e or ('c', 0))
    t = "Lslow:\n"
    for n in range(8): t += f"  buffer_store_dwordx4 {R(ACC1+8*n,4)}, v{vL16}, {S(WS,4)}, s{sH1 if n & 2 else sH0} offen offset:{((n >> 1 & 2) + (n & 1))*1024} sc1\n"
    return t + f"  s_waitcnt vmcnt(0)\n  s_mov_b64 exec, 1\n  buffer_store_dword v{vTAG}, off, {S(WS,4)}, s{sFH} sc1\n  s_mov_b64 exec, -1\n  s_branch Lfast\n"


def helper(P):
    t = f"""Lhelp:
  s_cmp_ge_u32 s2, {224 + P['NH']}
  s_cbranch_scc1 Lend2
  s_lshr_b32 s{sT1}, s2, 3
  s_sub_u32 s{sT1}, s{sT1}, 28
  s_mul_i32 s{sT2}, s{sT1}, {448*896}
  v_min_u32 v2, 111, v0
  v_lshlrev_b32 v2, 7, v2
  v_min_u32 v4, 223, v0
  v_lshlrev_b32 v4, 7, v4
  s_and_b32 s{sT0}, s2, 7
  s_mul_i32 s{sT0}, s{sT0}, {112*128}
  s_add_u32 s{sT0}, s{sT0}, {FL_H}
  s_mov_b32 s{WS+2}, {WS_SIZE}
  s_mov_b32 s{WS+3}, 0x20000
  s_mov_b32 s{OUT+2}, {2048*896}
  s_mov_b32 s{OUT+3}, 0x20000
  s_mov_b32 s{W2+2}, {1792*896}
  s_mov_b32 s{W2+3}, 0x20000
  s_mov_b32 s{sCNT}, 0
  s_waitcnt lgkmcnt(0)
  s_load_dword s{sTAG}, {S(WS,2)}, 0
  s_mov_b32 s{W2}, s{P_W2}
  s_mov_b32 s{W2+1}, s{P_W2+1}
"""
    if P['HT']: t += f"""  v_lshlrev_b32 v5, 16, v0
  buffer_load_dword v6, v5, {S(WS,4)}, 0 offen offset:2048
  buffer_load_dword v7, v5, {S(OUT,4)}, 0 offen
"""
    if P['HT'] > 1: t += "  s_waitcnt vmcnt(0)\n"
    for k in range(14 if P['PW'] >= 0 else 0):
        t += f"  buffer_load_dword v{8+k}, v4, {S(W2,4)}, s{sT2} offen\n  s_add_u32 s{sT2}, s{sT2}, {32*896}\n  s_waitcnt vmcnt({P['PW']})\n"
    t += f"""  s_waitcnt vmcnt(0) lgkmcnt(0)
  s_cmp_lg_u32 s{sT1}, 0
  s_cbranch_scc1 Lend2
"""
    if P['WB'] == 2: t += f"""  v_lshrrev_b32 v3, 11, v2
  v_and_b32 v2, {15*128}, v2
  v_lshl_add_u32 v2, v3, 14, v2
  s_and_b32 s{sT0}, s2, 7
  s_lshl_b32 s{sT0}, s{sT0}, 11
  s_add_u32 s{sT0}, s{sT0}, {FL_A}
"""
    if P['WB']: t += f"""  v_cmp_gt_u32 vcc, 112, v0
  s_mul_i32 s{sTAG}, s{sTAG}, 0x9E3779B1
  s_add_u32 s{sTAG}, s{sTAG}, 0x7F4A7C15
  s_cbranch_vccz Lhb
Lhs:
  buffer_load_dword v3, v2, {S(WS,4)}, s{sT0} offen sc1
  s_add_u32 s{sCNT}, s{sCNT}, 1
  s_cmp_lt_u32 s{sCNT}, 200
  s_waitcnt vmcnt(0)
  v_cmp_ne_u32 vcc, s{sTAG}, v3
  s_cbranch_vccz Lhb
  s_cbranch_scc1 Lhs
Lhb:
  s_barrier
  v_cmp_gt_u32 vcc, 64, v0
  s_cbranch_vccz Lend2
  buffer_wbl2 sc1
  s_waitcnt vmcnt(0)
"""
    return t + "Lend2:\n  s_endpgm\n"


def conv(p, P):
    F = [192, 128]
    order = sorted(((t, d) for t in range(8) for d in range(8) if t + d < 8), key=lambda x: (max(x), x[0] + x[1], x[0]))
    seen = set()
    for r in range(4):
        b = F[r & 1]
        for i in range(8):
            o = 128 * (i & 1) + 16 * (3 - r)
            p.add(f"ds_read2_b32 {R(b+4*i,2)}, v{vU+(i>>1)} offset0:{o} offset1:{o+1}", res="us:r")
            p.add(f"ds_read2_b32 {R(b+4*i+2,2)}, v{vU+(i>>1)} offset0:{o+2} offset1:{o+3}", res="us:r")
            p.add(f"ds_read_b128 {R(b+32+4*i,4)}, v{vKf} offset:{512*(7-i) + 64*(3-r)}", res="tab:r")
        od = order if r < 3 else sorted(order, key=lambda x: (x[0] + x[1], x[0]))
        for k, (t, d) in enumerate(od):
            c = t + d
            acc = R(aC + 4*c, 4, 'a')
            p.add(f"v_mfma_f32_16x16x32_bf16 {acc}, {R(b+4*d,4)}, {R(b+32+4*t,4)}, {acc if c in seen else '0'}", car=('c', 36*r + k))
            seen.add(c)
    if P['KB'] == 7 or (P['KB'] == 6 and P['UB'] != 7): p.add("s_barrier", res="ky:b", e=('c', 40), d=('c', 40))


def conv_out(p, P):
    F = 2
    d = dict(d=('h', P['AD']))
    for c in range(8): p.add(f"ds_write_b128 v{vCW}, {R(aC+4*c,4,'a')} offset:{1024*c}", res="tab:w cx:w ky:w")
    p.add("s_barrier", res="cx:b _h:r")
    for i in range(2):
        for w in range(4): p.add(f"ds_read_b128 {R(F+16*i+4*w,4)}, v{vCR+(w>>1)} offset:{RB*(w&1) + 1024*i}", res="cx:r")
    for tl in range(2): p.add(f"ds_read_b32 v{vG+tl}, v{vG+tl} offset:{GO}", res="cx:r")
    for i in range(2):
        b = F + 16*i
        for k in (0, 1, 2, 3, 8, 9, 10, 11): p.add(f"v_add_f32 v{b+k}, v{b+k}, v{b+k+4}")
        for k in range(4): p.add(f"v_cvt_pk_bf16_f32 v{b+4+k}, v{b+k}, v{b+8+k}")
        p.add(f"buffer_store_dwordx4 {R(b+4,4)}, v{vL16}, {S(WS,4)}, s{sAS} offen offset:{1024*i} sc1", res="as:w", lat=P['LA'], **d)
    flag(p, f"s{sFA}", "as:f", e=('h', P['AF']), d=('h', P['AF']))


def slot(i):
    i %= 32
    return 192 + 4*(i - 16) if i >= 16 else 64 + 8*(i & 7) + (4 if i < 8 else 0)


def gemm2(p, P):
    ACC, AV, BS, GN = 128, 2, 10, 0
    SK, S2 = P['SK'], P['S2']
    seq = sorted(((tl, k) for tl in range(2) for k in range(28)), key=lambda x: (x[1] + SK * x[0], x[0]))
    mf = [(tl, k, td) for tl, k in seq[:56 - S2] for td in range(2)] + [(tl, k, td) for td in range(2) for tl, k in seq[56 - S2:]]
    sp = poll(p, "h", vPH, f"s{sPH}", ('c', P['HP']), ('c', P['HC']), "_h:w _hf:r", pre=st(8), post=st(9))

    def hload(i):
        tl, k = seq[i]
        s = sG1 if tl else sG0
        if k and k % 4 == 0: p.add(f"s_add_u32 s{s}, s{s}, 4096")
        p.add(f"buffer_load_dwordx4 {R(slot(i),4)}, v{vL16}, {S(WS,4)}, s{s} offen offset:{1024*(k%4)} sc1", res="_h:r", lat=P['LG'])

    def out(tl):
        A = ACC + 32*tl
        Q = slot(24) if tl == 0 else ACC
        B = BS + 8*tl
        for q in range(6): p.add(f"ds_write_b128 v{vM16}, {R(A+4*q,4)} offset:{8192*tl + 1024*q}", res=f"gx{tl}:w w{4-4*tl}:w w{5-4*tl}:w")
        for k in range(8): p.add(f"v_fmac_f32 v{B+k}, v{A+24+k}, v{GN+tl}")
        p.add("s_barrier", res=f"gx{tl}:b")
        for q in range(6): p.add(f"ds_read_b128 {R(Q+4*q,4)}, v{vXR+(q>>1)} offset:{8192*tl + 1024*q}", res=f"gx{tl}:r")
        if tl == 0:
            for j in (8, 16):
                for k in range(8): p.add(f"v_add_f32 v{Q+k}, v{Q+k}, v{Q+j+k}")
            for k in range(8): p.add(f"v_fmac_f32 v{B+k}, v{Q+k}, v{GN}")
        else:
            for j in (8, 16):
                for k in range(0, 8, 2): p.add(f"v_pk_add_f32 {R(Q+k,2)}, {R(Q+k,2)}, {R(Q+j+k,2)}")
            for k in range(0, 8, 2): p.add(f"v_pk_fma_f32 {R(B+k,2)}, {R(Q+k,2)}, {R(GN,2)}, {R(B+k,2)} op_sel:[0,1,0] op_sel_hi:[1,1,1]")
            p.add(f"s_add_u32 s{sO}, s{sO}, {32*896}")
        for k in range(4): p.add(f"v_cvt_pk_bf16_f32 v{B+k}, v{B+2*k}, v{B+2*k+1}")
        p.add(f"buffer_store_dwordx4 {R(B,4)}, v{vO}, {S(OUT,4)}, s{sO} offen", d='END')

    for k in range(14):
        w2_reads(p, k)
        if k + 6 < 14: w2_dma(p, k + 6, P, d=(('c', 0), P['W0'] + P['W1'] * k))
    for i in range(32): hload(i)
    conv_out(p, P)
    sp += poll(p, "a", vPA, f"s{sPA}", ('h', P['AP']), ('h', P['AC']), "_a:w", post=st(10))
    for i in range(4):
        if i: p.add(f"s_add_u32 s{sAL}, s{sAL}, 8192")
        for tl in range(2):
            p.add(f"buffer_load_dword v{AV+4*tl+i}, v{vA2}, {S(WS,4)}, s{sAL} offen offset:{128*tl} sc1", res="_a:r", lat=P['LU'], d=('h', P['AC']))
    U = 26
    for tl in range(2): p.add(f"v_sub_f32 v{GN+tl}, 1.0, v{vG+tl}")
    for k in range(4): p.add(f"v_lshlrev_b32 v{U+2*k}, 16, v{B2R+k}\nv_and_b32 v{U+2*k+1}, 0xffff0000, v{B2R+k}")
    for tl in range(2):
        for k in range(8): p.add(f"v_mul_f32 v{BS+8*tl+k}, v{U+k}, v{GN+tl}")
    for tl in range(2):
        for k in range(4): p.add(f"v_lshlrev_b32 v{U+2*k}, 16, v{AV+4*tl+k}\nv_and_b32 v{U+2*k+1}, 0xffff0000, v{AV+4*tl+k}")
        for k in range(8): p.add(f"v_fmac_f32 v{BS+8*tl+k}, v{U+k}, v{vG+tl}")
    for m, (tl, k, td) in enumerate(mf):
        i = seq.index((tl, k))
        acc = R(ACC + 32*tl + 16*td, 16)
        p.add(f"v_mfma_f32_32x32x16_bf16 {acc}, {R(8*k+4*td,4,'a')}, {R(slot(i),4)}, {'0' if k == 0 else acc}", car=('h', m))
        if td and i + 32 < 56: hload(i + 32)
    out(0); out(1)
    return sp


DEF = dict(NH=0, PW=3, HT=1, WB=1, FS=0, FSC='sc1', MAP=0, HSC='sc1', C2=1, TS=0, ORD='x0 w0 p0 p1 p2 p3 b g x1 w1 2 c |60', LP=2400, LC=3200, LD=500, LW=500, LU=700, LS=700, LH=600, LA=600, LG=600,
           US=0, UE=None, UF=1, UP=62, UC=76, KB=6, UB=6, K0=52, K1=84, KS=1, DD=4, ED=4, ES=3, EV=8, HF=60, HP=70, HC=100,
           AD=12, AF=40, AP=60, AC=76, SK=6, S2=3, INFL=2.0, DSLAT=112, LDSQ=48, VMQ=128, CAP32=6, CAP16=2, V0=60, W0=0, W1=16)


def build(**kw):
    P = dict(DEF); P.update(kw)
    name = NAME + "_kernel"
    global PROF, EXP
    EXP = P.get('EXP', 0)
    a = Asm()
    if PROF: a("! " + st(0))
    XS = P.get('XS')
    if XS: PROF = False
    prologue(a, P)
    p = Prog()
    order = first_loads(p, P)
    setup(p)
    kgen_pre(p, P)
    sp = gemm1(p, P)
    sp += g1_epilogue(p, P)
    conv(p, P)
    sp += gemm2(p, P)
    p.virt('END', 0)
    ins = {}
    for c in range(7):
        for s in range(2): ins.setdefault(16*c + 4*s + 5, []).append(('a', c, s))
    for n in range(2):
        for s in range(8): ins.setdefault(P['K1' if n else 'K0'] + s * P['KS'], []).append(('k', n, s))
    for m in range(112): order += [('g', m)] + ins.get(m, [])
    for k in range(P['EV']): p.virt(('e', k), 10); order.append(('e', k))
    order += [('c', m) for m in range(144)] + [('h', m) for m in range(112)] + ['END']
    stamp(p, 2, ('g', 111)); stamp(p, 6, ('k', 1, 7)); stamp(p, 15, ('c', 143)); stamp(p, 11, ('h', 111))
    log = []
    body, s = schedule(p, order, log=log, **{k: P[k] for k in ('INFL', 'DSLAT', 'LDSQ', 'VMQ', 'CAP32', 'CAP16')})
    m0 = None
    for i in body:
        if i.kind == 'salu' and ('m0', 0) in i.defs: m0 = int(i.text.split(',')[-1])
        if 'addtid' in i.op:
            h, o = i.text.split('offset:'); o = int(o) - m0
            assert 0 <= o < 65536
            i.text = f"{h}offset:{o}"
        i.raw = True
        if i.kind == 'smem': i.kind = 'label'; i.text = '  ' + i.text; i.states = 0
    if XS:
        PROF = True
        for k, c in enumerate(XS):
            i = Ins(st(k + 1).strip()); i.kind = 'label'; i.text = '  ' + i.text; i.states = 0; i.raw = True
            if isinstance(c, int): q = [x for x in body if x.kind != 'label' and x.isvm()][c]
            elif isinstance(c[0], str) and len(c[0]) > 1: q = [x for x in body if c[0] in x.text][c[1]]
            else: q = p.car[c].ins[0]
            body.insert(body.index(q) + 1, i)
    n0 = len(a.ins) + len(body)
    a.add(body)
    if PROF: a("! " + st(15 if XS else 12))
    a(f"""
    s_or_b32 s{sT0}, s2, s{sW}
    s_cbranch_scc1 Lnoep
    s_mov_b64 exec, 1
    buffer_store_dword v{vTAG}, off, {S(WS,4)}, 0 sc1
    Lnoep:
    """)
    if PROF:
        a(f"""
        s_lshl_b32 s{sT0}, s2, 2
        s_add_u32 s{sT0}, s{sT0}, s{sW}
        s_lshl_b32 s{sT0}, s{sT0}, 6
        s_add_u32 s{sT0}, s{sT0}, {STAMPS}
        s_mov_b64 exec, 1
        s_waitcnt lgkmcnt(0)
        """)
        for i in range(16): a(f"v_mov_b32 v2, s{STAMP0+2*i}\nbuffer_store_dword v2, off, {S(WS,4)}, s{sT0} offset:{4*i}")
    n1 = len(a.ins)
    fin = finalize(a.ins)
    tm = {k: (t, u, v) for k, t, u, v in log}
    ph = lambda c: sum(u for k, t, u, v in log if k[0] in c)
    print(f"instr {sum(1 for i in fin if i.kind != 'label')} added {len(fin) - n1} waits {s['waits']} stall {s['stall']} | g0 {tm[('g',0)][0]} G1 {ph('gak')} epi {ph('e')}"
          f" conv {ph('c')} G2 {ph('h')} tail {tm['END'][1]} total {s['now']}")
    if XS: print("model    ", " ".join(f"{tm.get(c, (0,))[0]/1000:6.2f}" for c in ['V0'] + XS))
    if P.get('LOG'):
        for k, t, u, v in log:
            if u > v: print(k, t, u, v)
    t = f".globl {name}\n.p2align 8\n.type {name},@function\n{name}:\n" + text_of(fin) + "Lend:\n  s_endpgm\n" + sp + (helper(P) if P['NH'] else "")
    d = f""".p2align 6
.amdhsa_kernel {name}
  .amdhsa_next_free_vgpr 512
  .amdhsa_next_free_sgpr 102
  .amdhsa_accum_offset 256
  .amdhsa_group_segment_fixed_size 0
  .amdhsa_kernarg_size 128
  .amdhsa_user_sgpr_count 2
  .amdhsa_user_sgpr_kernarg_segment_ptr 1
  .amdhsa_system_sgpr_workgroup_id_x 1
.end_amdhsa_kernel
"""
    hdr = f"; @launch grid=({224 + P['NH']},1,1) block=(256,1,1) lds={LDS}\n"
    return hdr + '.amdgcn_target "amdgcn-amd-amdhsa--gfx950"\n.text\n' + t + '.section .rodata,"a"\n' + d


if __name__ == "__main__":
    args = [x for x in sys.argv[1:] if not x.startswith("-") and "=" not in x]
    kw = {x.split("=")[0]: eval(x.split("=")[1]) for x in sys.argv[1:] if "=" in x}
    PROF = "-p" in sys.argv
    if "-c" in sys.argv: PROF = True; CLK = "s_memtime"
    open(args[0], "w").write(build(**kw))
```

```python
import sys
from dsl import Asm, finalize, text_of, Ins
from sched import Prog, schedule

NAME = "gated_mix__ssm_conv_s4d__dense_activation_squared_relu__prompt"
FL_U, FL_H, FL_A, STAMPS = 0x10000, 0x30000, 0x50000, 0x70000
UT, A2, HH, WS_SIZE = 0x100000, 0x300000, 0x500000, 0xC00000
LOG2E = 0x3fb8aa3b
LDS, RB = 163840, 40960
TB, KXO, UO, GWO, BIO, GO, UP = 24576, 29696, 33792, 38144, 39168, 39424, 1088
W2SLOT = [8192, 12288, 16384, 20480, 0, 4096]

X, W1, WS, OUT, W2 = 4, 8, 12, 16, 20
P_LA, P_AI, P_CR, P_CI, P_DT, P_DS, P_B1, P_W2, P_B2, P_GW = 24, 26, 28, 30, 32, 34, 36, 38, 40, 42
sW, sHX, sJ7, sJM, sRT, sCT, sP, sC, sCW, sM = 3, 44, 45, 46, 47, 48, 49, 50, 51, 52
sT0, sT1, sT2, sT3, sDT, sDS, sH0, sH1, sTAG, sF = 53, 54, 55, 56, 57, 58, 59, 60, 61, 62
sCNT, sW2, sFH, sPL, sU = 63, 64, 65, 66, 67
sCX = {0: sC, 1: 0, 2: 24, 3: 26, 4: 28, 5: 30, 6: 36}
sUL, sMK, sPH, sG0, sG1, sAS, sFA, sPA, sAL, sO = 32, 33, 34, 35, 38, 39, 40, 41, 42, 43
sODD = 100
STAMP0 = 68
SPIN = 1 << 16
PROF = False
EXP = 0
CLK = 's_memrealtime'

vXa, vWa, vA, vB, vGX, vU, vKf, vKR, vKP, vKT, vDS = 2, 6, 10, 14, 18, 20, 24, 25, 26, 27, 30
vUL, vUW, vPU, vUS, vPH, vF, vL16, vM16, vTAG, vD2, vT2 = 31, 32, 33, 34, 35, 36, 38, 39, 40, 42, 46
vCW, vCR, vPA, vA2, vO, vG, B2R, vXR, vSC = 48, 49, 51, 52, 53, 54, 56, 60, 63
ACC1, BIAS, FR, KD = 64, 128, 160, 128
aG, aGD, aU, aGW, aK, aC = 224, 232, 236, 40, 96, 224
UREG, UTMP = [2, 6, 144], 148


def R(b, n=1, f='v'): return f"{f}{b}" if n == 1 else f"{f}[{b}:{b+n-1}]"
def S(b, n): return f"s[{b}:{b+n-1}]"
def st(i): return f"{CLK} {S(STAMP0+2*i,2)}\n" if PROF else ""


def stamp(p, i, g):
    if PROF: p.add(st(i), e=g, d=(g[0], g[1] - 40) if isinstance(g[0], tuple) else (g, -40))


def flag(p, soff, res, extra="", pre="", n=1, sc="sc1", **kw):
    p.add(f"{pre}s_mov_b64 exec, 1\nbuffer_store_dword{'x2' if n == 2 else ''} {R(vTAG,n)}, off, {S(WS,4)}, {soff} {sc}\ns_mov_b64 exec, -1\n{extra}", res=res, atom=True, **kw)


def poll(p, name, va, soff, e0, e1, res, pre="", post="", n=1):
    ld = f"buffer_load_dword{'x2' if n == 2 else ''} {R(vF,n)}, v{va}, {S(WS,4)}, {soff} offen sc1"
    p.add(ld, e=e0, d=e0, lat=64)
    p.add(f"""
    {pre}
    v_cmp_ne_u32 vcc, s{sTAG}, v{vF}
    s_cbranch_vccnz Lspin_{name}
    Lok_{name}:
    {post}
    """, e=e1, d=e1, res=res, atom=True)
    return f"""Lspin_{name}:
  s_mov_b32 s{sCNT}, 0
Lloop_{name}:
  {ld}
  s_add_u32 s{sCNT}, s{sCNT}, 1
  s_cmp_lt_u32 s{sCNT}, {SPIN}
  s_waitcnt vmcnt(0)
  v_cmp_ne_u32 vcc, s{sTAG}, v{vF}
  s_cbranch_vccz Lok_{name}
  s_cbranch_scc1 Lloop_{name}
  s_branch Lok_{name}
"""


MAPS = [f'''s_lshr_b32 s{sRT}, s{sHX}, 1
    s_lshl_b32 s{sRT}, s{sRT}, 2
    s_add_u32 s{sRT}, s{sRT}, s{sJ7}
    s_and_b32 s{sHX}, s{sHX}, 1''', f'''s_lshr_b32 s{sRT}, s{sJ7}, 1
    s_lshl_b32 s{sHX}, s{sHX}, 1
    s_add_u32 s{sRT}, s{sRT}, s{sHX}
    s_and_b32 s{sHX}, s{sJ7}, 1''']
T0 = 64
_T = f'''
    s_min_u32 s{sCNT}, s{sPL}, 15
    s_lshl_b32 s{sCNT}, s{sCNT}, 3
    s_load_dwordx2 {S(sW2,2)}, s[0:1], s{sCNT}
    s_max_u32 s{sPL}, s{sPL}, 16
    s_sub_u32 s{sPL}, s{sPL}, 16
    s_min_u32 s{sPL}, s{sPL}, 11
    s_lshl_b32 s{sPL}, s{sPL}, 20'''
TOUCH = ["", f"s_mov_b32 s{sPL}, s{sT0}" + _T, f"s_lshl_b32 s{sPL}, s{sT0}, 2\ns_add_u32 s{sPL}, s{sPL}, s{sW}\ns_and_b32 s{sPL}, s{sPL}, 31" + _T]


def prologue(a, P):
    t = T0
    a(f"""
    s_load_dwordx8 {S(P_LA,8)}, s[0:1], 8
    s_load_dwordx2 {S(X,2)}, s[0:1], 0
    s_load_dwordx2 {S(W1,2)}, s[0:1], 64
    s_load_dwordx8 {S(P_B1,8)}, s[0:1], 72
    s_load_dwordx2 {S(WS,2)}, s[0:1], 120
    s_load_dwordx4 {S(P_DT,4)}, s[0:1], 40
    s_load_dwordx2 {S(OUT,2)}, s[0:1], 104
    s_cmp_ge_u32 s2, 224
    s_cbranch_scc1 {'Lhelp' if P['NH'] else 'Lend'}
    v_lshrrev_b32 v2, 6, v0
    v_and_b32 v1, 63, v0
    s_and_b32 s{sHX}, s2, 7
    s_lshr_b32 s{sT0}, s2, 3
    v_readfirstlane_b32 s{sW}, v2
    {TOUCH[P['TS']]}
    s_mul_i32 s{sJ7}, s{sT0}, 37
    s_lshr_b32 s{sJ7}, s{sJ7}, 8
    s_mul_i32 s{sJM}, s{sJ7}, 7
    s_sub_u32 s{sJM}, s{sT0}, s{sJM}
    s_lshl_b32 s{sP}, s{sJM}, 3
    s_add_u32 s{sP}, s{sP}, s{sHX}
    s_lshl_b32 s{sP}, s{sP}, 2
    s_add_u32 s{sP}, s{sP}, s{sJ7}
    {MAPS[P['MAP']]}
    s_mul_i32 s{sCT}, s{sHX}, 7
    s_add_u32 s{sCT}, s{sCT}, s{sJM}
    s_lshl_b32 s{sC}, s{sJ7}, 1
    s_add_u32 s{sC}, s{sC}, s{sJM}
    s_sub_u32 s{sT0}, s{sC}, 7
    s_min_u32 s{sC}, s{sC}, s{sT0}
    s_lshl_b32 s{sU}, s{sC}, 1
    s_add_u32 s{sU}, s{sU}, s{sHX}
    s_lshl_b32 s{sC}, s{sC}, 7
    s_mul_i32 s{sCW}, s{sC}, 1792
    s_lshl_b32 s{sT0}, s{sRT}, 2
    s_add_u32 s{sF}, s{sT0}, s{sW}
    s_mul_i32 s{sT0}, s{sF}, {32*896}
    s_mul_i32 s{sT1}, s{sW}, {16*3584}
    s_lshl_b32 s{sT2}, s{sCT}, 8
    s_add_u32 s{sT1}, s{sT1}, s{sT2}
    s_mul_i32 s{sM}, s{sW}, {RB}
    s_lshl_b32 s{sT3}, s{sP}, 2
    s_add_u32 s{sH0}, s{sT3}, s{sW}
    s_lshl_b32 s{sH0}, s{sH0}, 8
    v_lshrrev_b32 v{t}, 3, v1
    v_lshrrev_b32 v{t+1}, 4, v1
    v_mul_u32_u24 v{vD2}, 896, v{t}
    v_and_b32 v{t+2}, 7, v1
    v_xor_b32 v{t+2}, v{t+2}, v{t+1}
    v_lshl_add_u32 v{t}, v{t+2}, 4, v{vD2}
    v_add_u32 v{vXa}, s{sT0}, v{t}
    v_xor_b32 v{t}, 64, v{vXa}
    v_add_u32 v{vXa+1}, 6144, v{t}
    v_add_u32 v{vXa+2}, 12288, v{vXa}
    v_add_u32 v{vXa+3}, {6144+12288}, v{t}
    v_mul_u32_u24 v{t}, 3584, v{t+1}
    v_lshlrev_b32 v{t+1}, 2, v{t+1}
    v_xor_b32 v{t+1}, v{t+1}, v1
    v_and_b32 v{t+1}, 15, v{t+1}
    v_lshl_add_u32 v{t}, v{t+1}, 4, v{t}
    v_add_u32 v{vWa}, s{sT1}, v{t}
    v_add_u32 v{vWa+1}, 13312, v{vWa}
    v_add_u32 v{vWa+2}, {2*13312}, v{vWa}
    v_add_u32 v{vWa+3}, {3*13312}, v{vWa}
    v_lshl_add_u32 v{t+3}, v1, 2, s{sH0}
    v_lshl_add_u32 v{t+4}, v1, 2, s{sT2}
    v_lshlrev_b32 v{vL16}, 4, v1
    v_add_u32 v{t+5}, s{sC}, v{vL16}
    v_subrev_u32 v{t+6}, 896, v{t+5}
    v_min_u32 v{t+5}, v{t+5}, v{t+6}
    s_lshl_b32 s{sT0}, s{sJM}, 2
    s_add_u32 s{sT0}, s{sT0}, s{sW}
    s_lshl_b32 s{sT0}, s{sT0}, 5
    v_lshrrev_b32 v{t+7}, 5, v1
    v_lshl_add_u32 v{vO}, v{t+7}, 4, s{sT0}
    s_mov_b32 s{X+2}, {2048*896}
    s_mov_b32 s{X+3}, 0x20000
    s_mov_b32 s{W1+2}, {448*3584}
    s_mov_b32 s{W1+3}, 0x20000
    @lgkm0
    """)
    if PROF: a("! " + st(13))
    if P['TS']: a(f"!  s_load_dword s{sCNT}, {S(sW2,2)}, s{sPL}")
    a(f"""
    !  s_load_dword s{sDT}, {S(P_DT,2)}, s{sT3}
    !  s_load_dword s{sDS}, {S(P_DS,2)}, s{sT3}
    !  s_load_dword s{sTAG}, {S(WS,2)}, 0
    """)


KI = 252


def g1_dma(p, c, P, **kw):
    slot = c % 3
    res = f"c{c}:w" + (f" f{c-3}:w" if c >= 3 else "") + (" f0:w" if c == 2 and P['C2'] else "")
    p.add(f"s_add_u32 m0, s{sM}, {slot*8192}", **kw)
    for i in range(4):
        p.add(f"buffer_load_dwordx4 v{vXa+i}, {S(X,4)}, s{sCX[c]} offen offset:{1024*i} lds", res=res + (" x0:w" if c == 0 else ""), **kw)
    p.add(f"s_add_u32 m0, s{sM}, {slot*8192 + 4096}", **kw)
    for i in range(4):
        p.add(f"buffer_load_dwordx4 v{vWa+i}, {S(W1,4)}, s{sCX[c]+1} offen offset:{1024*i} lds", res=res, **kw)


def first_loads(p, P):
    t = T0
    for c in range(1, 7):
        q = lambda: (p.add(f"s_add_u32 s{sCX[c]}, s{sCX[c-1]}, 128\ns_cmp_eq_u32 s{sCX[c]}, 896\ns_cselect_b32 s{sCX[c]}, 0, s{sCX[c]}", atom=True),
                     p.add(f"s_mul_i32 s{sCX[c]+1}, s{sCX[c]}, 1792"))
        if c == 1: q()
    V = ['V0']; m0 = [None]; need = "_pa:w"

    def ld(text, m, res, lat):
        d = dict(e=V[-1], d=(V[-1], -1))
        if m is not None and m != m0[0]: p.add(f"s_add_u32 m0, s{sM}, {m}", res="_m0:w" if m0[0] is None else "", **d); m0[0] = m
        p.add(text, lat=lat, res=res + " _o:!", **d)

    late = []
    for k in P['ORD'].split():
        if k[0] == '|': p.virt(V[-1], int(k[1:])); V.append(f"V{len(V)}")
        elif k[0] == 'p': ld(f"global_load_dword v{KI+int(k[1])}, v{t+3}, {S(P_LA+2*int(k[1]),2)}", None, "", P['LP'])
        elif k == 'b': ld(f"global_load_lds_dword v{t+4}, {S(P_B1,2)}", BIO, "bias:w", P['LP'])
        elif k == 'g': ld(f"global_load_lds_dwordx4 v{t+5}, {S(P_GW,2)}", GWO, "gw:w", P['LP'])
        elif k == '2': ld(f"global_load_dwordx4 {R(B2R,4)}, v{vO}, {S(P_B2,2)}", None, "", P['LP'])
        elif k == 'c':
            for c in range(2, 7):
                p.add(f"s_add_u32 s{sCX[c]}, s{sCX[c-1]}, 128\ns_cmp_eq_u32 s{sCX[c]}, 896\ns_cselect_b32 s{sCX[c]}, 0, s{sCX[c]}", atom=True)
                p.add(f"s_mul_i32 s{sCX[c]+1}, s{sCX[c]}, 1792")
        elif k[0] == 't':
            base, sh, n = {'W': (W1, 15, 49), 'X': (X, 15, 56), '2': (P_W2, 15, 49), 'O': (OUT, 15, 56), 'S': (WS, 18, 48)}[k[1]]
            if len(k) > 2: n = (n - 1 >> int(k[2])) + 1; sh += int(k[2])
            r = 236 + len(late); late.append(r)
            p.add(f"v_min_u32 v{r}, {n-1}, v1\nv_lshlrev_b32 v{r}, {sh}, v{r}", d=('V0', -1))
            ld(f"global_load_dword v{r}, v{r}, {S(base,2)}", None, "", P['LP'])
        else:
            c = int(k[1])
            for i in ([int(k[2])] if len(k) > 2 else range(4)):
                res = f"c{c}:w"
                lat = P['LC'] if c == 0 else P['LD']
                if k[0] == 'x': ld(f"buffer_load_dwordx4 v{vXa+i}, {S(X,4)}, s{sCX[c]} offen offset:{1024*i} lds", c*8192, res + (" x0:w" if c == 0 else ""), lat)
                else: ld(f"buffer_load_dwordx4 v{vWa+i}, {S(W1,4)}, s{sCX[c]+1} offen offset:{1024*i} lds", c*8192 + 4096, res, lat)
    if PROF: p.add(st(14), res="_o:!", d=V[-1])
    p.virt(V[-1], 0)
    return V


vUT, vFU, vGW = 80, 82, 83


def setup(p):
    t = T0 + 8
    hi, q4, b0, b4, b1, b3, l31, l15, g4, x, y = range(t, t + 11)
    hi = T0 + 7
    p.add(f"""
    s_lshr_b32 s{sT0}, s{sW}, 1
    s_and_b32 s{sT1}, s{sW}, 1
    v_bfe_u32 v{q4}, v1, 2, 2
    v_and_b32 v{b0}, 1, v1
    v_and_b32 v{b4}, 16, v1
    v_and_b32 v{b1}, 2, v1
    v_and_b32 v{b3}, 8, v1
    v_and_b32 v{x}, 3, v1
    v_lshl_add_u32 v{x}, v{x}, 3, v{q4}
    v_lshlrev_b32 v{x}, 7, v{x}
    v_xor_b32 v{y}, s{sHX}, v{b0}
    v_lshl_add_u32 v{x}, v{y}, 6, v{x}
    v_lshrrev_b32 v{y}, 3, v{b3}
    v_xor_b32 v{y}, v{y}, v{hi}
    v_lshl_add_u32 v{x}, v{y}, 4, v{x}
    v_lshrrev_b32 v{y}, 1, v{b4}
    v_add3_u32 v{vUT+8}, v{x}, v{y}, s{sM}
    v_xor_b32 v{vUT+9}, 32, v{vUT+8}
    v_lshl_add_u32 v{x}, v{hi}, 3, v{q4}
    v_lshlrev_b32 v{x}, 8, v{x}
    s_lshl_b32 s{sT2}, s{sT0}, 1
    v_xor_b32 v{y}, s{sT2}, v{q4}
    v_lshl_add_u32 v{x}, v{y}, 6, v{x}
    v_lshl_add_u32 v{x}, v{b0}, 5, v{x}
    v_add_u32 v{x}, v{b4}, v{x}
    v_lshl_add_u32 v{x}, v{b1}, 2, v{x}
    v_add_u32 v{vA}, 4096, v{x}
    v_xor_b32 v{vA+1}, 64, v{vA}
    v_add_u32 v{vA+2}, {2*RB}, v{vA}
    v_add_u32 v{vA+3}, {2*RB}, v{vA+1}
    v_and_b32 v{l31}, 31, v1
    v_and_b32 v{l15}, 15, v1
    v_lshrrev_b32 v{g4}, 4, v1
    v_bfe_u32 v{y}, v1, 1, 3
    v_xor_b32 v{x}, v{y}, v{hi}
    v_lshlrev_b32 v{x}, 4, v{x}
    v_lshl_add_u32 v{x}, v{l31}, 7, v{x}
    s_mul_i32 s{sT2}, s{sT1}, {2*RB}
    v_add_u32 v{vB}, s{sT2}, v{x}
    v_xor_b32 v{vB+1}, 32, v{vB}
    v_xor_b32 v{vB+2}, 64, v{vB}
    v_xor_b32 v{vB+3}, 96, v{vB}
    v_xor_b32 v{x}, v{y}, v{g4}
    v_lshlrev_b32 v{x}, 4, v{x}
    v_lshl_add_u32 v{x}, v{l15}, 7, v{x}
    s_lshl_b32 s{sT2}, s{sHX}, 1
    s_add_u32 s{sT2}, s{sT2}, s{sT0}
    s_mul_i32 s{sT2}, s{sT2}, {RB}
    s_lshl_b32 s{sT3}, s{sT1}, 11
    s_add_u32 s{sT2}, s{sT2}, s{sT3}
    v_add_u32 v{vGX}, s{sT2}, v{x}
    v_xor_b32 v{vGX+1}, 64, v{vGX}
    v_lshlrev_b32 v{y}, 2, v{y}
    v_lshl_add_u32 v{y}, v{g4}, 4, v{y}
    v_mul_u32_u24 v{x}, {UP}, v{b0}
    v_sub_u32 v{y}, v{y}, v{x}
    s_mul_i32 s{sT2}, s{sT0}, {2*UP}
    s_lshl_b32 s{sT3}, s{sT1}, 8
    s_sub_u32 s{sT2}, s{sT2}, s{sT3}
    s_add_u32 s{sT2}, s{sT2}, {UO + UP + 260}
    v_add_u32 v{vU}, s{sT2}, v{y}
    v_add_u32 v{vU+1}, {RB}, v{vU}
    v_add_u32 v{vU+2}, {2*RB}, v{vU}
    v_add_u32 v{vU+3}, {3*RB}, v{vU}
    s_sub_u32 s{sT2}, s{sM}, s{sT3}
    s_add_u32 s{sT2}, s{sT2}, {TB + 4512 - 3584 - 192}
    v_lshlrev_b32 v{x}, 5, v{l15}
    v_lshlrev_b32 v{y}, 4, v{g4}
    v_sub_u32 v{x}, v{y}, v{x}
    v_add_u32 v{vKf}, s{sT2}, v{x}
    v_add_u32 v{vGW+8}, s{sM}, v{y}
    s_lshl_b32 s{sT2}, s{sT0}, 7
    s_add_u32 s{sT2}, s{sT2}, s{sM}
    v_lshl_add_u32 v{vFU+8}, v{hi}, 5, s{sT2}
    v_lshlrev_b32 v{x}, 4, v{l15}
    v_lshl_add_u32 v{vUS}, v{g4}, 14, v{x}
    v_mul_u32_u24 v{x}, 272, v{l31}
    v_lshl_add_u32 v{x}, v{hi}, 4, v{x}
    v_add_u32 v{vKR}, s{sM}, v{x}
    v_lshl_add_u32 v{x}, v{hi}, 4, v{q4}
    v_lshlrev_b32 v{x}, 7, v{x}
    v_lshl_add_u32 v{x}, v{b0}, 4, v{x}
    v_lshl_add_u32 v{x}, v{b4}, 1, v{x}
    v_lshl_add_u32 v{x}, v{b1}, 2, v{x}
    v_lshl_add_u32 v{x}, v{b3}, 3, v{x}
    s_xor_b32 s{sT2}, s{sW}, 3
    s_lshl_b32 s{sT3}, s{sT2}, 5
    v_xor_b32 v{x}, s{sT3}, v{x}
    v_add_u32 v{vT2}, s{sM}, v{x}
    v_xor_b32 v{vT2+1}, 64, v{vT2}
    s_mul_i32 s{sT3}, s{sT2}, {RB}
    v_add_u32 v{vXR}, s{sT3}, v{vL16}
    s_xor_b32 s{sT3}, s{sW}, 2
    s_mul_i32 s{sT3}, s{sT3}, {RB}
    v_add_u32 v{vXR+1}, s{sT3}, v{vL16}
    s_xor_b32 s{sT3}, s{sW}, 1
    s_mul_i32 s{sT3}, s{sT3}, {RB}
    v_add_u32 v{vXR+2}, s{sT3}, v{vL16}
    v_add_u32 v{vM16}, s{sM}, v{vL16}
    v_lshrrev_b32 v{x}, 2, v1
    v_and_b32 v{x}, 4, v{x}
    v_xor_b32 v{x}, v{x}, v1
    v_and_b32 v{x}, 7, v{x}
    v_lshl_add_u32 v{vD2}, v{x}, 4, v{vD2}
    v_add_u32 v{vD2+1}, 6144, v{vD2}
    v_add_u32 v{vD2+2}, 12288, v{vD2}
    v_add_u32 v{vD2+3}, 18432, v{vD2}
    s_mul_i32 s{sW2}, s{sW}, {448*896}
    s_lshl_b32 s{sT2}, s{sJM}, 7
    s_add_u32 s{sW2}, s{sW2}, s{sT2}
    v_lshrrev_b32 v{x}, 1, v1
    v_lshlrev_b32 v{vUL}, 6, v{x}
    v_lshl_add_u32 v{vUL}, v{b0}, 4, v{vUL}
    v_mul_u32_u24 v{y}, {2*UP}, v{b0}
    v_lshl_add_u32 v{x}, v{x}, 4, v{y}
    s_add_u32 s{sT2}, s{sM}, {UO}
    v_add_u32 v{vUW}, s{sT2}, v{x}
    s_lshl_b32 s{sT2}, s{sW}, 4
    v_min_u32 v{x}, 16, v1
    v_add_u32 v{x}, s{sT2}, v{x}
    v_max_u32 v{x}, 1, v{x}
    s_lshr_b32 s{sT2}, s{sP}, 4
    s_lshl_b32 s{sT2}, s{sT2}, 13
    v_lshl_add_u32 v{x}, v{x}, 7, s{sT2}
    v_min_u32 v{y}, 13, v{l31}
    s_lshl_b32 s{sT2}, s{sF}, 7
    s_add_u32 s{sT2}, s{sT2}, 128
    v_lshl_add_u32 v{y}, v{y}, 13, s{sT2}
    v_sub_u32 v{y}, v{y}, v{x}
    v_mad_i32_i24 v{vPU}, v{y}, v{hi}, v{x}
    s_getreg_b32 s{sT2}, hwreg(HW_REG_XCC_ID, 0, 16)
    v_mov_b32 v{vTAG+1}, s{sT2}
    v_lshlrev_b32 v{x}, 4, v{l31}
    s_add_u32 s{sT2}, s{sM}, {TB + 1520}
    v_sub_u32 v{x}, s{sT2}, v{x}
    v_lshlrev_b32 v{y}, 3, v{hi}
    v_sub_u32 v{vKT}, v{x}, v{y}
    v_lshlrev_b32 v{y}, 9, v{hi}
    v_sub_u32 v{vKT+1}, v{x}, v{y}
    v_sub_u32 v{vKT+2}, v{vKT+1}, v{y}
    v_lshrrev_b32 v{x}, 4, v{l31}
    v_mul_u32_u24 v{x}, {RB}, v{x}
    v_lshl_add_u32 v{vG}, v{l15}, 2, v{x}
    v_add_u32 v{vG+1}, {2*RB}, v{vG}
    v_min_u32 v{x}, 6, v1
    v_lshlrev_b32 v{vPH}, 7, v{x}
    v_lshl_add_u32 v{x}, v{l15}, 2, v{g4}
    v_xor_b32 v{x}, v{x}, v{q4}
    s_add_u32 s{sT2}, s{sM}, {TB}
    v_lshl_add_u32 v{vCW}, v{x}, 4, s{sT2}
    v_xor_b32 v{x}, v{g4}, v1
    s_lshl_b32 s{sT2}, s{sW}, 11
    s_add_u32 s{sT2}, s{sT2}, {TB}
    v_lshl_add_u32 v{vCR}, v{x}, 4, s{sT2}
    v_add_u32 v{vCR+1}, {2*RB}, v{vCR}
    v_and_b32 v{x}, 7, v1
    v_lshlrev_b32 v{vPA}, 9, v{x}
    v_mul_u32_u24 v{x}, 896, v{l31}
    v_add_u32 v{vO}, v{vO}, v{x}
    v_lshlrev_b32 v{x}, 2, v{l31}
    v_lshl_add_u32 v{vA2}, v{hi}, 15, v{x}
    s_mov_b32 s{WS+2}, {WS_SIZE}
    s_mov_b32 s{WS+3}, 0x20000
    s_mov_b32 s{OUT+2}, {2048*896}
    s_mov_b32 s{OUT+3}, 0x20000
    s_mov_b32 s{W2}, s{P_W2}
    s_mov_b32 s{W2+1}, s{P_W2+1}
    s_mov_b32 s{W2+2}, {1792*896}
    s_mov_b32 s{W2+3}, 0x20000
    s_mov_b32 s{sODD}, 0xaaaaaaaa
    s_mov_b32 s{sODD+1}, 0xaaaaaaaa
    s_lshl_b32 s{sH0}, s{sRT}, 1
    s_add_u32 s{sRT}, s{sH0}, s{sHX}
    s_add_u32 s{sH0}, s{sH0}, s{sT1}
    s_mul_i32 s{sH0}, s{sH0}, 28
    s_lshl_b32 s{sT2}, s{sCT}, 1
    s_add_u32 s{sT2}, s{sT2}, s{sT0}
    s_add_u32 s{sFH}, s{sH0}, s{sT2}
    s_add_u32 s{sH0}, s{sH0}, s{sFH}
    s_lshl_b32 s{sFH}, s{sFH}, 7
    s_add_u32 s{sFH}, s{sFH}, {FL_H}
    s_lshl_b32 s{sH0}, s{sH0}, 12
    s_add_u32 s{sH0}, s{sH0}, {HH}
    s_add_u32 s{sH1}, s{sH0}, {112*1024}
    s_lshl_b32 s{sT2}, s{sU}, 6
    s_add_u32 s{sT2}, s{sT2}, s{sF}
    s_lshl_b32 s{sU}, s{sU}, 9
    s_add_u32 s{sU}, s{sU}, s{sF}
    s_lshl_b32 s{sU}, s{sU}, 8
    s_add_u32 s{sU}, s{sU}, {UT}
    s_add_u32 s{sCT}, s{sU}, 65536
    s_lshl_b32 s{sF}, s{sT2}, 7
    s_add_u32 s{sF}, s{sF}, {FL_U}
    s_mov_b32 s{sPL}, {FL_U - 128}
    s_lshl_b32 s{sFA}, s{sP}, 2
    s_add_u32 s{sFA}, s{sFA}, s{sW}
    s_lshl_b32 s{sAS}, s{sFA}, 11
    s_add_u32 s{sAS}, s{sAS}, {A2}
    s_lshl_b32 s{sFA}, s{sFA}, 7
    s_add_u32 s{sFA}, s{sFA}, {FL_A}
    s_lshl_b32 s{sT0}, s{sJM}, 2
    s_add_u32 s{sT0}, s{sT0}, s{sW}
    s_lshl_b32 s{sT2}, s{sT0}, 5
    s_lshr_b32 s{sT1}, s{sRT}, 3
    s_add_u32 s{sPA}, s{sT2}, s{sT1}
    s_lshl_b32 s{sPA}, s{sPA}, 7
    s_add_u32 s{sPA}, s{sPA}, {FL_A}
    s_mul_i32 s{sO}, s{sRT}, {64*896}
    s_lshl_b32 s{sT0}, s{sT0}, 16
    s_lshl_b32 s{sT1}, s{sRT}, 8
    s_add_u32 s{sAL}, s{sT0}, s{sT1}
    s_add_u32 s{sAL}, s{sAL}, {A2}
    """, d='V0')
    p.add("s_waitcnt lgkmcnt(0)", res="_sm:w", d='V1', e='V1')
    p.add(f"""
    s_lshr_b32 s{sUL}, s{sP}, 1
    s_lshl_b32 s{sUL}, s{sUL}, 2
    s_add_u32 s{sUL}, s{sUL}, s{sW}
    s_lshl_b32 s{sUL}, s{sUL}, 7
    s_and_b32 s{sT2}, s{sP}, 1
    s_add_u32 s{sUL}, s{sUL}, s{sT2}
    s_lshl_b32 s{sUL}, s{sUL}, 5
    s_add_u32 s{sUL}, s{sUL}, {UT - 128}
    s_mul_i32 s{sPH}, s{sRT}, 28
    s_mul_i32 s{sT1}, s{sW}, 7
    s_add_u32 s{sT1}, s{sT1}, s{sPH}
    s_add_u32 s{sG0}, s{sT1}, s{sPH}
    s_lshl_b32 s{sG0}, s{sG0}, 12
    s_add_u32 s{sG0}, s{sG0}, {HH}
    s_add_u32 s{sG1}, s{sG0}, {112*1024}
    s_lshl_b32 s{sPH}, s{sT1}, 7
    s_add_u32 s{sPH}, s{sPH}, {FL_H}
    s_lshr_b32 s{sT0}, s{sW}, 1
    s_lshl_b32 s{sT0}, s{sT0}, 4
    s_lshr_b32 s{sDT}, s{sDT}, s{sT0}
    s_lshl_b32 s{sDT}, s{sDT}, 16
    s_lshr_b32 s{sDS}, s{sDS}, s{sT0}
    s_lshl_b32 s{sDS}, s{sDS}, 16
    s_mul_i32 s{sTAG}, s{sTAG}, 0x9E3779B1
    s_add_u32 s{sTAG}, s{sTAG}, 0x7F4A7C15
    v_mov_b32 v{vTAG}, s{sTAG}
    v_mov_b32 v{vDS}, 0
    v_writelane_b32 v{vDS}, s{sDS}, 0
    """, res="_sm:r", d='V0')
    p.add(f"s_cmp_lg_u32 s{sW}, 0\ns_cselect_b32 s{sMK}, -1, 0", res="_sm:r", atom=True, d='V0')
    for k, o in enumerate((0, 16, 64, 80)): p.add(f"ds_read_b128 {R(FR+16+4*k,4)}, v{vFU+8} offset:{BIO + o}", res="bias:r _sm:r")
    for k in range(16): p.add(f"v_lshlrev_b32 v{BIAS+2*k}, 16, v{FR+16+k}\nv_and_b32 v{BIAS+2*k+1}, 0xffff0000, v{FR+16+k}")
    for k in range(14): p.add(f"ds_read_b128 {R(aGW+4*k,4,'a')}, v{vGW+8} offset:{GWO + 64*k}", res="gw:r _sm:r")


EH, CH, ONE, KEEP, ROT, NROT = 192, 214, 216, 217, 224, 12


def kgen_pre(p, P):
    DT, ER, ZI, TM, E, MX, CC = 96, 98, 100, 102, 108, 116, 118
    p.add(f"""
    v_mov_b32 v{DT}, {LOG2E}
    v_mul_f32 v{DT}, s{sDT}, v{DT}
    v_exp_f32 v{DT}, v{DT}
    v_mov_b32 v{ONE}, 0x3c00
    v_cvt_pk_bf16_f32 v{DT}, v{DT}, v{DT}
    v_lshlrev_b32 v{DT}, 16, v{DT}
    v_lshlrev_b32 v{ER}, 16, v{KI}
    v_and_b32 v{ER+1}, 0xffff0000, v{KI}
    v_mul_f32 v{ER}, {LOG2E}, v{ER}
    v_mul_f32 v{ER+1}, {LOG2E}, v{ER+1}
    v_exp_f32 v{ER}, v{ER}
    v_exp_f32 v{ER+1}, v{ER+1}
    v_lshlrev_b32 v{ZI}, 16, v{KI+1}
    v_and_b32 v{ZI+1}, 0xffff0000, v{KI+1}
    v_cvt_pk_bf16_f32 v{ER+1}, v{ER}, v{ER+1}
    v_mul_f32 v{ZI}, v{ZI}, v{DT}
    v_mul_f32 v{ZI+1}, v{ZI+1}, v{DT}
    v_lshlrev_b32 v{ER}, 16, v{ER+1}
    v_and_b32 v{ER+1}, 0xffff0000, v{ER+1}
    v_mul_f32 v{ZI}, 0.15915494, v{ZI}
    v_mul_f32 v{ZI+1}, 0.15915494, v{ZI+1}
    v_mul_f32 v{ER}, v{ER}, v{DT}
    v_mul_f32 v{ER+1}, v{ER+1}, v{DT}
    v_mul_f32 v{ER}, {LOG2E | 0x80000000}, v{ER}
    v_mul_f32 v{ER+1}, {LOG2E | 0x80000000}, v{ER+1}
    v_lshlrev_b32 v{CC}, 16, v{KI+2}
    v_lshlrev_b32 v{CC+1}, 16, v{KI+3}
    v_and_b32 v{CC+2}, 0xffff0000, v{KI+2}
    v_and_b32 v{CC+3}, 0xffff0000, v{KI+3}
    v_max3_f32 v{MX}, |v{CC}|, |v{CC+1}|, |v{CC+2}|
    v_max_f32 v{MX}, v{MX}, |v{CC+3}|
    v_max_u32_dpp v{MX}, v{MX}, v{MX} row_shr:1 row_mask:0xf bank_mask:0xf
    v_max_u32_dpp v{MX}, v{MX}, v{MX} row_shr:2 row_mask:0xf bank_mask:0xf
    v_max_u32_dpp v{MX}, v{MX}, v{MX} row_shr:4 row_mask:0xf bank_mask:0xf
    v_max_u32_dpp v{MX}, v{MX}, v{MX} row_shr:8 row_mask:0xf bank_mask:0xf
    v_max_u32_dpp v{MX}, v{MX}, v{MX} row_bcast:15 row_mask:0xa bank_mask:0xf
    v_max_u32_dpp v{MX}, v{MX}, v{MX} row_bcast:31 row_mask:0xc bank_mask:0xf
    v_readlane_b32 s{sT0}, v{MX}, 63
    s_lshr_b32 s{sT0}, s{sT0}, 23
    s_max_u32 s{sT0}, s{sT0}, 14
    s_sub_u32 s{sT1}, 267, s{sT0}
    s_lshl_b32 s{sT1}, s{sT1}, 23
    s_sub_u32 s{sT0}, s{sT0}, 12
    s_lshl_b32 s{sT0}, s{sT0}, 23
    v_mul_f32 v{vSC}, s{sT0}, v{DT}
    """)
    for k in range(4): p.add(f"v_mul_f32 v{CC+k}, s{sT1}, v{CC+k}")
    for n in range(2): p.add(f"v_cvt_pk_f16_f32 v{CH+n}, v{CC+2*n}, -v{CC+2*n+1}")
    for n in range(2):
        for h in range(2):
            e = E + 4*n + 2*h; tm = TM + (2*n + h) % 3 * 2
            if h: p.add(f"v_mul_f32 v{tm}, 0x42000000, v{ER+n}\nv_mul_f32 v{tm+1}, 0x42000000, v{ZI+n}\nv_exp_f32 v{tm}, v{tm}\nv_fract_f32 v{tm+1}, v{tm+1}")
            else: p.add(f"v_exp_f32 v{tm}, v{ER+n}\nv_fract_f32 v{tm+1}, v{ZI+n}")
            p.add(f"v_cos_f32 v{e}, v{tm+1}\nv_sin_f32 v{e+1}, v{tm+1}\nv_mul_f32 v{e}, v{e}, v{tm}\nv_mul_f32 v{e+1}, v{e+1}, v{tm}")
    for k in range(6):
        for n in range(2):
            for h in range(2):
                if k == 5 and not h: continue
                e = E + 4*n + 2*h; tm = TM + (2*n + h) % 3 * 2
                p.add(f"v_cvt_pk_f16_f32 v{EH + 11*n + 5*h + k}, v{e}, v{e+1}")
                if k < 4 + h:
                    p.add(f"v_pk_mul_f32 {R(tm,2)}, {R(e,2)}, {R(e,2)} op_sel:[0,0] op_sel_hi:[0,1]")
                    p.add(f"v_pk_fma_f32 {R(e,2)}, {R(e,2)}, {R(e,2)}, {R(tm,2)} op_sel:[1,1,0] op_sel_hi:[1,0,1] neg_lo:[1,0,0]")


def kgen_pass(p, n):
    E = lambda k: EH + 11*n + k
    rot = [0]

    def dst(keep):
        if keep is not None: return KEEP + keep
        rot[0] += 1
        return ROT + rot[0] % NROT

    def wr(row, r):
        if not EXP: p.add(f"ds_write_addtid_b32 v{r} offset:{TB + 272*row}", res="tab:w _m0:r")

    def ca(rows, x, y, keep=None):
        d = dst(keep)
        if EXP > 1: return d
        p.add(f"v_pk_mul_f16 v{d}, v{x}, v{y} op_sel:[0,0] op_sel_hi:[1,0]")
        p.add(f"v_pk_fma_f16 v{d}, v{x}, v{y}, v{d} op_sel:[1,1,0] op_sel_hi:[0,1,1] neg_hi:[1,0,0]")
        for r in rows: wr(r, d)
        return d

    def cb(row, x, y, keep=None):
        d = dst(keep)
        if EXP > 1: return d
        p.add(f"v_pk_mul_f16 v{d}, v{x}, v{y} op_sel:[0,0] op_sel_hi:[0,1]")
        p.add(f"v_pk_fma_f16 v{d}, v{x}, v{y}, v{d} op_sel:[1,1,0] op_sel_hi:[1,0,1] neg_lo:[1,0,0]")
        wr(row, d)
        return d

    c = CH + n
    wr(0, c)
    r1 = ca([1], c, E(0)); r2 = ca([2], c, E(1)); r3 = ca([3], r1, E(1))
    for k, x in enumerate((c, r1, r2, r3)): ca([4 + k], x, E(2))
    r8 = ca([8], c, E(8), 0); r9 = ca([9], r8, E(1)); ca([10, 12], r8, E(2)); ca([13], r9, E(2)); ca([14], r8, E(3))
    r16 = ca([16], c, E(9), 1); r20 = ca([20], r8, E(9), 2)
    for r, x in ((16, r16), (20, r20)): ca([r + 1], x, E(2)); ca([r + 2], x, E(3))
    for k, x in enumerate((c, r8, r16, r20)): ca([25 + 2*k], ca([24 + 2*k], x, E(10)), E(3))
    for s in range(8): p.add(f"ds_read_b128 {R(aK+64*n+4*s,4,'a')}, v{vKR} offset:{TB + 32*s}", res="tab:r")
    B = {1: E(3), 2: E(4), 4: E(5), 8: E(6), 16: E(7)}
    wr(0, ONE)
    for j in (1, 2, 4, 8, 16): wr(j, B[j])
    for j in range(1, 16):
        if j not in B:
            h = 1 << (j.bit_length() - 1)
            B[j] = cb(j, B[j - h], B[h], {3: 3, 5: 4, 6: 5, 7: 6}.get(j))
        cb(16 + j, B[j], B[16])
    for s in range(8): p.add(f"ds_read_b128 {R(aK+64*n+32+4*s,4,'a')}, v{vKR} offset:{TB + 32*s}", res="tab:r")
    for s in range(8):
        p.add(f"v_mfma_f32_32x32x16_f16 {R(KD,16)}, {R(aK+64*n+4*s,4,'a')}, {R(aK+64*n+32+4*s,4,'a')}, {'0' if s == 0 and n == 0 else R(KD,16)}", car=('k', n, s))


KUSED = [r for r in range(16) if r not in (7, 11)]


def kgen_x(p):
    for r in KUSED: p.add(f"v_mul_f32 v{KD+r}, v{vSC}, v{KD+r}")
    for q in range(4): p.add(f"ds_write_b128 v{vM16}, {R(KD+4*q,4)} offset:{KXO + 1024*q}", res="tab:w kx:w")
    p.add(f"v_mov_b32 v{ONE}, 0")
    for q in range(4): p.add(f"ds_write_addtid_b32 v{ONE} offset:{TB + 4096 + 256*q}", res="tab:w")


def kgen_tail(p):
    D, Q, O = KD, 224, 240
    for q in range(4): p.add(f"ds_read_b128 {R(Q+4*q,4)}, v{vXR+2} offset:{KXO + 1024*q}", res="kx:r ky:r")
    p.add(f"v_add_f32 v{D}, v{D}, v{vDS}")
    for r in KUSED: p.add(f"v_add_f32 v{D+r}, v{D+r}, v{Q+r}")
    cv = lambda o, x, y: p.add(f"v_cvt_pk_bf16_f32 v{o}, v{x}, v{y}")
    w = lambda t: p.add(t, res="tab:w")
    cv(O, D+3, D+2); cv(O+1, D+1, D); w(f"ds_write_b64 v{vKT}, {R(O,2)} offset:{2056 + 512}")
    cv(O+2, D+6, D+5); cv(O+3, D+4, D+4); w(f"ds_write_b64 v{vKT}, {R(O+2,2)} offset:2056")
    cv(O+4, D+10, D+10); cv(O+5, D+9, D+9); cv(O+6, D+9, D+8); cv(O+7, D+8, D+8); w(f"ds_write_b128 v{vKT+1}, {R(O+4,4)} offset:1536")
    for t in range(2):
        e0, e1, o = D+12+2*t, D+13+2*t, O+8+4*t
        p.add(f"v_cndmask_b32 v{o+1}, v{e0}, v{e1}, {S(sODD,2)}")
        cv(o, e1, e1); cv(o+1, e1, o+1); cv(o+2, e0, e0); cv(o+3, e0, e0)
        w(f"ds_write_b128 v{vKT+2}, {R(o,4)} offset:{512*(1-t)}")


def g1_reads(p, t):
    c, s = divmod(t, 4)
    o = c % 3 * 8192
    b = FR + 16 * (t & 1)
    res = f"c{c}:r f{c}:r"
    A = lambda tf: [p.add(f"ds_read_b64_tr_b16 {R(b+4*tf+2*h,2)}, v{vA+(s&2)+tf} offset:{o + RB*(s&1) + 1024*h}", res=res) for h in range(2)]
    B = lambda tl: p.add(f"ds_read_b128 {R(b+8+4*tl,4)}, v{vB+s} offset:{o + RB*tl}", res=res)
    A(0); B(0); B(1); A(1)


def w2_dma(p, k, P, **kw):
    res = f"w{k%6}:w" + (f" f{4 + k//2}:w" if k < 6 else "")
    p.add(f"s_add_u32 m0, s{sM}, {W2SLOT[k % 6]}", **kw)
    if k: p.add(f"s_add_u32 s{sW2}, s{sW2}, {32*896}", **kw)
    for i in range(4):
        p.add(f"buffer_load_dwordx4 v{vD2+i}, {S(W2,4)}, s{sW2} offen offset:{1024*i} lds", res=res, lat=P['LW'], **kw)


def w2_reads(p, k, **kw):
    for s in range(2):
        for td in range(2):
            for h in range(2):
                p.add(f"ds_read_b64_tr_b16 {R(8*(2*k+s)+4*td+2*h,2,'a')}, v{vT2+td} offset:{W2SLOT[k % 6] + (8*s+4*h)*128}", res=f"w{k%6}:r", **kw)


def u_part(p, P):
    sp = poll(p, "u", vPU, f"s{sPL}", ('g', P['UP']), ('g', P['UC']), "_u:w", post=st(3), n=2)
    p.add(f"v_cmp_ne_u32 {S(sHX,2)}, v{vTAG+1}, v{vF+1}", res="_u:r")
    d = dict(d=('g', P['UC']), lat=P['LU'], res="_u:r")
    for i in range(2): p.add(f"buffer_load_dwordx4 {R(UREG[i],4)}, v{vUL}, {S(WS,4)}, s{sUL} offen offset:{128 + 2048*i} sc1", **d)
    p.add(f"s_mov_b64 exec, 15\nbuffer_load_dwordx4 {R(UREG[2],4)}, v{vUL}, {S(WS,4)}, s{sUL} offen sc1\ns_mov_b64 exec, -1", atom=True, **d)
    T = UTMP
    for i in range(3):
        r = UREG[i]
        if i == 2:
            for k in range(4): p.add(f"v_and_b32 v{r+k}, s{sMK}, v{r+k}")
        p.add(f"v_lshlrev_b32 v{T+4*i}, 16, v{r}")
        for k in range(1, 4): p.add(f"v_alignbit_b32 v{T+4*i+k}, v{r+k}, v{r+k-1}, 16")
        if i < 2:
            p.add(f"ds_write_b128 v{vUW}, {R(r,4)} offset:{32 + 512*i}", res="us:w")
            p.add(f"ds_write_b128 v{vUW}, {R(T+4*i,4)} offset:{UP + 32 + 512*i}", res="us:w u16:a")
    for k, o in ((UREG[2], 0), (T + 8, UP)):
        p.add(f"s_mov_b64 exec, 15\nds_write_b128 v{vUW}, {R(k,4)} offset:{o}\ns_mov_b64 exec, -1", atom=True, res="us:w u16:a")
    for i in range(2): p.add(f"ds_write_b16_d16_hi v{vUW}, v{UREG[i]+3} offset:{UP + 48 + 512*i}", res="us:w u16:b")
    p.add(f"s_mov_b64 exec, 15\nds_write_b16_d16_hi v{vUW}, v{UREG[2]+3} offset:{UP + 16}\ns_mov_b64 exec, -1", atom=True, res="us:w u16:b")
    return sp


def gemm1(p, P):
    for s in range(2):
        for h in range(2):
            p.add(f"ds_read_b64_tr_b16 {R(aU+4*s+2*h,2,'a')}, v{vUT+8 + (s^h)} offset:{512*h}", res="x0:r f0:r" if not P['C2'] else "x0:r")

    def ut():
        for s in range(2):
            p.add(f"buffer_store_dwordx4 {R(aU+4*s,4,'a')}, v{vUS}, {S(WS,4)}, s{sCT if s else sU} offen sc1", res="ut:w", lat=P['LS'], d=('g', P['US']), e=P['UE'])
    p.add("s_barrier\n" + st(1), res="c0:b" + (" f0:b" if P['C2'] else ""), atom=True)
    if P['C2']: g1_dma(p, 2, P, lat=P['LD'], d=('g', 0)); p.grp.pop('f0')
    ut()
    g1_reads(p, 0)
    sp = ""
    for t in range(28):
        c, s = divmod(t, 4)
        if s < 2:
            b = aG + 4*s
            p.add(f"ds_read_b128 {R(b,4,'a')}, v{vGX+s} offset:{c % 3 * 8192}", res=f"c{c}:r f{c}:r")
            p.add(f"v_mfma_f32_16x16x32_bf16 {R(aGD,4,'a')}, {R(aGW+8*c+4*s,4,'a')}, {R(b,4,'a')}, {'0' if t == 0 else R(aGD,4,'a')}", car=('a', c, s))
        if s == 3:
            res = f"f{c}:b" + (f" c{c+1}:b" if c < 6 else "")
            if c == P['KB']: kgen_x(p); res += " kx:b"
            if c == P['UB']: res += " us:b"
            if c == P['KB'] + 1: res += " ky:b"
            p.add("s_barrier\n" + (st(7) if c == P['KB'] else ""), res=res, e=('g', 4*t - 1), d=('g', 4*t - 2), atom=True)
            if c == P['KB']: kgen_tail(p)
            if c == P['UF']: flag(p, f"s{sF}", "ut:f", n=2, e=('g', 4*t - 1), d=('g', 4*t))
            if c < 4: g1_dma(p, c + 3, P, lat=P['LD'], d=('g', 4*t + P['DD']))
            else:
                for k in (2*c - 8, 2*c - 7): w2_dma(p, k, P, d=(('g', 4*t), P['DD']))
            if c == 3: sp = u_part(p, P)
        if t < 27: g1_reads(p, t + 1)
        b = FR + 16 * (t & 1)
        for k in range(4):
            tf, tl = divmod(k, 2)
            d = R(ACC1 + 32*tf + 16*tl, 16)
            p.add(f"v_mfma_f32_32x32x16_bf16 {d}, {R(b+4*tf,4)}, {R(b+8+4*tl,4)}, {R(BIAS+16*tf,16) if t == 0 else d}", car=('g', 4*t + k))
        if t == 0: kgen_pass(p, 0); kgen_pass(p, 1)
    p.add(f"""
    v_accvgpr_read_b32 v{vGX}, a{aGD}
    v_mul_f32 v{vGX}, {LOG2E | 0x80000000}, v{vGX}
    v_exp_f32 v{vGX}, v{vGX}
    v_add_f32 v{vGX}, 1.0, v{vGX}
    v_rcp_f32 v{vGX}, v{vGX}
    """)
    p.add(f"ds_write_addtid_b32 v{vGX} offset:{GO}", res="cx:w")
    if P['KB'] == 7 or P['UB'] == 7:
        res = "us:b" if P['UB'] == 7 else ""
        if P['KB'] == 7: kgen_x(p); res += " kx:b"
        if P['KB'] == 6: res += " ky:b"
        p.add("s_barrier\n" + (st(7) if 7 == P['KB'] else ""), res=res, atom=True)
        if P['KB'] == 7: kgen_tail(p)
    return sp


def g1_epilogue(p, P):
    n = 0
    for tf in range(2):
        for tl in range(2):
            for s in range(2):
                d = ACC1 + 32*tf + 16*tl + 8*s
                kw = dict(d=(('g', 111), P['ED'] + P['ES'] * n)); n += 1
                for r in range(8): p.add(f"v_mul_f32 v{d+r}, v{d+r}, |v{d+r}|")
                for r in range(4): p.add(f"v_cvt_pk_bf16_f32 v{d+r}, v{d+2*r}, v{d+2*r+1}")
                for r in range(4): p.add(f"v_pk_max_i16 v{d+r}, v{d+r}, 0")
                p.add(f"buffer_store_dwordx4 {R(d,4)}, v{vL16}, {S(WS,4)}, s{sH1 if tl else sH0} offen offset:{(2*tf+s)*1024} {P['HSC']}\n" + (st(4) if n == 8 else ""),
                      res="hs:w", lat=P['LH'], atom=True, **kw)
    e = ('c', P['HF']) if P['HF'] >= 0 else None
    if P['HSC']:
        flag(p, f"s{sFH}", "hs:f _hf:w", extra=st(5), e=e, d=e or ('c', 0))
        return ""
    flag(p, f"s{sFH}", "hs:f _hf:w", pre=f"s_cmp_lg_u32 s{sHX+1}, {P['FS']}\ns_cbranch_scc1 Lslow\n", extra="Lfast:\n" + st(5), sc=P['FSC'], e=e, d=e or ('c', 0))
    t = "Lslow:\n"
    for n in range(8): t += f"  buffer_store_dwordx4 {R(ACC1+8*n,4)}, v{vL16}, {S(WS,4)}, s{sH1 if n & 2 else sH0} offen offset:{((n >> 1 & 2) + (n & 1))*1024} sc1\n"
    return t + f"  s_waitcnt vmcnt(0)\n  s_mov_b64 exec, 1\n  buffer_store_dword v{vTAG}, off, {S(WS,4)}, s{sFH} sc1\n  s_mov_b64 exec, -1\n  s_branch Lfast\n"


def helper(P):
    t = f"""Lhelp:
  s_cmp_ge_u32 s2, {224 + P['NH']}
  s_cbranch_scc1 Lend2
  s_lshr_b32 s{sT1}, s2, 3
  s_sub_u32 s{sT1}, s{sT1}, 28
  s_mul_i32 s{sT2}, s{sT1}, {448*896}
  v_min_u32 v2, 111, v0
  v_lshlrev_b32 v2, 7, v2
  v_min_u32 v4, 223, v0
  v_lshlrev_b32 v4, 7, v4
  s_and_b32 s{sT0}, s2, 7
  s_mul_i32 s{sT0}, s{sT0}, {112*128}
  s_add_u32 s{sT0}, s{sT0}, {FL_H}
  s_mov_b32 s{WS+2}, {WS_SIZE}
  s_mov_b32 s{WS+3}, 0x20000
  s_mov_b32 s{OUT+2}, {2048*896}
  s_mov_b32 s{OUT+3}, 0x20000
  s_mov_b32 s{W2+2}, {1792*896}
  s_mov_b32 s{W2+3}, 0x20000
  s_mov_b32 s{sCNT}, 0
  s_waitcnt lgkmcnt(0)
  s_load_dword s{sTAG}, {S(WS,2)}, 0
  s_mov_b32 s{W2}, s{P_W2}
  s_mov_b32 s{W2+1}, s{P_W2+1}
"""
    if P['HT']: t += f"""  v_lshlrev_b32 v5, 16, v0
  buffer_load_dword v6, v5, {S(WS,4)}, 0 offen offset:2048
  buffer_load_dword v7, v5, {S(OUT,4)}, 0 offen
"""
    if P['HT'] > 1: t += "  s_waitcnt vmcnt(0)\n"
    for k in range(15 if P['PW'] >= 0 else 0):
        if k == P['PH']:
            t += f"  s_and_b32 s{sT3}, s2, 7\n  s_lshl_b32 s{sT3}, s{sT3}, 2\n  s_add_u32 s{sT3}, s{sT3}, s{sT1}\n  s_mul_i32 s{sT3}, s{sT3}, {224*1024}\n  s_add_u32 s{sT3}, s{sT3}, {HH}\n  v_lshlrev_b32 v5, 7, v0\n"
            for q in range(7): t += f"  buffer_load_dword v{24+q}, v5, {S(WS,4)}, s{sT3} offen {P['PSC']}\n  s_add_u32 s{sT3}, s{sT3}, 32768\n  s_waitcnt vmcnt({P['PW']})\n"
        if k == 14: break
        t += f"  buffer_load_dword v{8+k}, v4, {S(W2,4)}, s{sT2} offen {P['PSC']}\n  s_add_u32 s{sT2}, s{sT2}, {32*896}\n  s_waitcnt vmcnt({P['PW']})\n"
    t += f"""  s_waitcnt vmcnt(0) lgkmcnt(0)
  s_cmp_lg_u32 s{sT1}, 0
  s_cbranch_scc1 Lend2
"""
    if P['WB'] == 2: t += f"""  v_lshrrev_b32 v3, 11, v2
  v_and_b32 v2, {15*128}, v2
  v_lshl_add_u32 v2, v3, 14, v2
  s_and_b32 s{sT0}, s2, 7
  s_lshl_b32 s{sT0}, s{sT0}, 11
  s_add_u32 s{sT0}, s{sT0}, {FL_A}
"""
    if P['WB']: t += f"""  v_cmp_gt_u32 vcc, 112, v0
  s_mul_i32 s{sTAG}, s{sTAG}, 0x9E3779B1
  s_add_u32 s{sTAG}, s{sTAG}, 0x7F4A7C15
  s_cbranch_vccz Lhb
Lhs:
  buffer_load_dword v3, v2, {S(WS,4)}, s{sT0} offen sc1
  s_add_u32 s{sCNT}, s{sCNT}, 1
  s_cmp_lt_u32 s{sCNT}, 200
  s_waitcnt vmcnt(0)
  v_cmp_ne_u32 vcc, s{sTAG}, v3
  s_cbranch_vccz Lhb
  s_cbranch_scc1 Lhs
Lhb:
  s_barrier
  v_cmp_gt_u32 vcc, 64, v0
  s_cbranch_vccz Lend2
  buffer_wbl2 sc1
  s_waitcnt vmcnt(0)
"""
    return t + "Lend2:\n  s_endpgm\n"


def conv(p, P):
    F = [192, 128]
    order = sorted(((t, d) for t in range(8) for d in range(8) if t + d < 8), key=lambda x: (max(x), x[0] + x[1], x[0]))
    seen = set()
    for r in range(4):
        b = F[r & 1]
        for i in range(8):
            o = 128 * (i & 1) + 16 * (3 - r)
            p.add(f"ds_read2_b32 {R(b+4*i,2)}, v{vU+(i>>1)} offset0:{o} offset1:{o+1}", res="us:r")
            p.add(f"ds_read2_b32 {R(b+4*i+2,2)}, v{vU+(i>>1)} offset0:{o+2} offset1:{o+3}", res="us:r")
            p.add(f"ds_read_b128 {R(b+32+4*i,4)}, v{vKf} offset:{512*(7-i) + 64*(3-r)}", res="tab:r")
        od = order if r < 3 else sorted(order, key=lambda x: (x[0] + x[1], x[0]))
        for k, (t, d) in enumerate(od):
            c = t + d
            acc = R(aC + 4*c, 4, 'a')
            p.add(f"v_mfma_f32_16x16x32_bf16 {acc}, {R(b+4*d,4)}, {R(b+32+4*t,4)}, {acc if c in seen else '0'}", car=('c', 36*r + k))
            seen.add(c)
    if P['KB'] == 7 or (P['KB'] == 6 and P['UB'] != 7): p.add("s_barrier", res="ky:b", e=('c', 40), d=('c', 40))


def conv_out(p, P):
    F = 2
    d = dict(d=('h', P['AD']))
    for c in range(8): p.add(f"ds_write_b128 v{vCW}, {R(aC+4*c,4,'a')} offset:{1024*c}", res="tab:w cx:w ky:w")
    p.add("s_barrier", res="cx:b _h:r")
    for i in range(2):
        for w in range(4): p.add(f"ds_read_b128 {R(F+16*i+4*w,4)}, v{vCR+(w>>1)} offset:{RB*(w&1) + 1024*i}", res="cx:r")
    for tl in range(2): p.add(f"ds_read_b32 v{vG+tl}, v{vG+tl} offset:{GO}", res="cx:r")
    for i in range(2):
        b = F + 16*i
        for k in (0, 1, 2, 3, 8, 9, 10, 11): p.add(f"v_add_f32 v{b+k}, v{b+k}, v{b+k+4}")
        for k in range(4): p.add(f"v_cvt_pk_bf16_f32 v{b+4+k}, v{b+k}, v{b+8+k}")
        p.add(f"buffer_store_dwordx4 {R(b+4,4)}, v{vL16}, {S(WS,4)}, s{sAS} offen offset:{1024*i} sc1", res="as:w", lat=P['LA'], **d)
    flag(p, f"s{sFA}", "as:f", e=('h', P['AF']), d=('h', P['AF']))


def slot(i):
    i %= 32
    return 192 + 4*(i - 16) if i >= 16 else 64 + 8*(i & 7) + (4 if i < 8 else 0)


def gemm2(p, P):
    ACC, AV, BS, GN = 128, 2, 10, 0
    SK, S2 = P['SK'], P['S2']
    seq = sorted(((tl, k) for tl in range(2) for k in range(28)), key=lambda x: (x[1] + SK * x[0], x[0]))
    mf = [(tl, k, td) for tl, k in seq[:56 - S2] for td in range(2)] + [(tl, k, td) for td in range(2) for tl, k in seq[56 - S2:]]
    sp = poll(p, "h", vPH, f"s{sPH}", ('c', P['HP']), ('c', P['HC']), "_h:w _hf:r", pre=st(8), post=st(9))

    def hload(i):
        tl, k = seq[i]
        s = sG1 if tl else sG0
        if k and k % 4 == 0: p.add(f"s_add_u32 s{s}, s{s}, 4096")
        p.add(f"buffer_load_dwordx4 {R(slot(i),4)}, v{vL16}, {S(WS,4)}, s{s} offen offset:{1024*(k%4)} {P['GSC']}", res="_h:r", lat=P['LG'])

    def out(tl):
        A = ACC + 32*tl
        Q = slot(24) if tl == 0 else ACC
        B = BS + 8*tl
        for q in range(6): p.add(f"ds_write_b128 v{vM16}, {R(A+4*q,4)} offset:{8192*tl + 1024*q}", res=f"gx{tl}:w w{4-4*tl}:w w{5-4*tl}:w")
        for k in range(8): p.add(f"v_fmac_f32 v{B+k}, v{A+24+k}, v{GN+tl}")
        p.add("s_barrier", res=f"gx{tl}:b")
        for q in range(6): p.add(f"ds_read_b128 {R(Q+4*q,4)}, v{vXR+(q>>1)} offset:{8192*tl + 1024*q}", res=f"gx{tl}:r")
        if tl == 0:
            for j in (8, 16):
                for k in range(8): p.add(f"v_add_f32 v{Q+k}, v{Q+k}, v{Q+j+k}")
            for k in range(8): p.add(f"v_fmac_f32 v{B+k}, v{Q+k}, v{GN}")
        else:
            for j in (8, 16):
                for k in range(0, 8, 2): p.add(f"v_pk_add_f32 {R(Q+k,2)}, {R(Q+k,2)}, {R(Q+j+k,2)}")
            for k in range(0, 8, 2): p.add(f"v_pk_fma_f32 {R(B+k,2)}, {R(Q+k,2)}, {R(GN,2)}, {R(B+k,2)} op_sel:[0,1,0] op_sel_hi:[1,1,1]")
            p.add(f"s_add_u32 s{sO}, s{sO}, {32*896}")
        for k in range(4): p.add(f"v_cvt_pk_bf16_f32 v{B+k}, v{B+2*k}, v{B+2*k+1}")
        p.add(f"buffer_store_dwordx4 {R(B,4)}, v{vO}, {S(OUT,4)}, s{sO} offen", d='END')

    for k in range(14):
        w2_reads(p, k)
        if k + 6 < 14: w2_dma(p, k + 6, P, d=(('c', 0), P['W0'] + P['W1'] * k))
    for i in range(32): hload(i)
    conv_out(p, P)
    sp += poll(p, "a", vPA, f"s{sPA}", ('h', P['AP']), ('h', P['AC']), "_a:w", post=st(10))
    for i in range(4):
        if i: p.add(f"s_add_u32 s{sAL}, s{sAL}, 8192")
        for tl in range(2):
            p.add(f"buffer_load_dword v{AV+4*tl+i}, v{vA2}, {S(WS,4)}, s{sAL} offen offset:{128*tl} sc1", res="_a:r", lat=P['LU'], d=('h', P['AC']))
    U = 26
    for tl in range(2): p.add(f"v_sub_f32 v{GN+tl}, 1.0, v{vG+tl}")
    for k in range(4): p.add(f"v_lshlrev_b32 v{U+2*k}, 16, v{B2R+k}\nv_and_b32 v{U+2*k+1}, 0xffff0000, v{B2R+k}")
    for tl in range(2):
        for k in range(8): p.add(f"v_mul_f32 v{BS+8*tl+k}, v{U+k}, v{GN+tl}")
    for tl in range(2):
        for k in range(4): p.add(f"v_lshlrev_b32 v{U+2*k}, 16, v{AV+4*tl+k}\nv_and_b32 v{U+2*k+1}, 0xffff0000, v{AV+4*tl+k}")
        for k in range(8): p.add(f"v_fmac_f32 v{BS+8*tl+k}, v{U+k}, v{vG+tl}")
    for m, (tl, k, td) in enumerate(mf):
        i = seq.index((tl, k))
        acc = R(ACC + 32*tl + 16*td, 16)
        p.add(f"v_mfma_f32_32x32x16_bf16 {acc}, {R(8*k+4*td,4,'a')}, {R(slot(i),4)}, {'0' if k == 0 else acc}", car=('h', m))
        if td and i + 32 < 56: hload(i + 32)
    out(0); out(1)
    return sp


DEF = dict(NH=0, PH=-1, PSC='', GSC='sc1', PW=13, HT=1, WB=1, FS=0, FSC='sc1', MAP=0, HSC='sc1', C2=1, TS=0, ORD='x0 w0 p0 p1 p2 p3 b g x1 w1 2 c |60', LP=2400, LC=3200, LD=500, LW=500, LU=700, LS=700, LH=600, LA=600, LG=600,
           US=0, UE=None, UF=1, UP=62, UC=76, KB=6, UB=6, K0=52, K1=84, KS=1, DD=4, ED=4, ES=3, EV=8, HF=60, HP=70, HC=100,
           AD=12, AF=40, AP=60, AC=76, SK=6, S2=3, INFL=2.0, DSLAT=112, LDSQ=48, VMQ=128, CAP32=6, CAP16=2, V0=60, W0=0, W1=16)


def build(**kw):
    P = dict(DEF); P.update(kw)
    name = NAME + "_kernel"
    global PROF, EXP
    EXP = P.get('EXP', 0)
    a = Asm()
    if PROF: a("! " + st(0))
    XS = P.get('XS')
    if XS: PROF = False
    prologue(a, P)
    p = Prog()
    order = first_loads(p, P)
    setup(p)
    kgen_pre(p, P)
    sp = gemm1(p, P)
    sp += g1_epilogue(p, P)
    conv(p, P)
    sp += gemm2(p, P)
    p.virt('END', 0)
    ins = {}
    for c in range(7):
        for s in range(2): ins.setdefault(16*c + 4*s + 5, []).append(('a', c, s))
    for n in range(2):
        for s in range(8): ins.setdefault(P['K1' if n else 'K0'] + s * P['KS'], []).append(('k', n, s))
    for m in range(112): order += [('g', m)] + ins.get(m, [])
    for k in range(P['EV']): p.virt(('e', k), 10); order.append(('e', k))
    order += [('c', m) for m in range(144)] + [('h', m) for m in range(112)] + ['END']
    stamp(p, 2, ('g', 111)); stamp(p, 6, ('k', 1, 7)); stamp(p, 15, ('c', 143)); stamp(p, 11, ('h', 111))
    log = []
    body, s = schedule(p, order, log=log, **{k: P[k] for k in ('INFL', 'DSLAT', 'LDSQ', 'VMQ', 'CAP32', 'CAP16')})
    m0 = None
    for i in body:
        if i.kind == 'salu' and ('m0', 0) in i.defs: m0 = int(i.text.split(',')[-1])
        if 'addtid' in i.op:
            h, o = i.text.split('offset:'); o = int(o) - m0
            assert 0 <= o < 65536
            i.text = f"{h}offset:{o}"
        i.raw = True
        if i.kind == 'smem': i.kind = 'label'; i.text = '  ' + i.text; i.states = 0
    if XS:
        PROF = True
        for k, c in enumerate(XS):
            i = Ins(st(k + 1).strip()); i.kind = 'label'; i.text = '  ' + i.text; i.states = 0; i.raw = True
            if isinstance(c, int): q = [x for x in body if x.kind != 'label' and x.isvm()][c]
            elif isinstance(c[0], str) and len(c[0]) > 1: q = [x for x in body if c[0] in x.text][c[1]]
            else: q = p.car[c].ins[0]
            body.insert(body.index(q) + 1, i)
    n0 = len(a.ins) + len(body)
    a.add(body)
    if PROF: a("! " + st(15 if XS else 12))
    a(f"""
    s_or_b32 s{sT0}, s2, s{sW}
    s_cbranch_scc1 Lnoep
    s_mov_b64 exec, 1
    buffer_store_dword v{vTAG}, off, {S(WS,4)}, 0 sc1
    Lnoep:
    """)
    if PROF:
        a(f"""
        s_lshl_b32 s{sT0}, s2, 2
        s_add_u32 s{sT0}, s{sT0}, s{sW}
        s_lshl_b32 s{sT0}, s{sT0}, 6
        s_add_u32 s{sT0}, s{sT0}, {STAMPS}
        s_mov_b64 exec, 1
        s_waitcnt lgkmcnt(0)
        """)
        for i in range(16): a(f"v_mov_b32 v2, s{STAMP0+2*i}\nbuffer_store_dword v2, off, {S(WS,4)}, s{sT0} offset:{4*i}")
    n1 = len(a.ins)
    fin = finalize(a.ins)
    tm = {k: (t, u, v) for k, t, u, v in log}
    ph = lambda c: sum(u for k, t, u, v in log if k[0] in c)
    print(f"instr {sum(1 for i in fin if i.kind != 'label')} added {len(fin) - n1} waits {s['waits']} stall {s['stall']} | g0 {tm[('g',0)][0]} G1 {ph('gak')} epi {ph('e')}"
          f" conv {ph('c')} G2 {ph('h')} tail {tm['END'][1]} total {s['now']}")
    if XS: print("model    ", " ".join(f"{tm.get(c, (0,))[0]/1000:6.2f}" for c in ['V0'] + XS))
    if P.get('LOG'):
        for k, t, u, v in log:
            if u > v: print(k, t, u, v)
    t = f".globl {name}\n.p2align 8\n.type {name},@function\n{name}:\n" + text_of(fin) + "Lend:\n  s_endpgm\n" + sp + (helper(P) if P['NH'] else "")
    d = f""".p2align 6
.amdhsa_kernel {name}
  .amdhsa_next_free_vgpr 512
  .amdhsa_next_free_sgpr 102
  .amdhsa_accum_offset 256
  .amdhsa_group_segment_fixed_size 0
  .amdhsa_kernarg_size 128
  .amdhsa_user_sgpr_count 2
  .amdhsa_user_sgpr_kernarg_segment_ptr 1
  .amdhsa_system_sgpr_workgroup_id_x 1
.end_amdhsa_kernel
"""
    hdr = f"; @launch grid=({224 + P['NH']},1,1) block=(256,1,1) lds={LDS}\n"
    return hdr + '.amdgcn_target "amdgcn-amd-amdhsa--gfx950"\n.text\n' + t + '.section .rodata,"a"\n' + d


if __name__ == "__main__":
    args = [x for x in sys.argv[1:] if not x.startswith("-") and "=" not in x]
    kw = {x.split("=")[0]: eval(x.split("=")[1]) for x in sys.argv[1:] if "=" in x}
    PROF = "-p" in sys.argv
    if "-c" in sys.argv: PROF = True; CLK = "s_memtime"
    open(args[0], "w").write(build(**kw))
```

```python
import sys
from dsl import Asm, finalize, text_of, Ins
from sched import Prog, schedule

NAME = "gated_mix__ssm_conv_s4d__dense_activation_squared_relu__prompt"
FL_U, FL_H, FL_A, STAMPS = 0x10000, 0x30000, 0x50000, 0x70000
UT, A2, HH, WS_SIZE = 0x100000, 0x300000, 0x500000, 0xC00000
LOG2E = 0x3fb8aa3b
LDS, RB = 163840, 40960
TB, KXO, UO, GWO, BIO, GO, UP = 24576, 29696, 33792, 38144, 39168, 39424, 1088
W2SLOT = [8192, 12288, 16384, 20480, 0, 4096]

X, W1, WS, OUT, W2 = 4, 8, 12, 16, 20
P_LA, P_AI, P_CR, P_CI, P_DT, P_DS, P_B1, P_W2, P_B2, P_GW = 24, 26, 28, 30, 32, 34, 36, 38, 40, 42
sW, sHX, sJ7, sJM, sRT, sCT, sP, sC, sCW, sM = 3, 44, 45, 46, 47, 48, 49, 50, 51, 52
sT0, sT1, sT2, sT3, sDT, sDS, sH0, sH1, sTAG, sF = 53, 54, 55, 56, 57, 58, 59, 60, 61, 62
sCNT, sW2, sFH, sPL, sU = 63, 64, 65, 66, 67
sCX = {0: sC, 1: 0, 2: 24, 3: 26, 4: 28, 5: 30, 6: 36}
sUL, sMK, sPH, sG0, sG1, sAS, sFA, sPA, sAL, sO = 32, 33, 34, 35, 38, 39, 40, 41, 42, 43
sODD = 100
STAMP0 = 68
SPIN = 1 << 16
PROF = False
EXP = 0
CLK = 's_memrealtime'

vXa, vWa, vA, vB, vGX, vU, vKf, vKR, vKP, vKT, vDS = 2, 6, 10, 14, 18, 20, 24, 25, 26, 27, 30
vUL, vUW, vPU, vUS, vPH, vF, vL16, vM16, vTAG, vD2, vT2 = 31, 32, 33, 34, 35, 36, 38, 39, 40, 42, 46
vCW, vCR, vPA, vA2, vO, vG, B2R, vXR, vSC = 48, 49, 51, 52, 53, 54, 56, 60, 63
ACC1, BIAS, FR, KD = 64, 128, 160, 128
aG, aGD, aU, aGW, aK, aC = 224, 232, 236, 40, 96, 224
UREG, UTMP = [2, 6, 144], 148


def R(b, n=1, f='v'): return f"{f}{b}" if n == 1 else f"{f}[{b}:{b+n-1}]"
def S(b, n): return f"s[{b}:{b+n-1}]"
def st(i): return f"{CLK} {S(STAMP0+2*i,2)}\n" if PROF else ""


def at(ph, x): return (ph, x) if isinstance(x, int) else x


def stamp(p, i, g):
    if PROF: p.add(st(i), e=g, d=(g[0], g[1] - 40) if isinstance(g[0], tuple) else (g, -40))


def flag(p, soff, res, extra="", pre="", n=1, sc="sc1", **kw):
    p.add(f"{pre}s_mov_b64 exec, 1\nbuffer_store_dword{'x2' if n == 2 else ''} {R(vTAG,n)}, off, {S(WS,4)}, {soff} {sc}\ns_mov_b64 exec, -1\n{extra}", res=res, atom=True, **kw)


def poll(p, name, va, soff, e0, e1, res, pre="", post="", n=1):
    ld = f"buffer_load_dword{'x2' if n == 2 else ''} {R(vF,n)}, v{va}, {S(WS,4)}, {soff} offen sc1"
    p.add(ld, e=e0, d=e0, lat=64)
    p.add(f"""
    {pre}
    v_cmp_ne_u32 vcc, s{sTAG}, v{vF}
    s_cbranch_vccnz Lspin_{name}
    Lok_{name}:
    {post}
    """, e=e1, d=e1, res=res, atom=True)
    return f"""Lspin_{name}:
  s_mov_b32 s{sCNT}, 0
Lloop_{name}:
  {ld}
  s_add_u32 s{sCNT}, s{sCNT}, 1
  s_cmp_lt_u32 s{sCNT}, {SPIN}
  s_waitcnt vmcnt(0)
  v_cmp_ne_u32 vcc, s{sTAG}, v{vF}
  s_cbranch_vccz Lok_{name}
  s_cbranch_scc1 Lloop_{name}
  s_branch Lok_{name}
"""


MAPS = [f'''s_lshr_b32 s{sRT}, s{sHX}, 1
    s_lshl_b32 s{sRT}, s{sRT}, 2
    s_add_u32 s{sRT}, s{sRT}, s{sJ7}
    s_and_b32 s{sHX}, s{sHX}, 1''', f'''s_lshr_b32 s{sRT}, s{sJ7}, 1
    s_lshl_b32 s{sHX}, s{sHX}, 1
    s_add_u32 s{sRT}, s{sRT}, s{sHX}
    s_and_b32 s{sHX}, s{sJ7}, 1''']
T0 = 64
_T = f'''
    s_min_u32 s{sCNT}, s{sPL}, 15
    s_lshl_b32 s{sCNT}, s{sCNT}, 3
    s_load_dwordx2 {S(sW2,2)}, s[0:1], s{sCNT}
    s_max_u32 s{sPL}, s{sPL}, 16
    s_sub_u32 s{sPL}, s{sPL}, 16
    s_min_u32 s{sPL}, s{sPL}, 11
    s_lshl_b32 s{sPL}, s{sPL}, 20'''
TOUCH = ["", f"s_mov_b32 s{sPL}, s{sT0}" + _T, f"s_lshl_b32 s{sPL}, s{sT0}, 2\ns_add_u32 s{sPL}, s{sPL}, s{sW}\ns_and_b32 s{sPL}, s{sPL}, 31" + _T]


PFC = f"""
    !  s_cbranch_scc0 Lmain
    !  s_getpc_b64 {S(sHX,2)}
    Lpc:
    !  v_lshlrev_b32 v2, 7, v0
    !  v_min_u32 v2, Lhelp-Lpc, v2
    !  v_mov_b32 v3, s{sHX+1}
    !  v_add_co_u32 v2, vcc, s{sHX}, v2
    !  v_addc_co_u32 v3, vcc, 0, v3, vcc
    !  global_load_dword v40, v[2:3], off
    !  s_branch Lhelp
    Lmain:"""


def prologue(a, P):
    t = T0
    a(f"""
    s_load_dwordx8 {S(P_LA,8)}, s[0:1], 8
    s_load_dwordx2 {S(X,2)}, s[0:1], 0
    s_load_dwordx2 {S(W1,2)}, s[0:1], 64
    s_load_dwordx8 {S(P_B1,8)}, s[0:1], 72
    s_load_dwordx2 {S(WS,2)}, s[0:1], 120
    s_load_dwordx4 {S(P_DT,4)}, s[0:1], 40
    s_load_dwordx2 {S(OUT,2)}, s[0:1], 104
    s_cmp_ge_u32 s2, 224
    {PFC if P['PC'] else "s_cbranch_scc1 " + ('Lhelp' if P['NH'] else 'Lend')}
    v_lshrrev_b32 v2, 6, v0
    v_and_b32 v1, 63, v0
    s_and_b32 s{sHX}, s2, 7
    s_lshr_b32 s{sT0}, s2, 3
    v_readfirstlane_b32 s{sW}, v2
    {TOUCH[P['TS']]}
    s_mul_i32 s{sJ7}, s{sT0}, 37
    s_lshr_b32 s{sJ7}, s{sJ7}, 8
    s_mul_i32 s{sJM}, s{sJ7}, 7
    s_sub_u32 s{sJM}, s{sT0}, s{sJM}
    s_lshl_b32 s{sP}, s{sJM}, 3
    s_add_u32 s{sP}, s{sP}, s{sHX}
    s_lshl_b32 s{sP}, s{sP}, 2
    s_add_u32 s{sP}, s{sP}, s{sJ7}
    {MAPS[P['MAP']]}
    s_mul_i32 s{sCT}, s{sHX}, 7
    s_add_u32 s{sCT}, s{sCT}, s{sJM}
    s_lshl_b32 s{sC}, s{sJ7}, {1 - P['PERM']}
    s_add_u32 s{sC}, s{sC}, s{sJM}
    s_sub_u32 s{sT0}, s{sC}, 7
    s_min_u32 s{sC}, s{sC}, s{sT0}
    s_lshl_b32 s{sU}, s{sC}, 1
    s_add_u32 s{sU}, s{sU}, s{sHX}
    s_lshl_b32 s{sC}, s{sC}, 7
    s_mul_i32 s{sCW}, s{sC}, 1792
    s_lshl_b32 s{sT0}, s{sRT}, 2
    s_add_u32 s{sF}, s{sT0}, s{sW}
    s_mul_i32 s{sT0}, s{sF}, {32*896}
    s_mul_i32 s{sT1}, s{sW}, {16*3584}
    s_lshl_b32 s{sT2}, s{sCT}, 8
    s_add_u32 s{sT1}, s{sT1}, s{sT2}
    s_mul_i32 s{sM}, s{sW}, {RB}
    s_lshl_b32 s{sT3}, s{sP}, 2
    s_add_u32 s{sH0}, s{sT3}, s{sW}
    s_lshl_b32 s{sH0}, s{sH0}, 8
    v_lshrrev_b32 v{t}, 3, v1
    v_lshrrev_b32 v{t+1}, 4, v1
    v_mul_u32_u24 v{vD2}, 896, v{t}
    v_and_b32 v{t+2}, 7, v1
    v_xor_b32 v{t+2}, v{t+2}, v{t+1}
    v_lshl_add_u32 v{t}, v{t+2}, 4, v{vD2}
    v_add_u32 v{vXa}, s{sT0}, v{t}
    v_xor_b32 v{t}, 64, v{vXa}
    v_add_u32 v{vXa+1}, 6144, v{t}
    v_add_u32 v{vXa+2}, 12288, v{vXa}
    v_add_u32 v{vXa+3}, {6144+12288}, v{t}
    v_mul_u32_u24 v{t}, 3584, v{t+1}
    v_lshlrev_b32 v{t+1}, 2, v{t+1}
    v_xor_b32 v{t+1}, v{t+1}, v1
    v_and_b32 v{t+1}, 15, v{t+1}
    v_lshl_add_u32 v{t}, v{t+1}, 4, v{t}
    v_add_u32 v{vWa}, s{sT1}, v{t}
    v_add_u32 v{vWa+1}, 13312, v{vWa}
    v_add_u32 v{vWa+2}, {2*13312}, v{vWa}
    v_add_u32 v{vWa+3}, {3*13312}, v{vWa}
    v_lshl_add_u32 v{t+3}, v1, 2, s{sH0}
    v_lshl_add_u32 v{t+4}, v1, 2, s{sT2}
    v_lshlrev_b32 v{vL16}, 4, v1
    v_min_u32 v{t+5}, 880, v{vL16}
    s_lshl_b32 s{sT0}, s{sJM}, 2
    s_add_u32 s{sT0}, s{sT0}, s{sW}
    s_lshl_b32 s{sT0}, s{sT0}, 5
    v_lshrrev_b32 v{t+7}, 5, v1
    v_lshl_add_u32 v{vO}, v{t+7}, 4, s{sT0}
    s_mov_b32 s{X+2}, {2048*896}
    s_mov_b32 s{X+3}, 0x20000
    s_mov_b32 s{W1+2}, {448*3584}
    s_mov_b32 s{W1+3}, 0x20000
    @lgkm0
    """)
    if PROF: a("! " + st(13))
    if P['TS']: a(f"!  s_load_dword s{sCNT}, {S(sW2,2)}, s{sPL}")
    a(f"""
    !  s_load_dword s{sDT}, {S(P_DT,2)}, s{sT3}
    !  s_load_dword s{sDS}, {S(P_DS,2)}, s{sT3}
    !  s_load_dword s{sTAG}, {S(WS,2)}, 0
    """)


KI = 252


def g1_dma(p, c, P, **kw):
    slot = c % 3
    res = f"c{c}:w" + (f" f{c-3}:w" if c >= 3 else "") + (" f0:w" if c == 2 and P['C2'] else "")
    p.add(f"s_add_u32 m0, s{sM}, {slot*8192}", **kw)
    for i in range(4):
        p.add(f"buffer_load_dwordx4 v{vXa+i}, {S(X,4)}, s{sCX[c]} offen offset:{1024*i} lds", res=res + (" x0:w" if c == 0 else ""), **kw)
    p.add(f"s_add_u32 m0, s{sM}, {slot*8192 + 4096}", **kw)
    for i in range(4):
        p.add(f"buffer_load_dwordx4 v{vWa+i}, {S(W1,4)}, s{sCX[c]+1} offen offset:{1024*i} lds", res=res, **kw)


def first_loads(p, P):
    t = T0

    def chunk(c):
        r = sCX[c]
        if not P['PERM']: p.add(f"s_add_u32 s{r}, s{sCX[c-1]}, 128\ns_cmp_eq_u32 s{r}, 896\ns_cselect_b32 s{r}, 0, s{r}", atom=True)
        else:
            if c < 4: p.add(f"s_add_u32 s{r}, s{sJ7}, {c}\ns_and_b32 s{r}, s{r}, 3")
            else: p.add(f"s_lshl_b32 s{r}, s{sJ7}, 2\ns_lshr_b32 s{r}, {sum(4 + (j + c) % 3 << 4*j for j in range(4))}, s{r}\ns_and_b32 s{r}, s{r}, 7")
            p.add(f"s_add_u32 s{r}, s{r}, s{sJM}\ns_sub_u32 s{r+1}, s{r}, 7\ns_min_u32 s{r}, s{r}, s{r+1}\ns_lshl_b32 s{r}, s{r}, 7")
        p.add(f"s_mul_i32 s{r+1}, s{r}, 1792")
    chunk(1)
    V = ['V0']; m0 = [None]; need = "_pa:w"

    def ld(text, m, res, lat):
        d = dict(e=V[-1], d=(V[-1], -1))
        if m is not None and m != m0[0]: p.add(f"s_add_u32 m0, s{sM}, {m}", res="_m0:w" if m0[0] is None else "", **d); m0[0] = m
        p.add(text, lat=lat, res=res + " _o:!", **d)

    late = []
    for k in P['ORD'].split():
        if k[0] == '|': p.virt(V[-1], int(k[1:])); V.append(f"V{len(V)}")
        elif k[0] == 'p': ld(f"global_load_dword v{KI+int(k[1])}, v{t+3}, {S(P_LA+2*int(k[1]),2)}", None, "", P['LP'])
        elif k == 'b': ld(f"global_load_lds_dword v{t+4}, {S(P_B1,2)}", BIO, "bias:w", P['LP'])
        elif k == 'g': ld(f"global_load_lds_dwordx4 v{t+5}, {S(P_GW,2)}", GWO, "gw:w", P['LP'])
        elif k == '2': ld(f"global_load_dwordx4 {R(B2R,4)}, v{vO}, {S(P_B2,2)}", None, "", P['LP'])
        elif k == 'c':
            for c in range(2, 7): chunk(c)
        elif k[0] == 't':
            base, sh, n = {'W': (W1, 15, 49), 'X': (X, 15, 56), '2': (P_W2, 15, 49), 'O': (OUT, 15, 56), 'S': (WS, 18, 48)}[k[1]]
            if len(k) > 2: n = (n - 1 >> int(k[2])) + 1; sh += int(k[2])
            r = 236 + len(late); late.append(r)
            p.add(f"v_min_u32 v{r}, {n-1}, v1\nv_lshlrev_b32 v{r}, {sh}, v{r}", d=('V0', -1))
            ld(f"global_load_dword v{r}, v{r}, {S(base,2)}", None, "", P['LP'])
        else:
            c = int(k[1])
            for i in ([int(k[2])] if len(k) > 2 else range(4)):
                res = f"c{c}:w"
                lat = P['LC'] if c == 0 else P['LD']
                if k[0] == 'x': ld(f"buffer_load_dwordx4 v{vXa+i}, {S(X,4)}, s{sCX[c]} offen offset:{1024*i} lds", c*8192, res + (" x0:w" if c == 0 else ""), lat)
                else: ld(f"buffer_load_dwordx4 v{vWa+i}, {S(W1,4)}, s{sCX[c]+1} offen offset:{1024*i} lds", c*8192 + 4096, res, lat)
    if PROF: p.add(st(14), res="_o:!", d=V[-1])
    p.virt(V[-1], 0)
    return V


vUT, vFU, vGW = 80, 82, 83


def setup(p):
    t = T0 + 8
    hi, q4, b0, b4, b1, b3, l31, l15, g4, x, y = range(t, t + 11)
    hi = T0 + 7
    p.add(f"""
    s_lshr_b32 s{sT0}, s{sW}, 1
    s_and_b32 s{sT1}, s{sW}, 1
    v_bfe_u32 v{q4}, v1, 2, 2
    v_and_b32 v{b0}, 1, v1
    v_and_b32 v{b4}, 16, v1
    v_and_b32 v{b1}, 2, v1
    v_and_b32 v{b3}, 8, v1
    v_and_b32 v{x}, 3, v1
    v_lshl_add_u32 v{x}, v{x}, 3, v{q4}
    v_lshlrev_b32 v{x}, 7, v{x}
    v_xor_b32 v{y}, s{sHX}, v{b0}
    v_lshl_add_u32 v{x}, v{y}, 6, v{x}
    v_lshrrev_b32 v{y}, 3, v{b3}
    v_xor_b32 v{y}, v{y}, v{hi}
    v_lshl_add_u32 v{x}, v{y}, 4, v{x}
    v_lshrrev_b32 v{y}, 1, v{b4}
    v_add3_u32 v{vUT+8}, v{x}, v{y}, s{sM}
    v_xor_b32 v{vUT+9}, 32, v{vUT+8}
    v_lshl_add_u32 v{x}, v{hi}, 3, v{q4}
    v_lshlrev_b32 v{x}, 8, v{x}
    s_lshl_b32 s{sT2}, s{sT0}, 1
    v_xor_b32 v{y}, s{sT2}, v{q4}
    v_lshl_add_u32 v{x}, v{y}, 6, v{x}
    v_lshl_add_u32 v{x}, v{b0}, 5, v{x}
    v_add_u32 v{x}, v{b4}, v{x}
    v_lshl_add_u32 v{x}, v{b1}, 2, v{x}
    v_add_u32 v{vA}, 4096, v{x}
    v_xor_b32 v{vA+1}, 64, v{vA}
    v_add_u32 v{vA+2}, {2*RB}, v{vA}
    v_add_u32 v{vA+3}, {2*RB}, v{vA+1}
    v_and_b32 v{l31}, 31, v1
    v_and_b32 v{l15}, 15, v1
    v_lshrrev_b32 v{g4}, 4, v1
    v_bfe_u32 v{y}, v1, 1, 3
    v_xor_b32 v{x}, v{y}, v{hi}
    v_lshlrev_b32 v{x}, 4, v{x}
    v_lshl_add_u32 v{x}, v{l31}, 7, v{x}
    s_mul_i32 s{sT2}, s{sT1}, {2*RB}
    v_add_u32 v{vB}, s{sT2}, v{x}
    v_xor_b32 v{vB+1}, 32, v{vB}
    v_xor_b32 v{vB+2}, 64, v{vB}
    v_xor_b32 v{vB+3}, 96, v{vB}
    v_xor_b32 v{x}, v{y}, v{g4}
    v_lshlrev_b32 v{x}, 4, v{x}
    v_lshl_add_u32 v{x}, v{l15}, 7, v{x}
    s_lshl_b32 s{sT2}, s{sHX}, 1
    s_add_u32 s{sT2}, s{sT2}, s{sT0}
    s_mul_i32 s{sT2}, s{sT2}, {RB}
    s_lshl_b32 s{sT3}, s{sT1}, 11
    s_add_u32 s{sT2}, s{sT2}, s{sT3}
    v_add_u32 v{vGX}, s{sT2}, v{x}
    v_xor_b32 v{vGX+1}, 64, v{vGX}
    v_lshlrev_b32 v{y}, 2, v{y}
    v_lshl_add_u32 v{y}, v{g4}, 4, v{y}
    v_mul_u32_u24 v{x}, {UP}, v{b0}
    v_sub_u32 v{y}, v{y}, v{x}
    s_mul_i32 s{sT2}, s{sT0}, {2*UP}
    s_lshl_b32 s{sT3}, s{sT1}, 8
    s_sub_u32 s{sT2}, s{sT2}, s{sT3}
    s_add_u32 s{sT2}, s{sT2}, {UO + UP + 260}
    v_add_u32 v{vU}, s{sT2}, v{y}
    v_add_u32 v{vU+1}, {RB}, v{vU}
    v_add_u32 v{vU+2}, {2*RB}, v{vU}
    v_add_u32 v{vU+3}, {3*RB}, v{vU}
    s_sub_u32 s{sT2}, s{sM}, s{sT3}
    s_add_u32 s{sT2}, s{sT2}, {TB + 4512 - 3584 - 192}
    v_lshlrev_b32 v{x}, 5, v{l15}
    v_lshlrev_b32 v{y}, 4, v{g4}
    v_sub_u32 v{x}, v{y}, v{x}
    v_add_u32 v{vKf}, s{sT2}, v{x}
    v_add_u32 v{vGW+8}, s{sM}, v{y}
    s_lshl_b32 s{sT2}, s{sT0}, 7
    s_add_u32 s{sT2}, s{sT2}, s{sM}
    v_lshl_add_u32 v{vFU+8}, v{hi}, 5, s{sT2}
    v_lshlrev_b32 v{x}, 4, v{l15}
    v_lshl_add_u32 v{vUS}, v{g4}, 14, v{x}
    v_mul_u32_u24 v{x}, 272, v{l31}
    v_lshl_add_u32 v{x}, v{hi}, 4, v{x}
    v_add_u32 v{vKR}, s{sM}, v{x}
    v_lshl_add_u32 v{x}, v{hi}, 4, v{q4}
    v_lshlrev_b32 v{x}, 7, v{x}
    v_lshl_add_u32 v{x}, v{b0}, 4, v{x}
    v_lshl_add_u32 v{x}, v{b4}, 1, v{x}
    v_lshl_add_u32 v{x}, v{b1}, 2, v{x}
    v_lshl_add_u32 v{x}, v{b3}, 3, v{x}
    s_xor_b32 s{sT2}, s{sW}, 3
    s_lshl_b32 s{sT3}, s{sT2}, 5
    v_xor_b32 v{x}, s{sT3}, v{x}
    v_add_u32 v{vT2}, s{sM}, v{x}
    v_xor_b32 v{vT2+1}, 64, v{vT2}
    s_mul_i32 s{sT3}, s{sT2}, {RB}
    v_add_u32 v{vXR}, s{sT3}, v{vL16}
    s_xor_b32 s{sT3}, s{sW}, 2
    s_mul_i32 s{sT3}, s{sT3}, {RB}
    v_add_u32 v{vXR+1}, s{sT3}, v{vL16}
    s_xor_b32 s{sT3}, s{sW}, 1
    s_mul_i32 s{sT3}, s{sT3}, {RB}
    v_add_u32 v{vXR+2}, s{sT3}, v{vL16}
    v_add_u32 v{vM16}, s{sM}, v{vL16}
    v_lshrrev_b32 v{x}, 2, v1
    v_and_b32 v{x}, 4, v{x}
    v_xor_b32 v{x}, v{x}, v1
    v_and_b32 v{x}, 7, v{x}
    v_lshl_add_u32 v{vD2}, v{x}, 4, v{vD2}
    v_add_u32 v{vD2+1}, 6144, v{vD2}
    v_add_u32 v{vD2+2}, 12288, v{vD2}
    v_add_u32 v{vD2+3}, 18432, v{vD2}
    s_mul_i32 s{sW2}, s{sW}, {448*896}
    s_lshl_b32 s{sT2}, s{sJM}, 7
    s_add_u32 s{sW2}, s{sW2}, s{sT2}
    v_lshrrev_b32 v{x}, 1, v1
    v_lshlrev_b32 v{vUL}, 6, v{x}
    v_lshl_add_u32 v{vUL}, v{b0}, 4, v{vUL}
    v_mul_u32_u24 v{y}, {2*UP}, v{b0}
    v_lshl_add_u32 v{x}, v{x}, 4, v{y}
    s_add_u32 s{sT2}, s{sM}, {UO}
    v_add_u32 v{vUW}, s{sT2}, v{x}
    s_lshl_b32 s{sT2}, s{sW}, 4
    v_min_u32 v{x}, 16, v1
    v_add_u32 v{x}, s{sT2}, v{x}
    v_max_u32 v{x}, 1, v{x}
    s_lshr_b32 s{sT2}, s{sP}, 4
    s_lshl_b32 s{sT2}, s{sT2}, 13
    v_lshl_add_u32 v{x}, v{x}, 7, s{sT2}
    v_min_u32 v{y}, 13, v{l31}
    s_lshl_b32 s{sT2}, s{sF}, 7
    s_add_u32 s{sT2}, s{sT2}, 128
    v_lshl_add_u32 v{y}, v{y}, 13, s{sT2}
    v_sub_u32 v{y}, v{y}, v{x}
    v_mad_i32_i24 v{vPU}, v{y}, v{hi}, v{x}
    s_getreg_b32 s{sT2}, hwreg(HW_REG_XCC_ID, 0, 16)
    v_mov_b32 v{vTAG+1}, s{sT2}
    v_lshlrev_b32 v{x}, 4, v{l31}
    s_add_u32 s{sT2}, s{sM}, {TB + 1520}
    v_sub_u32 v{x}, s{sT2}, v{x}
    v_lshlrev_b32 v{y}, 3, v{hi}
    v_sub_u32 v{vKT}, v{x}, v{y}
    v_lshlrev_b32 v{y}, 9, v{hi}
    v_sub_u32 v{vKT+1}, v{x}, v{y}
    v_sub_u32 v{vKT+2}, v{vKT+1}, v{y}
    v_lshrrev_b32 v{x}, 4, v{l31}
    v_mul_u32_u24 v{x}, {RB}, v{x}
    v_lshl_add_u32 v{vG}, v{l15}, 2, v{x}
    v_add_u32 v{vG+1}, {2*RB}, v{vG}
    v_min_u32 v{x}, 6, v1
    v_lshlrev_b32 v{vPH}, 7, v{x}
    v_lshl_add_u32 v{x}, v{l15}, 2, v{g4}
    v_xor_b32 v{x}, v{x}, v{q4}
    s_add_u32 s{sT2}, s{sM}, {TB}
    v_lshl_add_u32 v{vCW}, v{x}, 4, s{sT2}
    v_xor_b32 v{x}, v{g4}, v1
    s_lshl_b32 s{sT2}, s{sW}, 11
    s_add_u32 s{sT2}, s{sT2}, {TB}
    v_lshl_add_u32 v{vCR}, v{x}, 4, s{sT2}
    v_add_u32 v{vCR+1}, {2*RB}, v{vCR}
    v_and_b32 v{x}, 7, v1
    v_lshlrev_b32 v{vPA}, 9, v{x}
    v_mul_u32_u24 v{x}, 896, v{l31}
    v_add_u32 v{vO}, v{vO}, v{x}
    v_lshlrev_b32 v{x}, 2, v{l31}
    v_lshl_add_u32 v{vA2}, v{hi}, 15, v{x}
    s_mov_b32 s{WS+2}, {WS_SIZE}
    s_mov_b32 s{WS+3}, 0x20000
    s_mov_b32 s{OUT+2}, {2048*896}
    s_mov_b32 s{OUT+3}, 0x20000
    s_mov_b32 s{W2}, s{P_W2}
    s_mov_b32 s{W2+1}, s{P_W2+1}
    s_mov_b32 s{W2+2}, {1792*896}
    s_mov_b32 s{W2+3}, 0x20000
    s_mov_b32 s{sODD}, 0xaaaaaaaa
    s_mov_b32 s{sODD+1}, 0xaaaaaaaa
    s_lshl_b32 s{sH0}, s{sRT}, 1
    s_add_u32 s{sRT}, s{sH0}, s{sHX}
    s_add_u32 s{sH0}, s{sH0}, s{sT1}
    s_mul_i32 s{sH0}, s{sH0}, 28
    s_lshl_b32 s{sT2}, s{sCT}, 1
    s_add_u32 s{sT2}, s{sT2}, s{sT0}
    s_add_u32 s{sFH}, s{sH0}, s{sT2}
    s_add_u32 s{sH0}, s{sH0}, s{sFH}
    s_lshl_b32 s{sFH}, s{sFH}, 7
    s_add_u32 s{sFH}, s{sFH}, {FL_H}
    s_lshl_b32 s{sH0}, s{sH0}, 12
    s_add_u32 s{sH0}, s{sH0}, {HH}
    s_add_u32 s{sH1}, s{sH0}, {112*1024}
    s_lshl_b32 s{sT2}, s{sU}, 6
    s_add_u32 s{sT2}, s{sT2}, s{sF}
    s_lshl_b32 s{sU}, s{sU}, 9
    s_add_u32 s{sU}, s{sU}, s{sF}
    s_lshl_b32 s{sU}, s{sU}, 8
    s_add_u32 s{sU}, s{sU}, {UT}
    s_add_u32 s{sCT}, s{sU}, 65536
    s_lshl_b32 s{sF}, s{sT2}, 7
    s_add_u32 s{sF}, s{sF}, {FL_U}
    s_mov_b32 s{sPL}, {FL_U - 128}
    s_lshl_b32 s{sFA}, s{sP}, 2
    s_add_u32 s{sFA}, s{sFA}, s{sW}
    s_lshl_b32 s{sAS}, s{sFA}, 11
    s_add_u32 s{sAS}, s{sAS}, {A2}
    s_lshl_b32 s{sFA}, s{sFA}, 7
    s_add_u32 s{sFA}, s{sFA}, {FL_A}
    s_lshl_b32 s{sT0}, s{sJM}, 2
    s_add_u32 s{sT0}, s{sT0}, s{sW}
    s_lshl_b32 s{sT2}, s{sT0}, 5
    s_lshr_b32 s{sT1}, s{sRT}, 3
    s_add_u32 s{sPA}, s{sT2}, s{sT1}
    s_lshl_b32 s{sPA}, s{sPA}, 7
    s_add_u32 s{sPA}, s{sPA}, {FL_A}
    s_mul_i32 s{sO}, s{sRT}, {64*896}
    s_lshl_b32 s{sT0}, s{sT0}, 16
    s_lshl_b32 s{sT1}, s{sRT}, 8
    s_add_u32 s{sAL}, s{sT0}, s{sT1}
    s_add_u32 s{sAL}, s{sAL}, {A2}
    """, d='V0')
    p.add("s_waitcnt lgkmcnt(0)", res="_sm:w", d='V1', e='V1')
    p.add(f"""
    s_lshr_b32 s{sUL}, s{sP}, 1
    s_lshl_b32 s{sUL}, s{sUL}, 2
    s_add_u32 s{sUL}, s{sUL}, s{sW}
    s_lshl_b32 s{sUL}, s{sUL}, 7
    s_and_b32 s{sT2}, s{sP}, 1
    s_add_u32 s{sUL}, s{sUL}, s{sT2}
    s_lshl_b32 s{sUL}, s{sUL}, 5
    s_add_u32 s{sUL}, s{sUL}, {UT - 128}
    s_mul_i32 s{sPH}, s{sRT}, 28
    s_mul_i32 s{sT1}, s{sW}, 7
    s_add_u32 s{sT1}, s{sT1}, s{sPH}
    s_add_u32 s{sG0}, s{sT1}, s{sPH}
    s_lshl_b32 s{sG0}, s{sG0}, 12
    s_add_u32 s{sG0}, s{sG0}, {HH}
    s_add_u32 s{sG1}, s{sG0}, {112*1024}
    s_lshl_b32 s{sPH}, s{sT1}, 7
    s_add_u32 s{sPH}, s{sPH}, {FL_H}
    s_lshr_b32 s{sT0}, s{sW}, 1
    s_lshl_b32 s{sT0}, s{sT0}, 4
    s_lshr_b32 s{sDT}, s{sDT}, s{sT0}
    s_lshl_b32 s{sDT}, s{sDT}, 16
    s_lshr_b32 s{sDS}, s{sDS}, s{sT0}
    s_lshl_b32 s{sDS}, s{sDS}, 16
    s_mul_i32 s{sTAG}, s{sTAG}, 0x9E3779B1
    s_add_u32 s{sTAG}, s{sTAG}, 0x7F4A7C15
    v_mov_b32 v{vTAG}, s{sTAG}
    v_mov_b32 v{vDS}, 0
    v_writelane_b32 v{vDS}, s{sDS}, 0
    """, res="_sm:r", d='V0')
    p.add(f"s_cmp_lg_u32 s{sW}, 0\ns_cselect_b32 s{sMK}, -1, 0", res="_sm:r", atom=True, d='V0')
    for k, o in enumerate((0, 16, 64, 80)): p.add(f"ds_read_b128 {R(FR+16+4*k,4)}, v{vFU+8} offset:{BIO + o}", res="bias:r _sm:r")
    for k in range(16): p.add(f"v_lshlrev_b32 v{BIAS+2*k}, 16, v{FR+16+k}\nv_and_b32 v{BIAS+2*k+1}, 0xffff0000, v{FR+16+k}")
    for c in range(7):
        p.add(f"v_add_u32 v{vGW+9+c%2}, s{sCX[c]}, v{vGW+8}")
        for k in range(2): p.add(f"ds_read_b128 {R(aGW+8*c+4*k,4,'a')}, v{vGW+9+c%2} offset:{GWO + 64*k}", res="gw:r _sm:r")


EH, CH, ONE, KEEP, ROT, NROT = 192, 214, 216, 217, 224, 12


def kgen_pre(p, P):
    DT, ER, ZI, TM, E, MX, CC = 96, 98, 100, 102, 108, 116, 118
    p.add(f"""
    v_mov_b32 v{DT}, {LOG2E}
    v_mul_f32 v{DT}, s{sDT}, v{DT}
    v_exp_f32 v{DT}, v{DT}
    v_mov_b32 v{ONE}, 0x3c00
    v_cvt_pk_bf16_f32 v{DT}, v{DT}, v{DT}
    v_lshlrev_b32 v{DT}, 16, v{DT}
    v_lshlrev_b32 v{ER}, 16, v{KI}
    v_and_b32 v{ER+1}, 0xffff0000, v{KI}
    v_mul_f32 v{ER}, {LOG2E}, v{ER}
    v_mul_f32 v{ER+1}, {LOG2E}, v{ER+1}
    v_exp_f32 v{ER}, v{ER}
    v_exp_f32 v{ER+1}, v{ER+1}
    v_lshlrev_b32 v{ZI}, 16, v{KI+1}
    v_and_b32 v{ZI+1}, 0xffff0000, v{KI+1}
    v_cvt_pk_bf16_f32 v{ER+1}, v{ER}, v{ER+1}
    v_mul_f32 v{ZI}, v{ZI}, v{DT}
    v_mul_f32 v{ZI+1}, v{ZI+1}, v{DT}
    v_lshlrev_b32 v{ER}, 16, v{ER+1}
    v_and_b32 v{ER+1}, 0xffff0000, v{ER+1}
    v_mul_f32 v{ZI}, 0.15915494, v{ZI}
    v_mul_f32 v{ZI+1}, 0.15915494, v{ZI+1}
    v_mul_f32 v{ER}, v{ER}, v{DT}
    v_mul_f32 v{ER+1}, v{ER+1}, v{DT}
    v_mul_f32 v{ER}, {LOG2E | 0x80000000}, v{ER}
    v_mul_f32 v{ER+1}, {LOG2E | 0x80000000}, v{ER+1}
    v_lshlrev_b32 v{CC}, 16, v{KI+2}
    v_lshlrev_b32 v{CC+1}, 16, v{KI+3}
    v_and_b32 v{CC+2}, 0xffff0000, v{KI+2}
    v_and_b32 v{CC+3}, 0xffff0000, v{KI+3}
    v_max3_f32 v{MX}, |v{CC}|, |v{CC+1}|, |v{CC+2}|
    v_max_f32 v{MX}, v{MX}, |v{CC+3}|
    v_max_u32_dpp v{MX}, v{MX}, v{MX} row_shr:1 row_mask:0xf bank_mask:0xf
    v_max_u32_dpp v{MX}, v{MX}, v{MX} row_shr:2 row_mask:0xf bank_mask:0xf
    v_max_u32_dpp v{MX}, v{MX}, v{MX} row_shr:4 row_mask:0xf bank_mask:0xf
    v_max_u32_dpp v{MX}, v{MX}, v{MX} row_shr:8 row_mask:0xf bank_mask:0xf
    v_max_u32_dpp v{MX}, v{MX}, v{MX} row_bcast:15 row_mask:0xa bank_mask:0xf
    v_max_u32_dpp v{MX}, v{MX}, v{MX} row_bcast:31 row_mask:0xc bank_mask:0xf
    v_readlane_b32 s{sT0}, v{MX}, 63
    s_lshr_b32 s{sT0}, s{sT0}, 23
    s_max_u32 s{sT0}, s{sT0}, 14
    s_sub_u32 s{sT1}, 267, s{sT0}
    s_lshl_b32 s{sT1}, s{sT1}, 23
    s_sub_u32 s{sT0}, s{sT0}, 12
    s_lshl_b32 s{sT0}, s{sT0}, 23
    v_mul_f32 v{vSC}, s{sT0}, v{DT}
    """)
    for k in range(4): p.add(f"v_mul_f32 v{CC+k}, s{sT1}, v{CC+k}")
    for n in range(2): p.add(f"v_cvt_pk_f16_f32 v{CH+n}, v{CC+2*n}, -v{CC+2*n+1}")
    for n in range(2):
        for h in range(2):
            e = E + 4*n + 2*h; tm = TM + (2*n + h) % 3 * 2
            if h: p.add(f"v_mul_f32 v{tm}, 0x42000000, v{ER+n}\nv_mul_f32 v{tm+1}, 0x42000000, v{ZI+n}\nv_exp_f32 v{tm}, v{tm}\nv_fract_f32 v{tm+1}, v{tm+1}")
            else: p.add(f"v_exp_f32 v{tm}, v{ER+n}\nv_fract_f32 v{tm+1}, v{ZI+n}")
            p.add(f"v_cos_f32 v{e}, v{tm+1}\nv_sin_f32 v{e+1}, v{tm+1}\nv_mul_f32 v{e}, v{e}, v{tm}\nv_mul_f32 v{e+1}, v{e+1}, v{tm}")
    for k in range(6):
        for n in range(2):
            for h in range(2):
                if k == 5 and not h: continue
                e = E + 4*n + 2*h; tm = TM + (2*n + h) % 3 * 2
                p.add(f"v_cvt_pk_f16_f32 v{EH + 11*n + 5*h + k}, v{e}, v{e+1}")
                if k < 4 + h:
                    p.add(f"v_pk_mul_f32 {R(tm,2)}, {R(e,2)}, {R(e,2)} op_sel:[0,0] op_sel_hi:[0,1]")
                    p.add(f"v_pk_fma_f32 {R(e,2)}, {R(e,2)}, {R(e,2)}, {R(tm,2)} op_sel:[1,1,0] op_sel_hi:[1,0,1] neg_lo:[1,0,0]")


def kgen_pass(p, n):
    E = lambda k: EH + 11*n + k
    rot = [0]

    def dst(keep):
        if keep is not None: return KEEP + keep
        rot[0] += 1
        return ROT + rot[0] % NROT

    def wr(row, r):
        if not EXP: p.add(f"ds_write_addtid_b32 v{r} offset:{TB + 272*row}", res="tab:w _m0:r")

    def ca(rows, x, y, keep=None):
        d = dst(keep)
        if EXP > 1: return d
        p.add(f"v_pk_mul_f16 v{d}, v{x}, v{y} op_sel:[0,0] op_sel_hi:[1,0]")
        p.add(f"v_pk_fma_f16 v{d}, v{x}, v{y}, v{d} op_sel:[1,1,0] op_sel_hi:[0,1,1] neg_hi:[1,0,0]")
        for r in rows: wr(r, d)
        return d

    def cb(row, x, y, keep=None):
        d = dst(keep)
        if EXP > 1: return d
        p.add(f"v_pk_mul_f16 v{d}, v{x}, v{y} op_sel:[0,0] op_sel_hi:[0,1]")
        p.add(f"v_pk_fma_f16 v{d}, v{x}, v{y}, v{d} op_sel:[1,1,0] op_sel_hi:[1,0,1] neg_lo:[1,0,0]")
        wr(row, d)
        return d

    c = CH + n
    wr(0, c)
    r1 = ca([1], c, E(0)); r2 = ca([2], c, E(1)); r3 = ca([3], r1, E(1))
    for k, x in enumerate((c, r1, r2, r3)): ca([4 + k], x, E(2))
    r8 = ca([8], c, E(8), 0); r9 = ca([9], r8, E(1)); ca([10, 12], r8, E(2)); ca([13], r9, E(2)); ca([14], r8, E(3))
    r16 = ca([16], c, E(9), 1); r20 = ca([20], r8, E(9), 2)
    for r, x in ((16, r16), (20, r20)): ca([r + 1], x, E(2)); ca([r + 2], x, E(3))
    for k, x in enumerate((c, r8, r16, r20)): ca([25 + 2*k], ca([24 + 2*k], x, E(10)), E(3))
    for s in range(8): p.add(f"ds_read_b128 {R(aK+64*n+4*s,4,'a')}, v{vKR} offset:{TB + 32*s}", res="tab:r")
    B = {1: E(3), 2: E(4), 4: E(5), 8: E(6), 16: E(7)}
    wr(0, ONE)
    for j in (1, 2, 4, 8, 16): wr(j, B[j])
    for j in range(1, 16):
        if j not in B:
            h = 1 << (j.bit_length() - 1)
            B[j] = cb(j, B[j - h], B[h], {3: 3, 5: 4, 6: 5, 7: 6}.get(j))
        cb(16 + j, B[j], B[16])
    for s in range(8): p.add(f"ds_read_b128 {R(aK+64*n+32+4*s,4,'a')}, v{vKR} offset:{TB + 32*s}", res="tab:r")
    for s in range(8):
        p.add(f"v_mfma_f32_32x32x16_f16 {R(KD,16)}, {R(aK+64*n+4*s,4,'a')}, {R(aK+64*n+32+4*s,4,'a')}, {'0' if s == 0 and n == 0 else R(KD,16)}", car=('k', n, s))


KUSED = [r for r in range(16) if r not in (7, 11)]


def kgen_x(p):
    for r in KUSED: p.add(f"v_mul_f32 v{KD+r}, v{vSC}, v{KD+r}")
    for q in range(4): p.add(f"ds_write_b128 v{vM16}, {R(KD+4*q,4)} offset:{KXO + 1024*q}", res="tab:w kx:w")
    p.add(f"v_mov_b32 v{ONE}, 0")
    for q in range(4): p.add(f"ds_write_addtid_b32 v{ONE} offset:{TB + 4096 + 256*q}", res="tab:w")


def kgen_tail(p):
    D, Q, O = KD, 224, 240
    for q in range(4): p.add(f"ds_read_b128 {R(Q+4*q,4)}, v{vXR+2} offset:{KXO + 1024*q}", res="kx:r ky:r")
    p.add(f"v_add_f32 v{D}, v{D}, v{vDS}")
    for r in KUSED: p.add(f"v_add_f32 v{D+r}, v{D+r}, v{Q+r}")
    cv = lambda o, x, y: p.add(f"v_cvt_pk_bf16_f32 v{o}, v{x}, v{y}")
    w = lambda t: p.add(t, res="tab:w")
    cv(O, D+3, D+2); cv(O+1, D+1, D); w(f"ds_write_b64 v{vKT}, {R(O,2)} offset:{2056 + 512}")
    cv(O+2, D+6, D+5); cv(O+3, D+4, D+4); w(f"ds_write_b64 v{vKT}, {R(O+2,2)} offset:2056")
    cv(O+4, D+10, D+10); cv(O+5, D+9, D+9); cv(O+6, D+9, D+8); cv(O+7, D+8, D+8); w(f"ds_write_b128 v{vKT+1}, {R(O+4,4)} offset:1536")
    for t in range(2):
        e0, e1, o = D+12+2*t, D+13+2*t, O+8+4*t
        p.add(f"v_cndmask_b32 v{o+1}, v{e0}, v{e1}, {S(sODD,2)}")
        cv(o, e1, e1); cv(o+1, e1, o+1); cv(o+2, e0, e0); cv(o+3, e0, e0)
        w(f"ds_write_b128 v{vKT+2}, {R(o,4)} offset:{512*(1-t)}")


def g1_reads(p, t):
    c, s = divmod(t, 4)
    o = c % 3 * 8192
    b = FR + 16 * (t & 1)
    res = f"c{c}:r f{c}:r"
    A = lambda tf: [p.add(f"ds_read_b64_tr_b16 {R(b+4*tf+2*h,2)}, v{vA+(s&2)+tf} offset:{o + RB*(s&1) + 1024*h}", res=res) for h in range(2)]
    B = lambda tl: p.add(f"ds_read_b128 {R(b+8+4*tl,4)}, v{vB+s} offset:{o + RB*tl}", res=res)
    A(0); B(0); B(1); A(1)


def w2_dma(p, k, P, **kw):
    res = f"w{k%6}:w" + (f" f{4 + k//2}:w" if k < 6 else "")
    p.add(f"s_add_u32 m0, s{sM}, {W2SLOT[k % 6]}", **kw)
    s = sCX[k >> 1] + 1 if P['ROT'] else sW2
    if P['ROT'] and not k & 1: p.add(f"s_lshr_b32 s{s}, s{s}, 2\ns_add_u32 s{s}, s{s}, s{sW2}", **kw)
    elif k: p.add(f"s_add_u32 s{s}, s{s}, {32*896}", **kw)
    for i in range(4):
        p.add(f"buffer_load_dwordx4 v{vD2+i}, {S(W2,4)}, s{s} offen offset:{1024*i} lds", res=res, lat=P['LW'], **kw)


def w2_reads(p, k, **kw):
    for s in range(2):
        for td in range(2):
            for h in range(2):
                p.add(f"ds_read_b64_tr_b16 {R(8*(2*k+s)+4*td+2*h,2,'a')}, v{vT2+td} offset:{W2SLOT[k % 6] + (8*s+4*h)*128}", res=f"w{k%6}:r", **kw)


def u_part(p, P):
    sp = poll(p, "u", vPU, f"s{sPL}", ('g', P['UP']), ('g', P['UC']), "_u:w", post=st(3), n=2)
    p.add(f"v_cmp_ne_u32 {S(sHX,2)}, v{vTAG+1}, v{vF+1}", res="_u:r")
    d = dict(d=('g', P['UC']), lat=P['LU'], res="_u:r")
    for i in range(2): p.add(f"buffer_load_dwordx4 {R(UREG[i],4)}, v{vUL}, {S(WS,4)}, s{sUL} offen offset:{128 + 2048*i} sc1", **d)
    p.add(f"s_mov_b64 exec, 15\nbuffer_load_dwordx4 {R(UREG[2],4)}, v{vUL}, {S(WS,4)}, s{sUL} offen sc1\ns_mov_b64 exec, -1", atom=True, **d)
    T = UTMP
    for i in range(3):
        r = UREG[i]
        if i == 2:
            for k in range(4): p.add(f"v_and_b32 v{r+k}, s{sMK}, v{r+k}")
        p.add(f"v_lshlrev_b32 v{T+4*i}, 16, v{r}")
        for k in range(1, 4): p.add(f"v_alignbit_b32 v{T+4*i+k}, v{r+k}, v{r+k-1}, 16")
        if i < 2:
            p.add(f"ds_write_b128 v{vUW}, {R(r,4)} offset:{32 + 512*i}", res="us:w")
            p.add(f"ds_write_b128 v{vUW}, {R(T+4*i,4)} offset:{UP + 32 + 512*i}", res="us:w u16:a")
    for k, o in ((UREG[2], 0), (T + 8, UP)):
        p.add(f"s_mov_b64 exec, 15\nds_write_b128 v{vUW}, {R(k,4)} offset:{o}\ns_mov_b64 exec, -1", atom=True, res="us:w u16:a")
    for i in range(2): p.add(f"ds_write_b16_d16_hi v{vUW}, v{UREG[i]+3} offset:{UP + 48 + 512*i}", res="us:w u16:b")
    p.add(f"s_mov_b64 exec, 15\nds_write_b16_d16_hi v{vUW}, v{UREG[2]+3} offset:{UP + 16}\ns_mov_b64 exec, -1", atom=True, res="us:w u16:b")
    return sp


def gemm1(p, P):
    if P['HE']:
        p.add(f"v_lshrrev_b32 v0, 5, v1\nv_mul_u32_u24 v0, {112*1024 - 4096}, v0\nv_lshl_add_u32 v0, v1, 7, v0")
        p.add(f"buffer_load_dword v0, v0, {S(WS,4)}, s{sH0} offen", e=P['HE'], d=P['HE'], lat=P['LD'])
    for s in range(2):
        for h in range(2):
            p.add(f"ds_read_b64_tr_b16 {R(aU+4*s+2*h,2,'a')}, v{vUT+8 + (s^h)} offset:{512*h}", res="x0:r f0:r" if not P['C2'] else "x0:r")

    def ut():
        for s in range(2):
            p.add(f"buffer_store_dwordx4 {R(aU+4*s,4,'a')}, v{vUS}, {S(WS,4)}, s{sCT if s else sU} offen sc1", res="ut:w", lat=P['LS'], d=('g', P['US']), e=P['UE'])
    p.add("s_barrier\n" + st(1), res="c0:b" + (" f0:b" if P['C2'] else ""), atom=True)
    if P['C2']: g1_dma(p, 2, P, lat=P['LD'], d=('g', 0)); p.grp.pop('f0')
    ut()
    g1_reads(p, 0)
    sp = ""
    for t in range(28):
        c, s = divmod(t, 4)
        if s < 2:
            b = aG + 4*s
            p.add(f"ds_read_b128 {R(b,4,'a')}, v{vGX+s} offset:{c % 3 * 8192}", res=f"c{c}:r f{c}:r")
            p.add(f"v_mfma_f32_16x16x32_bf16 {R(aGD,4,'a')}, {R(aGW+8*c+4*s,4,'a')}, {R(b,4,'a')}, {'0' if t == 0 else R(aGD,4,'a')}", car=('a', c, s))
        if s == 3:
            res = f"f{c}:b" + (f" c{c+1}:b" if c < 6 else "")
            if c == P['KB']: kgen_x(p); res += " kx:b"
            if c == P['UB']: res += " us:b"
            if c == P['KB'] + 1: res += " ky:b"
            p.add("s_barrier\n" + "", res=res, e=('g', 4*t - 1), d=('g', 4*t - 2), atom=True)
            if c == P['KB']: kgen_tail(p)
            if c == P['UF']: flag(p, f"s{sF}", "ut:f", n=2, e=('g', 4*t - 1), d=('g', 4*t))
            if c < 4: g1_dma(p, c + 3, P, lat=P['LD'], d=('g', 4*t + P['DD']))
            else:
                for k in (2*c - 8, 2*c - 7): w2_dma(p, k, P, d=(('g', 4*t), P['DD']))
            if c == 3: sp = u_part(p, P)
        if t < 27: g1_reads(p, t + 1)
        b = FR + 16 * (t & 1)
        for k in range(4):
            tf, tl = divmod(k, 2)
            d = R(ACC1 + 32*tf + 16*tl, 16)
            p.add(f"v_mfma_f32_32x32x16_bf16 {d}, {R(b+4*tf,4)}, {R(b+8+4*tl,4)}, {R(BIAS+16*tf,16) if t == 0 else d}", car=('g', 4*t + k))
        if t == 0: kgen_pass(p, 0); kgen_pass(p, 1)
    p.add(f"""
    v_accvgpr_read_b32 v{vGX}, a{aGD}
    v_mul_f32 v{vGX}, {LOG2E | 0x80000000}, v{vGX}
    v_exp_f32 v{vGX}, v{vGX}
    v_add_f32 v{vGX}, 1.0, v{vGX}
    v_rcp_f32 v{vGX}, v{vGX}
    """)
    p.add(f"ds_write_addtid_b32 v{vGX} offset:{GO}", res="cx:w")
    if P['KB'] == 7 or P['UB'] == 7:
        res = "us:b" if P['UB'] == 7 else ""
        if P['KB'] == 7: kgen_x(p); res += " kx:b"
        if P['KB'] == 6: res += " ky:b"
        p.add("s_barrier\n" + "", res=res, atom=True)
        if P['KB'] == 7: kgen_tail(p)
    return sp


def g1_epilogue(p, P):
    n = 0
    for tf in range(2):
        for tl in range(2):
            for s in range(2):
                d = ACC1 + 32*tf + 16*tl + 8*s
                kw = dict(d=(('g', 111), P['ED'] + P['ES'] * n)); n += 1
                for r in range(8): p.add(f"v_mul_f32 v{d+r}, v{d+r}, |v{d+r}|")
                for r in range(4): p.add(f"v_cvt_pk_bf16_f32 v{d+r}, v{d+2*r}, v{d+2*r+1}")
                for r in range(4): p.add(f"v_pk_max_i16 v{d+r}, v{d+r}, 0")
                p.add(f"buffer_store_dwordx4 {R(d,4)}, v{vL16}, {S(WS,4)}, s{sH1 if tl else sH0} offen offset:{(2*tf+s)*1024} {P['HSC']}\n" + (st(4) if n == 8 else ""),
                      res="hs:w", lat=P['LH'], atom=True, **kw)
    e = at('c', P['HF'])
    if P['HSC']:
        flag(p, f"s{sFH}", "hs:f _hf:w", extra=st(5), e=e, d=e or ('c', 0))
        return ""
    flag(p, f"s{sFH}", "hs:f _hf:w", pre=f"s_cmp_lg_u32 s{sHX+1}, {P['FS']}\ns_cbranch_scc1 Lslow\n", extra="Lfast:\n" + st(5), sc=P['FSC'], e=e, d=e or ('c', 0))
    t = "Lslow:\n"
    for n in range(8): t += f"  buffer_store_dwordx4 {R(ACC1+8*n,4)}, v{vL16}, {S(WS,4)}, s{sH1 if n & 2 else sH0} offen offset:{((n >> 1 & 2) + (n & 1))*1024} sc1\n"
    return t + f"  s_waitcnt vmcnt(0)\n  s_mov_b64 exec, 1\n  buffer_store_dword v{vTAG}, off, {S(WS,4)}, s{sFH} sc1\n  s_mov_b64 exec, -1\n  s_branch Lfast\n"


def helper(P):
    t = f"""Lhelp:
  s_cmp_ge_u32 s2, {224 + P['NH']}
  s_cbranch_scc1 Lend2
  s_lshr_b32 s{sT1}, s2, 3
  s_sub_u32 s{sT1}, s{sT1}, 28
  s_mul_i32 s{sT2}, s{sT1}, {448*896}
  v_min_u32 v2, 111, v0
  v_lshlrev_b32 v2, 7, v2
  v_min_u32 v4, 223, v0
  v_lshlrev_b32 v4, 7, v4
  s_and_b32 s{sT0}, s2, 7
  s_mul_i32 s{sT0}, s{sT0}, {112*128}
  s_add_u32 s{sT0}, s{sT0}, {FL_H}
  s_mov_b32 s{WS+2}, {WS_SIZE}
  s_mov_b32 s{WS+3}, 0x20000
  s_mov_b32 s{OUT+2}, {2048*896}
  s_mov_b32 s{OUT+3}, 0x20000
  s_mov_b32 s{W2+2}, {1792*896}
  s_mov_b32 s{W2+3}, 0x20000
  s_mov_b32 s{sCNT}, 0
  s_waitcnt lgkmcnt(0)
  s_load_dword s{sTAG}, {S(WS,2)}, 0
  s_mov_b32 s{W2}, s{P_W2}
  s_mov_b32 s{W2+1}, s{P_W2+1}
"""
    if P['HT']: t += f"""  v_lshlrev_b32 v5, 16, v0
  buffer_load_dword v6, v5, {S(WS,4)}, 0 offen offset:2048
  buffer_load_dword v7, v5, {S(OUT,4)}, 0 offen
"""
    if P['HT'] > 1: t += "  s_waitcnt vmcnt(0)\n"
    for k in range(15 if P['PW'] >= 0 else 0):
        if k == P['PH']:
            t += f"  s_and_b32 s{sT3}, s2, 7\n  s_lshl_b32 s{sT3}, s{sT3}, 2\n  s_add_u32 s{sT3}, s{sT3}, s{sT1}\n  s_mul_i32 s{sT3}, s{sT3}, {224*1024}\n  s_add_u32 s{sT3}, s{sT3}, {HH}\n  v_lshlrev_b32 v5, 7, v0\n"
            for q in range(7): t += f"  buffer_load_dword v{24+q}, v5, {S(WS,4)}, s{sT3} offen {P['PSC']}\n  s_add_u32 s{sT3}, s{sT3}, 32768\n  s_waitcnt vmcnt({P['PW']})\n"
        if k == 14: break
        t += f"  buffer_load_dword v{8+k}, v4, {S(W2,4)}, s{sT2} offen {P['PSC']}\n  s_add_u32 s{sT2}, s{sT2}, {32*896}\n  s_waitcnt vmcnt({P['PW']})\n"
    t += f"""  s_waitcnt vmcnt(0) lgkmcnt(0)
  s_cmp_lg_u32 s{sT1}, 0
  s_cbranch_scc1 Lend2
"""
    if P['WB'] == 2: t += f"""  v_lshrrev_b32 v3, 11, v2
  v_and_b32 v2, {15*128}, v2
  v_lshl_add_u32 v2, v3, 14, v2
  s_and_b32 s{sT0}, s2, 7
  s_lshl_b32 s{sT0}, s{sT0}, 11
  s_add_u32 s{sT0}, s{sT0}, {FL_A}
"""
    if P['WB']: t += f"""  v_cmp_gt_u32 vcc, 112, v0
  s_mul_i32 s{sTAG}, s{sTAG}, 0x9E3779B1
  s_add_u32 s{sTAG}, s{sTAG}, 0x7F4A7C15
  s_cbranch_vccz Lhb
Lhs:
  buffer_load_dword v3, v2, {S(WS,4)}, s{sT0} offen sc1
  s_add_u32 s{sCNT}, s{sCNT}, 1
  s_cmp_lt_u32 s{sCNT}, 200
  s_waitcnt vmcnt(0)
  v_cmp_ne_u32 vcc, s{sTAG}, v3
  s_cbranch_vccz Lhb
  s_cbranch_scc1 Lhs
Lhb:
  s_barrier
  v_cmp_gt_u32 vcc, 64, v0
  s_cbranch_vccz Lend2
  buffer_wbl2 sc1
  s_waitcnt vmcnt(0)
"""
    return t + "Lend2:\n  s_waitcnt vmcnt(0)\n  s_endpgm\n"


def conv(p, P):
    F = [192, 128]
    order = sorted(((t, d) for t in range(8) for d in range(8) if t + d < 8), key=lambda x: (max(x), x[0] + x[1], x[0]))
    seen = set()
    for r in range(4):
        b = F[r & 1]
        for i in range(8):
            o = 128 * (i & 1) + 16 * (3 - r)
            p.add(f"ds_read2_b32 {R(b+4*i,2)}, v{vU+(i>>1)} offset0:{o} offset1:{o+1}", res="us:r")
            p.add(f"ds_read2_b32 {R(b+4*i+2,2)}, v{vU+(i>>1)} offset0:{o+2} offset1:{o+3}", res="us:r")
            p.add(f"ds_read_b128 {R(b+32+4*i,4)}, v{vKf} offset:{512*(7-i) + 64*(3-r)}", res="tab:r")
        od = order if r < 3 else sorted(order, key=lambda x: (x[0] + x[1], x[0]))
        for k, (t, d) in enumerate(od):
            c = t + d
            acc = R(aC + 4*c, 4, 'a')
            p.add(f"v_mfma_f32_16x16x32_bf16 {acc}, {R(b+4*d,4)}, {R(b+32+4*t,4)}, {acc if c in seen else '0'}", car=('c', 36*r + k))
            seen.add(c)
    if P['KB'] == 7 or (P['KB'] == 6 and P['UB'] != 7): p.add("s_barrier", res="ky:b", e=('c', 40), d=('c', 40))


def conv_out(p, P):
    F = 2
    d = dict(d=at('h', P['AD']))
    for c in range(8): p.add(f"ds_write_b128 v{vCW}, {R(aC+4*c,4,'a')} offset:{1024*c}", res="tab:w cx:w ky:w")
    p.add("s_barrier", res="cx:b")
    for i in range(2):
        for w in range(4): p.add(f"ds_read_b128 {R(F+16*i+4*w,4)}, v{vCR+(w>>1)} offset:{RB*(w&1) + 1024*i}", res="cx:r")
    for tl in range(2): p.add(f"ds_read_b32 v{vG+tl}, v{vG+tl} offset:{GO}", res="cx:r")
    for i in range(2):
        b = F + 16*i
        for k in (0, 1, 2, 3, 8, 9, 10, 11): p.add(f"v_add_f32 v{b+k}, v{b+k}, v{b+k+4}")
        for k in range(4): p.add(f"v_cvt_pk_bf16_f32 v{b+4+k}, v{b+k}, v{b+8+k}")
        p.add(f"buffer_store_dwordx4 {R(b+4,4)}, v{vL16}, {S(WS,4)}, s{sAS} offen offset:{1024*i} sc1", res="as:w", lat=P['LA'], **d)
    flag(p, f"s{sFA}", "as:f", extra=st(7), e=at('h', P['AF']), d=at('h', P['AF']))


def slot(i):
    i %= 32
    return 192 + 4*(i - 16) if i >= 16 else 64 + 8*(i & 7) + (4 if i < 8 else 0)


def gemm2(p, P):
    ACC, AV, BS, GN = 128, 2, 10, 0
    SK, S2 = P['SK'], P['S2']
    seq = sorted(((tl, k) for tl in range(2) for k in range(28)), key=lambda x: (x[1] + SK * x[0], x[0]))
    mf = [(tl, k, td) for tl, k in seq[:56 - S2] for td in range(2)] + [(tl, k, td) for td in range(2) for tl, k in seq[56 - S2:]]
    sp = poll(p, "h", vPH, f"s{sPH}", at('c', P['HP']), at('c', P['HC']), "_h:w _hf:r", pre=st(8), post=st(9))

    def hload(i):
        tl, k = seq[i]
        s = sG1 if tl else sG0
        if P['ROT']:
            u = sCX[k >> 2]
            if k % 4 == 0: p.add(f"s_add_u32 s{sG1}, s{u}, {112*1024}" if tl else f"s_lshl_b32 s{u}, s{u}, 5\ns_add_u32 s{u}, s{u}, s{sG0}")
            if not tl: s = u
        elif k and k % 4 == 0: p.add(f"s_add_u32 s{s}, s{s}, 4096")
        p.add(f"buffer_load_dwordx4 {R(slot(i),4)}, v{vL16}, {S(WS,4)}, s{s} offen offset:{1024*(k%4)} {P['GSC']}", res="_h:r", lat=P['LG'])

    def out(tl):
        A = ACC + 32*tl
        Q = slot(24) if tl == 0 else ACC
        B = BS + 8*tl
        for q in range(6): p.add(f"ds_write_b128 v{vM16}, {R(A+4*q,4)} offset:{8192*tl + 1024*q}", res=f"gx{tl}:w w{4-4*tl}:w w{5-4*tl}:w")
        for k in range(8): p.add(f"v_fmac_f32 v{B+k}, v{A+24+k}, v{GN+tl}")
        p.add("s_barrier", res=f"gx{tl}:b")
        for q in range(6): p.add(f"ds_read_b128 {R(Q+4*q,4)}, v{vXR+(q>>1)} offset:{8192*tl + 1024*q}", res=f"gx{tl}:r")
        if tl == 0:
            for j in (8, 16):
                for k in range(8): p.add(f"v_add_f32 v{Q+k}, v{Q+k}, v{Q+j+k}")
            for k in range(8): p.add(f"v_fmac_f32 v{B+k}, v{Q+k}, v{GN}")
        else:
            for j in (8, 16):
                for k in range(0, 8, 2): p.add(f"v_pk_add_f32 {R(Q+k,2)}, {R(Q+k,2)}, {R(Q+j+k,2)}")
            for k in range(0, 8, 2): p.add(f"v_pk_fma_f32 {R(B+k,2)}, {R(Q+k,2)}, {R(GN,2)}, {R(B+k,2)} op_sel:[0,1,0] op_sel_hi:[1,1,1]")
            p.add(f"s_add_u32 s{sO}, s{sO}, {32*896}")
        for k in range(4): p.add(f"v_cvt_pk_bf16_f32 v{B+k}, v{B+2*k}, v{B+2*k+1}")
        p.add(f"buffer_store_dwordx4 {R(B,4)}, v{vO}, {S(OUT,4)}, s{sO} offen", d='END')

    for k in range(14):
        w2_reads(p, k, e=at('c', P['WR']) if k >= 6 else None)
        if k + 6 < 14: w2_dma(p, k + 6, P, d=(('c', 0), P['W0'] + P['W1'] * k), e=(('c', 0), P['W0'] + P['W1'] * k) if P['WE'] else None)
    for i in range(32): hload(i)
    conv_out(p, P)
    sp += poll(p, "a", vPA, f"s{sPA}", ('h', P['AP']), ('h', P['AC']), "_a:w", post=st(10))
    for i in range(4):
        if i: p.add(f"s_add_u32 s{sAL}, s{sAL}, 8192")
        for tl in range(2):
            p.add(f"buffer_load_dword v{AV+4*tl+i}, v{vA2}, {S(WS,4)}, s{sAL} offen offset:{128*tl} sc1", res="_a:r", lat=P['LU'], d=('h', P['AC']))
    U = 26
    for tl in range(2): p.add(f"v_sub_f32 v{GN+tl}, 1.0, v{vG+tl}")
    for k in range(4): p.add(f"v_lshlrev_b32 v{U+2*k}, 16, v{B2R+k}\nv_and_b32 v{U+2*k+1}, 0xffff0000, v{B2R+k}")
    for tl in range(2):
        for k in range(8): p.add(f"v_mul_f32 v{BS+8*tl+k}, v{U+k}, v{GN+tl}")
    for tl in range(2):
        for k in range(4): p.add(f"v_lshlrev_b32 v{U+2*k}, 16, v{AV+4*tl+k}\nv_and_b32 v{U+2*k+1}, 0xffff0000, v{AV+4*tl+k}")
        for k in range(8): p.add(f"v_fmac_f32 v{BS+8*tl+k}, v{U+k}, v{vG+tl}")
    for m, (tl, k, td) in enumerate(mf):
        i = seq.index((tl, k))
        acc = R(ACC + 32*tl + 16*td, 16)
        p.add(f"v_mfma_f32_32x32x16_bf16 {acc}, {R(8*k+4*td,4,'a')}, {R(slot(i),4)}, {'0' if k == 0 else acc}", car=('h', m))
        if td and i + 32 < 56: hload(i + 32)
    out(0); out(1)
    return sp


DEF = dict(PERM=1, PC=1, WE=0, XV=30, WR=50, ROT=1, HE=None, NH=32, PH=-1, PSC='', GSC='sc1', PW=13, HT=1, WB=0, FS=0, FSC='sc1', MAP=0, HSC='sc1', C2=1, TS=0, ORD='x0 w0 p0 p1 p2 p3 b g x1 w1 2 c |60', LP=2400, LC=3200, LD=500, LW=500, LU=700, LS=700, LH=1300, LA=600, LG=600,
           US=0, UE=None, UF=1, UP=62, UC=76, KB=6, UB=6, K0=52, K1=84, KS=1, DD=4, ED=0, ES=2, EV=20, HF=50, HP=110, HC=('x', 9),
           AD=('x', 8), AF=0, AP=60, AC=76, SK=6, S2=3, INFL=2.0, DSLAT=112, LDSQ=48, VMQ=128, CAP32=6, CAP16=2, V0=60, W0=0, W1=16)


def build(**kw):
    P = dict(DEF); P.update(kw)
    name = NAME + "_kernel"
    global PROF, EXP
    EXP = P.get('EXP', 0)
    a = Asm()
    if PROF: a("! " + st(0))
    XS = P.get('XS')
    if XS: PROF = False
    prologue(a, P)
    p = Prog()
    order = first_loads(p, P)
    setup(p)
    kgen_pre(p, P)
    sp = gemm1(p, P)
    sp += g1_epilogue(p, P)
    conv(p, P)
    sp += gemm2(p, P)
    p.virt('END', 0)
    ins = {}
    for c in range(7):
        for s in range(2): ins.setdefault(16*c + 4*s + 5, []).append(('a', c, s))
    for n in range(2):
        for s in range(8): ins.setdefault(P['K1' if n else 'K0'] + s * P['KS'], []).append(('k', n, s))
    for m in range(112): order += [('g', m)] + ins.get(m, [])
    for k in range(P['EV']): p.virt(('e', k), 10); order.append(('e', k))
    order += [('c', m) for m in range(144)]
    for k in range(P['XV']): p.virt(('x', k), 10); order.append(('x', k))
    order += [('h', m) for m in range(112)] + ['END']
    stamp(p, 2, ('g', 111)); stamp(p, 6, ('h', 0)); stamp(p, 15, ('c', 143)); stamp(p, 11, ('h', 111))
    log = []
    body, s = schedule(p, order, log=log, **{k: P[k] for k in ('INFL', 'DSLAT', 'LDSQ', 'VMQ', 'CAP32', 'CAP16')})
    m0 = None
    for i in body:
        if i.kind == 'salu' and ('m0', 0) in i.defs: m0 = int(i.text.split(',')[-1])
        if 'addtid' in i.op:
            h, o = i.text.split('offset:'); o = int(o) - m0
            assert 0 <= o < 65536
            i.text = f"{h}offset:{o}"
        i.raw = True
        if i.kind == 'smem': i.kind = 'label'; i.text = '  ' + i.text; i.states = 0
    if XS:
        PROF = True
        for k, c in enumerate(XS):
            i = Ins(st(k + 1).strip()); i.kind = 'label'; i.text = '  ' + i.text; i.states = 0; i.raw = True
            if isinstance(c, int): q = [x for x in body if x.kind != 'label' and x.isvm()][c]
            elif isinstance(c[0], str) and len(c[0]) > 1: q = [x for x in body if c[0] in x.text][c[1]]
            else: q = p.car[c].ins[0]
            body.insert(body.index(q) + 1, i)
    n0 = len(a.ins) + len(body)
    a.add(body)
    if PROF: a("! " + st(15 if XS else 12))
    a(f"""
    s_or_b32 s{sT0}, s2, s{sW}
    s_cbranch_scc1 Lnoep
    s_mov_b64 exec, 1
    buffer_store_dword v{vTAG}, off, {S(WS,4)}, 0 sc1
    Lnoep:
    """)
    if PROF:
        a(f"""
        s_lshl_b32 s{sT0}, s2, 2
        s_add_u32 s{sT0}, s{sT0}, s{sW}
        s_lshl_b32 s{sT0}, s{sT0}, 6
        s_add_u32 s{sT0}, s{sT0}, {STAMPS}
        s_mov_b64 exec, 1
        s_waitcnt lgkmcnt(0)
        """)
        for i in range(16): a(f"v_mov_b32 v2, s{STAMP0+2*i}\nbuffer_store_dword v2, off, {S(WS,4)}, s{sT0} offset:{4*i}")
    n1 = len(a.ins)
    fin = finalize(a.ins)
    tm = {k: (t, u, v) for k, t, u, v in log}
    ph = lambda c: sum(u for k, t, u, v in log if k[0] in c)
    print(f"instr {sum(1 for i in fin if i.kind != 'label')} added {len(fin) - n1} waits {s['waits']} stall {s['stall']} | g0 {tm[('g',0)][0]} G1 {ph('gak')} epi {ph('e')}"
          f" conv {ph('c')} gap {ph('x')} G2 {ph('h')} tail {tm['END'][1]} total {s['now']}")
    if XS: print("model    ", " ".join(f"{tm.get(c, (0,))[0]/1000:6.2f}" for c in ['V0'] + XS))
    if P.get('LOG'):
        for k, t, u, v in log:
            if u > v: print(k, t, u, v)
    t = f".globl {name}\n.p2align 8\n.type {name},@function\n{name}:\n" + text_of(fin) + "Lend:\n  s_endpgm\n" + sp + (helper(P) if P['NH'] else "")
    d = f""".p2align 6
.amdhsa_kernel {name}
  .amdhsa_next_free_vgpr 512
  .amdhsa_next_free_sgpr 102
  .amdhsa_accum_offset 256
  .amdhsa_group_segment_fixed_size 0
  .amdhsa_kernarg_size 128
  .amdhsa_user_sgpr_count 2
  .amdhsa_user_sgpr_kernarg_segment_ptr 1
  .amdhsa_system_sgpr_workgroup_id_x 1
.end_amdhsa_kernel
"""
    hdr = f"; @launch grid=({224 + P['NH']},1,1) block=(256,1,1) lds={LDS}\n"
    return hdr + '.amdgcn_target "amdgcn-amd-amdhsa--gfx950"\n.text\n' + t + '.section .rodata,"a"\n' + d


if __name__ == "__main__":
    args = [x for x in sys.argv[1:] if not x.startswith("-") and "=" not in x]
    kw = {x.split("=")[0]: eval(x.split("=")[1]) for x in sys.argv[1:] if "=" in x}
    PROF = "-p" in sys.argv
    if "-c" in sys.argv: PROF = True; CLK = "s_memtime"
    open(args[0], "w").write(build(**kw))
```
